```python
import torch

def _softmax(x, axis=-1):
    return torch.softmax(x, dim=axis)
def _gelu(x):
    return torch.nn.functional.gelu(x, approximate="tanh")
def _silu(x):
    return torch.nn.functional.silu(x)
def _sigmoid(x):
    return torch.sigmoid(x)
def _layernorm(x, axis=-1, eps=1e-5):
    m = x.mean(dim=axis, keepdim=True)
    v = x.var(dim=axis, keepdim=True, unbiased=False)
    return (x - m) / torch.sqrt(v + eps)
def _scatter_add(tgt, idx, src, axis=0):
    return tgt.clone().index_add_(axis, idx, src)
def _segment_sum(src, seg, n):
    out = torch.zeros((n,) + src.shape[1:], dtype=src.dtype)
    return out.index_add_(0, seg, src)
def _pad(x, pw):
    flat = tuple(v for pair in reversed(pw) for v in pair)
    return torch.nn.functional.pad(x, flat)

kernel_name = 'gated_mix__compressed_kv_cla__geglu_ffn__prompt'

def setup_inputs():

    _w = (lambda a: (lambda t: t.to(torch.bfloat16) if t.is_floating_point() else t)(torch.as_tensor(a)))
    def _A_setup():
        B, H, Sq, Sk, D, M = 1, 32, 2048, 2048, 128, 1024
        Dc = 4 * D
        return {
            "x": _w((lambda *s: torch.randn(*s, dtype=torch.bfloat16) * 0.05)(B, Sq, M)),
            "c_kv": _w((lambda *s: torch.randn(*s, dtype=torch.bfloat16) * 0.4)(B, Sk, Dc)),
            "w_q": _w((lambda *s: torch.randn(*s, dtype=torch.bfloat16) * 6.4)(M, H, D) * (M ** -0.5)),
            "w_uk": _w((lambda *s: torch.randn(*s, dtype=torch.bfloat16) * 6.4)(Dc, H, D) * (Dc ** -0.5)),
            "w_uv": _w((lambda *s: torch.randn(*s, dtype=torch.bfloat16) * 0.4)(Dc, H, D) * (Dc ** -0.5)),
            "w_o": _w((lambda *s: torch.randn(*s, dtype=torch.bfloat16) * 0.4)(H, D, M) * ((H * D) ** -0.5)),
        }
    _A_in = _A_setup()

    def _B_setup():
        B, S, D, F = 1, 2048, 1024, 3584
        return {
            "x": _w((lambda *s: torch.randn(*s, dtype=torch.bfloat16) * 0.05)(B, S, D)),
            "w_gate": _w((lambda *s: torch.randn(*s, dtype=torch.bfloat16) * 0.05)(D, F)),
            "w_up": _w((lambda *s: torch.randn(*s, dtype=torch.bfloat16) * 0.05)(D, F)),
            "w_down": _w((lambda *s: torch.randn(*s, dtype=torch.bfloat16) * 0.05)(F, D)),
        }
    _B_in = _B_setup()

    return {
        "A_x": _A_in["x"],
        "A_c_kv": _A_in["c_kv"],
        "A_w_q": _A_in["w_q"],
        "A_w_uk": _A_in["w_uk"],
        "A_w_uv": _A_in["w_uv"],
        "A_w_o": _A_in["w_o"],
        "B_x": _B_in["x"],
        "B_w_gate": _B_in["w_gate"],
        "B_w_up": _B_in["w_up"],
        "B_w_down": _B_in["w_down"],
        "gate_w": _w((lambda *s: torch.randn(*s, dtype=torch.bfloat16) * 0.05)(1024) * 16.0),
    }

def reference(A_x, A_c_kv, A_w_q, A_w_uk, A_w_uv, A_w_o, B_x, B_w_gate, B_w_up, B_w_down, gate_w):
    def _A_ref(x, c_kv, w_q, w_uk, w_uv, w_o):
        B, Sq, M = x.shape[0], x.shape[1], x.shape[2]
        Sk = c_kv.shape[1]
        H, D = w_q.shape[1], w_q.shape[2]
        q = torch.einsum("bqm,mhd->bhqd", x, w_q)
        k = torch.einsum("bkc,chd->bhkd", c_kv, w_uk)
        v = torch.einsum("bkc,chd->bhkd", c_kv, w_uv)
        scores = torch.einsum("bhqd,bhkd->bhqk", q, k) * (D ** -0.5)
        off = Sk - Sq
        qi = torch.arange(Sq)[:, None]
        kj = torch.arange(Sk)[None, :]
        cmask = kj <= (qi + off)
        scores = torch.where(cmask[None, None], scores, -1e9)
        p = _softmax(scores, axis=-1)
        ctx = torch.einsum("bhqk,bhkd->bhqd", p, v)
        return torch.einsum("bhqd,hdm->bqm", ctx, w_o)

    def _B_ref(x, w_gate, w_up, w_down):
        return (_gelu(x @ w_gate) * (x @ w_up)) @ w_down

    x = A_x
    g = _sigmoid((x * gate_w).sum(-1, keepdims=True))
    a = _A_ref(x, A_c_kv, A_w_q, A_w_uk, A_w_uv, A_w_o)
    b = _B_ref(x, B_w_gate, B_w_up, B_w_down)
    return g * a + (1 - g) * b
```

```python
class Asm:
    def __init__(self):
        self.lines = []
        self._lbl = 0

    def e(self, s):
        self.lines.append("  " + s)

    def c(self, s):
        self.lines.append("  ; " + s)

    def label(self, l):
        self.lines.append(l + ":")

    def raw(self, s):
        self.lines.append(s)

    def newlabel(self, base):
        self._lbl += 1
        return "%s_%d" % (base, self._lbl)

    def text(self):
        return "\n".join(self.lines) + "\n"


def vr(i, n=1):
    return "v%d" % i if n == 1 else "v[%d:%d]" % (i, i + n - 1)


def ar(i, n=1):
    return "a%d" % i if n == 1 else "a[%d:%d]" % (i, i + n - 1)


def sr(i, n=1):
    return "s%d" % i if n == 1 else "s[%d:%d]" % (i, i + n - 1)


def reg(spec, n=1, off=0):
    k, i = spec
    return (vr if k == 'v' else ar)(i + off, n)


def interleave(a, mfmas, fillers):
    for s in fillers.get(-1, []):
        a.e(s)
    for i, m in enumerate(mfmas):
        a.e(m)
        for s in fillers.get(i, []):
            a.e(s)


def kernel_header(a, name):
    a.raw(".globl %s" % name)
    a.raw(".p2align 8")
    a.raw(".type %s,@function" % name)
    a.label(name)


def kernel_desc(name, vgpr, sgpr, accum):
    return """.amdhsa_kernel %s
  .amdhsa_next_free_vgpr %d
  .amdhsa_next_free_sgpr %d
  .amdhsa_accum_offset %d
  .amdhsa_group_segment_fixed_size 0
  .amdhsa_kernarg_size 112
  .amdhsa_user_sgpr_count 2
  .amdhsa_user_sgpr_kernarg_segment_ptr 1
  .amdhsa_system_sgpr_workgroup_id_x 1
.end_amdhsa_kernel
""" % (name, vgpr, sgpr, accum)
```

```python
from asmlib import *
import struct

WS_Q = 0
WS_K = 16 << 20
WS_V = 32 << 20
WS_A3 = 48 << 20
WS_G = 80 << 20
WS_P = 81 << 20
WS_SIZE = 268435456


def f32(x):
    return "0x%08x" % struct.unpack("<I", struct.pack("<f", x))[0]


S_X, S_CKV, S_WQ, S_WUK, S_WUV, S_WO, S_BX, S_WG, S_WU, S_WD, S_GW, S_OUT, S_DBG, S_WS = [16 + 2 * i for i in range(14)]
SRD_X, SRD_W, SRD_O = 44, 48, 52
sXk, sXk2, sWk, sWstep, sXrow32 = 56, 57, 58, 59, 60
sXdst, sXbeg, sXend = 61, 62, 63
sWm0a, sWm0b = 64, 65
sIter, sWave, sJob = 66, 67, 68
sTm, sTn8, sTn7 = 69, 70, 71
sRslot, sDelta, sCp, sCm = 72, 73, 74, 75
sT0, sT1, sT2, sT3 = 76, 77, 78, 79
sOb = 80
sNXlo, sNXhi, sNXn, sNXk, sNXrow32 = 81, 82, 83, 84, 85
sNWlo, sNWhi, sNWn, sNWk, sNWstep, sNm0a, sNm0b = 86, 87, 88, 89, 90, 91, 92
sCA, sCB = 94, 95
sCC = 96

vXr = [1, 2, 3, 4]
vWr8 = [5, 6, 7, 8]
vWr7 = 9
vXd = [10, 11, 12, 13]
vWd = [14, 15, 16, 17]
vXdN = [18, 19, 20, 21]
vWdN = [22, 23, 24, 25]
vSt = 26
vT = [27, 28, 29, 30, 31]
ACC0 = 32

XBASE = 65536


def acc(blk):
    if blk < 14:
        return ('v', ACC0 + 16 * blk)
    return ('a', 16 * (blk - 14))


def fragX(s, tb):
    return 32 + s * 40 + 4 * tb


def fragW(s, nb):
    return 32 + s * 40 + 8 + 4 * nb


HACK = {}


def mfmas(kind, s, zero=False):
    NB = 7 if kind == 'G' else 8
    out = []
    if HACK.get('m16'):
        for nb in range(NB):
            for tb in range(2):
                w = ar(fragW(s, nb), 4)
                x = ar(fragX(s, tb), 4)
                x2 = ar(fragX(s, tb ^ 1), 4)
                two = []
                for q in range(2):
                    d = reg(acc(nb * 2 + tb), 4, 8 * s + 4 * q)
                    two.append("v_mfma_f32_16x16x32_bf16 %s, %s, %s, %s" % (d, w if q == 0 else x2, x if q == 0 else w, d))
                out.append("\n  ".join(two))
        return out
    for nb in range(NB):
        for tb in range(2):
            d = reg(acc(nb * 2 + tb), 16)
            w = ar(fragW(s, nb), 4)
            x = ar(fragX(s, tb), 4)
            A, B = (x, w) if kind == 'V' else (w, x)
            out.append("v_mfma_f32_32x32x16_bf16 %s, %s, %s, %s" % (d, A, B, "0" if zero else d))
    return out


def reads(kind, p, k):
    slot = p % 4
    s = 2 * (p & 1) + k
    out = []
    if HACK.get('noread') and HACK.get('inloop'):
        return out
    for tb in range(2):
        out.append("ds_read_b128 %s, %s offset:%d" % (ar(fragX(k, tb), 4), vr(vXr[s]), tb * 4096))
    NB = 7 if kind == 'G' else 8
    for nb in range(NB):
        for t in range(2):
            if kind == 'G':
                addr = vWr7
                off = slot * 16384 + (16 * k + 4 * t) * 224 + nb * 32
            else:
                addr = vWr8[nb & 3]
                off = slot * 16384 + (16 * k + 4 * t) * 512 + (nb >> 2) * 256
            out.append("ds_read_b64_tr_b16 %s, %s offset:%d" % (ar(fragW(k, nb) + 2 * t, 2), vr(addr), off))
    return out


def dmaW(slot):
    g = []
    for j in range(4):
        l = []
        if j == 0:
            l.append("s_add_u32 m0, %s, %d" % (sr(sWm0a), slot * 16384))
        if j == 3:
            l.append("s_add_u32 m0, %s, %d" % (sr(sWm0b), slot * 16384))
        l.append(("DMA", "buffer_load_dwordx4 %s, %s, %s offen offset:%d lds" % (vr(vWd[j]), sr(SRD_W, 4), sr(sWk), j * 1024)))
        g.append(l)
    g[3].append("s_add_u32 %s, %s, %s" % (sr(sWk), sr(sWk), sr(sWstep)))
    return g


def dmaX(half):
    g = []
    for j in range(4):
        l = []
        if j == 0:
            if half == 0:
                l.append("s_mov_b32 m0, %s" % sr(sXdst))
            else:
                l.append("s_add_u32 m0, %s, 4096" % sr(sXdst))
        l.append(("DMA", "buffer_load_dwordx4 %s, %s, %s offen offset:%d lds" % (
            vr(vXd[j]), sr(SRD_X, 4), sr(sXk if half == 0 else sXk2), j * 1024)))
        g.append(l)
    if half == 0:
        g[3].append("s_add_u32 %s, %s, %s" % (sr(sXk2), sr(sXk), sr(sXrow32)))
        g[3].append("s_add_u32 %s, %s, 128" % (sr(sXk), sr(sXk)))
    else:
        g[3].append("s_add_u32 %s, %s, 8192" % (sr(sXdst), sr(sXdst)))
        g[3].append("s_cmp_eq_u32 %s, %s" % (sr(sXdst), sr(sXend)))
        g[3].append("s_cselect_b32 %s, %s, %s" % (sr(sXdst), sr(sXbeg), sr(sXdst)))
    return g


def flat_dma(groups):
    out = []
    for l in groups:
        prev_m0 = False
        for s in l:
            if isinstance(s, tuple):
                if prev_m0:
                    out.append("s_nop 0")
                out.append(s[1])
                prev_m0 = False
            else:
                out.append(s)
                prev_m0 = " m0," in s
    return out


def group(a, kind_m, s, zero, rd, dma, extra=None, opt=None):
    m = mfmas(kind_m, s, zero) if kind_m else []
    n = len(m)
    fill = {}
    if n == 0:
        for r in rd:
            a.e(r)
        for x in flat_dma(dma):
            a.e(x)
        for x in (extra or []):
            a.e(x)
        return
    rpg = opt.get('rpg', 2)
    g = 0
    i = 0
    while i < len(rd):
        fill.setdefault(g, []).extend(rd[i:i + rpg])
        i += rpg
        g += 1
    first = opt.get('dma_first', n - 7)
    step = opt.get('dma_step', 2)
    pos = first
    for l in dma:
        pre = []
        post = []
        seen = False
        for sx in l:
            if isinstance(sx, tuple):
                seen = True
                if not (HACK.get('nodma') and HACK.get('inloop')):
                    post.append(sx[1])
            elif not seen:
                pre.append(sx)
            else:
                post.append(sx)
        pp = min(pos, n - 1)
        if pre:
            fill.setdefault(pp - 1, []).extend(pre)
        fill.setdefault(pp, []).extend(post)
        pos += step
    for gi, x in (extra or []):
        fill.setdefault(gi, []).append(x)
    interleave(a, m, fill)


def xr_update(s):
    return "v_add_u32 %s, %s, %s" % (vr(vXr[s]), sr(sDelta), vr(vXr[s]))


def delta_update():
    return ["s_add_u32 %s, %s, 1" % (sr(sRslot), sr(sRslot)),
            "s_cmp_eq_u32 %s, 3" % sr(sRslot),
            "s_cselect_b32 %s, %s, %s" % (sr(sDelta), sr(sCm), sr(sCp)),
            "s_cselect_b32 %s, 0, %s" % (sr(sRslot), sr(sRslot))]


def switchX(a):
    a.e("s_mov_b32 %s, %s" % (sr(SRD_X), sr(sNXlo)))
    a.e("s_mov_b32 %s, %s" % (sr(SRD_X + 1), sr(sNXhi)))
    a.e("s_mov_b32 %s, %s" % (sr(SRD_X + 2), sr(sNXn)))
    a.e("s_mov_b32 %s, %s" % (sr(sXk), sr(sNXk)))
    a.e("s_mov_b32 %s, %s" % (sr(sXrow32), sr(sNXrow32)))


def switchW(a):
    a.e("s_mov_b32 %s, %s" % (sr(SRD_W), sr(sNWlo)))
    a.e("s_mov_b32 %s, %s" % (sr(SRD_W + 1), sr(sNWhi)))
    a.e("s_mov_b32 %s, %s" % (sr(SRD_W + 2), sr(sNWn)))
    a.e("s_mov_b32 %s, %s" % (sr(sWk), sr(sNWk)))
    a.e("s_mov_b32 %s, %s" % (sr(sWstep), sr(sNWstep)))
    a.e("s_mov_b32 %s, %s" % (sr(sWm0a), sr(sNm0a)))
    a.e("s_mov_b32 %s, %s" % (sr(sWm0b), sr(sNm0b)))


def groupA_extras(p):
    ex = []
    pm = (p - 1) % 4
    s_prev = 2 * (pm & 1) + 1
    ex.append((10, xr_update(s_prev)))
    return ex


def groupB_extras(p):
    ex = []
    s_prev = 2 * (p & 1) + 0
    if (p & 1) == 0:
        for i, x in enumerate(delta_update()):
            ex.append((9, x))
    ex.append((11, xr_update(s_prev)))
    return ex


def interval(a, kind, p, opt, half='both', kindA=None, zeroB=False):
    if half in ('both', 'A'):
        a.e("s_waitcnt vmcnt(16) lgkmcnt(0)")
        a.e("s_barrier")
        ka = kind if kindA is None else kindA
        ex = groupA_extras(p)
        if ka == 'none':
            ka = None
            ex = []
        group(a, ka, 1, False, reads(kind, p, 0), dmaW((p + 3) % 4), ex, opt)
    if half in ('both', 'B'):
        a.e("s_waitcnt lgkmcnt(0)")
        group(a, kind, 0, zeroB, reads(kind, p, 1), dmaX(p & 1), groupB_extras(p), opt)


def loop(a, kind, name, opt, vswitch):
    HACK['inloop'] = 1
    a.label(name + "_top")
    interval(a, kind, 0, opt, 'A')
    a.e("s_cmp_lg_u32 %s, 1" % sr(sIter))
    a.e("s_cbranch_scc1 %s_nsx" % name)
    switchX(a)
    vswitch(a, 'X')
    a.label(name + "_nsx")
    interval(a, kind, 0, opt, 'B')
    a.label(name + "_entry")
    stamp_ts(a, opt)
    a.e("s_cmp_lg_u32 %s, 1" % sr(sIter))
    a.e("s_cbranch_scc1 %s_nsw" % name)
    switchW(a)
    vswitch(a, 'W')
    a.label(name + "_nsw")
    for p in (1, 2, 3):
        interval(a, kind, p, opt)
    a.e("s_sub_u32 %s, %s, 1" % (sr(sIter), sr(sIter)))
    a.e("s_cmp_lg_u32 %s, 0" % sr(sIter))
    a.e("s_cbranch_scc1 %s_top" % name)
    HACK['inloop'] = 0


def epi_store_block(a, blk, offs, scale=None):
    k, r = acc(blk)
    if k == 'a':
        raise RuntimeError
    if scale is not None:
        for i in range(0, 16, 2):
            a.e("v_pk_mul_f32 %s, %s, %s" % (vr(r + i, 2), vr(r + i, 2), sr(scale, 2)))
    for g in range(2):
        for i in range(4):
            a.e("v_cvt_pk_bf16_f32 %s, %s, %s" % (vr(r + 8 * g + i), vr(r + 8 * g + 2 * i), vr(r + 8 * g + 2 * i + 1)))
        so, imm = offs[g]
        a.e("buffer_store_dwordx4 %s, %s, %s, %s offen offset:%d" % (vr(r + 8 * g, 4), vr(vSt), sr(SRD_O, 4), sr(so), imm))


def epilogue_kqv(a, kind, scale=None):
    a.e("s_nop 7")
    a.e("s_nop 7")
    order = list(range(16))
    for blk in order:
        nb, tb = blk >> 1, blk & 1
        db = nb & 3
        base = (nb >> 2) * 524288 + tb * 8192
        if kind == 'V':
            o = [base + db * 1024, base + 4096 + db * 1024]
        else:
            o = [base + (db * 2) * 1024, base + (db * 2 + 1) * 1024]
        offs = []
        for g in range(2):
            hi = o[g] & ~4095
            st = sT0 + g
            if g == 0 or (o[0] & ~4095) != hi:
                a.e("s_add_u32 %s, %s, %d" % (sr(st), sr(sOb), hi))
            else:
                st = sT0
            offs.append((st, o[g] & 4095))
        if blk >= 14:
            k, r = acc(blk)
            _, rv = acc(blk - 14)
            for i in range(16):
                a.e("v_accvgpr_read_b32 %s, %s" % (vr(rv + i), ar(r + i)))
            epi_store_block(a, blk - 14, offs, scale)
        else:
            epi_store_block(a, blk, offs, scale)


def epilogue_gu(a):
    A = -2.0 * 1.4426950408889634 * 0.7978845608028654
    B = A * 0.044715
    a.e("s_mov_b32 %s, %s" % (sr(sCA), f32(A)))
    a.e("s_mov_b32 %s, %s" % (sr(sCA + 1), f32(A)))
    a.e("s_mov_b32 %s, %s" % (sr(sCC), f32(B)))
    a.e("s_mov_b32 %s, %s" % (sr(sCC + 1), f32(B)))
    a.e("v_mov_b32 v10, %s" % sr(sCA))
    a.e("v_mov_b32 v11, %s" % sr(sCA))
    a.e("s_nop 7")
    a.e("s_nop 7")
    T = [12, 14, 16, 18, 20, 22, 24, 28]
    for blk in range(14):
        nb, tb = blk >> 1, blk & 1
        _, r = acc(blk)
        o = tb * 480 * 1024 + nb * 1024
        a.e("s_add_u32 %s, %s, %d" % (sr(sT0), sr(sOb), o & ~4095))
        P = [12, 14, 16, 18]
        for i in range(4):
            a.e("v_pk_mul_f32 %s, %s, %s" % (vr(P[i], 2), vr(r + 2 * i, 2), vr(r + 2 * i, 2)))
        for i in range(4):
            a.e("v_pk_fma_f32 %s, %s, %s, v[10:11]" % (vr(P[i], 2), vr(P[i], 2), sr(sCC, 2)))
        for i in range(4):
            a.e("v_pk_mul_f32 %s, %s, %s" % (vr(P[i], 2), vr(P[i], 2), vr(r + 2 * i, 2)))
        for i in range(8):
            a.e("v_exp_f32 %s, %s" % (vr(12 + i), vr(12 + i)))
        for i in range(4):
            a.e("v_pk_mul_f32 %s, %s, %s" % (vr(r + 2 * i, 2), vr(r + 2 * i, 2), vr(r + 8 + 2 * i, 2)))
        for i in range(4):
            a.e("v_pk_add_f32 %s, %s, 1.0 op_sel_hi:[1,0]" % (vr(P[i], 2), vr(P[i], 2)))
        for i in range(8):
            a.e("v_rcp_f32 %s, %s" % (vr(12 + i), vr(12 + i)))
        a.e("s_nop 0")
        for i in range(4):
            a.e("v_pk_mul_f32 %s, %s, %s" % (vr(r + 2 * i, 2), vr(r + 2 * i, 2), vr(P[i], 2)))
        for i in range(4):
            a.e("v_cvt_pk_bf16_f32 %s, %s, %s" % (vr(r + 8 + i), vr(r + 2 * i), vr(r + 2 * i + 1)))
        a.e("buffer_store_dwordx4 %s, %s, %s, %s offen offset:%d" % (vr(r + 8, 4), vr(vSt), sr(SRD_O, 4), sr(sT0), o & 4095))


WS_STAMP = 128 << 20


def stamp(a, opt, idx, srd=SRD_O, tmp=(vT[0], vT[1], vT[3])):
    if not opt.get('stamp'):
        return
    a.e("s_memtime s[4:5]")
    a.e("s_memrealtime s[6:7]")
    a.e("s_lshl_b32 s8, s2, 8")
    a.e("s_add_u32 s8, s8, %d" % (WS_STAMP + idx * 16))
    a.e("s_waitcnt lgkmcnt(0)")
    l = a.newlabel("st")
    a.e("s_cmp_lg_u32 %s, 0" % sr(sWave))
    a.e("s_cbranch_scc1 %s" % l)
    a.e("s_mov_b64 s[10:11], exec")
    a.e("s_mov_b64 exec, 1")
    a.e("v_mov_b32 v28, s4")
    a.e("v_mov_b32 v29, s5")
    a.e("v_mov_b32 v30, s6")
    a.e("v_mov_b32 v31, s7")
    a.e("v_mov_b32 v27, 0")
    a.e("buffer_store_dwordx4 v[28:31], v27, %s, s8 offen" % sr(srd, 4))
    a.e("s_mov_b64 exec, s[10:11]")
    a.label(l)


def stamp_ts(a, opt):
    if not opt.get('ts'):
        return
    l = a.newlabel("ts")
    a.e("s_cmp_lg_u32 %s, 0" % sr(sWave))
    a.e("s_cbranch_scc1 %s" % l)
    a.e("s_memtime s[4:5]")
    a.e("s_memrealtime s[6:7]")
    a.e("s_waitcnt lgkmcnt(0)")
    a.e("s_mov_b64 s[10:11], exec")
    a.e("s_mov_b64 exec, 1")
    for i in range(4):
        a.e("v_mov_b32 v%d, s%d" % (28 + i, 4 + i))
    a.e("v_mov_b32 v27, 0")
    a.e("buffer_store_dwordx4 v[28:31], v27, %s, s9 offen" % sr(SRD_O, 4))
    a.e("s_add_u32 s9, s9, 16")
    a.e("s_mov_b64 exec, s[10:11]")
    a.label(l)


def gen_l1(a, name, opt):
    kernel_header(a, name)
    HACK.update(opt)
    e = a.e
    e("s_cmp_ge_u32 s2, 256")
    e("s_cbranch_scc1 %s_end" % name)
    e("s_load_dwordx16 s[16:31], s[0:1], 0")
    e("s_load_dwordx8 s[32:39], s[0:1], 64")
    e("s_load_dwordx4 s[40:43], s[0:1], 96")
    e("v_lshrrev_b32 v27, 6, v0")
    e("v_and_b32 v0, 63, v0")
    e("v_readfirstlane_b32 %s, v27" % sr(sWave))
    e("s_and_b32 %s, s2, 7" % sr(sT0))
    e("s_lshr_b32 %s, s2, 3" % sr(sT1))
    e("s_and_b32 %s, %s, 1" % (sr(sT2), sr(sT0)))
    e("s_lshl_b32 %s, %s, 2" % (sr(sT2), sr(sT2)))
    e("s_and_b32 %s, %s, 3" % (sr(sT3), sr(sT1)))
    e("s_add_u32 %s, %s, %s" % (sr(sTm), sr(sT2), sr(sT3)))
    e("s_lshr_b32 %s, %s, 1" % (sr(sT0), sr(sT0)))
    e("s_lshr_b32 %s, %s, 2" % (sr(sT2), sr(sT1)))
    e("s_lshl_b32 %s, %s, 3" % (sr(sT3), sr(sT0)))
    e("s_add_u32 %s, %s, %s" % (sr(sTn7), sr(sT3), sr(sT2)))
    e("s_and_b32 %s, %s, 3" % (sr(sT2), sr(sT2)))
    e("s_lshl_b32 %s, %s, 2" % (sr(sT3), sr(sT0)))
    e("s_add_u32 %s, %s, %s" % (sr(sTn8), sr(sT3), sr(sT2)))
    e("s_lshr_b32 %s, %s, 4" % (sr(sJob), sr(sT1)))
    e("s_mov_b32 %s, 0x20000" % sr(SRD_X + 3))
    e("s_mov_b32 %s, 0x20000" % sr(SRD_W + 3))
    e("s_mov_b32 %s, 0x20000" % sr(SRD_O + 3))
    e("s_mov_b32 %s, %d" % (sr(SRD_O + 2), WS_SIZE))
    e("s_mov_b32 %s, 8192" % sr(sCp))
    e("s_mov_b32 %s, -16384" % sr(sCm))
    e("s_mov_b32 %s, 0" % sr(sRslot))
    e("s_mul_i32 %s, %s, 24576" % (sr(sXbeg), sr(sWave)))
    e("s_add_u32 %s, %s, %d" % (sr(sXbeg), sr(sXbeg), XBASE))
    e("s_add_u32 %s, %s, 24576" % (sr(sXend), sr(sXbeg)))
    e("s_mov_b32 %s, %s" % (sr(sXdst), sr(sXbeg)))
    e("v_and_b32 v27, 31, v0")
    e("v_lshrrev_b32 v28, 5, v0")
    e("v_bfe_u32 v29, v0, 1, 3")
    e("v_lshlrev_b32 v30, 7, v27")
    e("v_add_u32 v30, %s, v30" % sr(sXbeg))
    for s in range(4):
        e("v_add_u32 v31, %d, v28" % (2 * s))
        e("v_xor_b32 v31, v31, v29")
        e("v_lshl_add_u32 %s, v31, 4, v30" % vr(vXr[s]))
    e("v_bfe_u32 v27, v0, 2, 2")
    e("v_bfe_u32 v29, v0, 4, 1")
    e("v_and_b32 v30, 3, v0")
    e("v_lshl_add_u32 v31, v28, 3, v27")
    e("v_lshlrev_b32 v30, 3, v30")
    e("v_mul_u32_u24 %s, 224, v31" % vr(vWr7))
    e("v_mul_u32_u24 v26, 7296, v29")
    e("v_add3_u32 %s, %s, v26, v30" % (vr(vWr7), vr(vWr7)))
    e("v_lshlrev_b32 v31, 9, v31")
    e("v_lshl_add_u32 v31, v29, 5, v31")
    e("v_add_u32 v31, v31, v30")
    for q in range(4):
        e("v_xor_b32 v30, %d, v27" % q)
        e("v_lshl_add_u32 %s, v30, 6, v31" % vr(vWr8[q]))
    e("v_lshrrev_b32 v27, 3, v0")
    e("s_lshl_b32 %s, %s, 6" % (sr(sT0), sr(sWave)))
    e("v_add_u32 v27, %s, v27" % sr(sT0))
    e("v_and_b32 v28, 7, v0")
    e("v_lshrrev_b32 v29, 4, v0")
    e("v_xor_b32 v28, v28, v29")
    e("v_xor_b32 v29, 4, v28")
    e("s_movk_i32 %s, 11" % sr(sT1))
    e("s_sub_u32 %s, %s, %s" % (sr(sT1), sr(sT1), sr(sJob)))
    for j in range(4):
        ch = 28 if (j & 1) == 0 else 29
        e("v_add_u32 v30, %d, v27" % (8 * j))
        e("v_lshlrev_b32 v31, 11, v30")
        e("v_lshl_add_u32 v31, v%d, 4, v31" % ch)
        e("v_subrev_u32 %s, %d, v31" % (vr(vXdN[j]), 1024 * j))
        e("v_lshlrev_b32 v31, %s, v30" % sr(sT1))
        e("v_lshl_add_u32 v31, v%d, 4, v31" % ch)
        e("v_subrev_u32 %s, %d, v31" % (vr(vXd[j]), 1024 * j))
    e("v_lshrrev_b32 v27, 5, v0")
    e("s_lshl_b32 %s, %s, 3" % (sr(sT0), sr(sWave)))
    e("v_bfe_u32 v28, v0, 2, 3")
    e("v_and_b32 v29, 3, v0")
    e("v_lshlrev_b32 v29, 4, v29")
    for j in range(4):
        e("v_add_u32 v30, %d, v27" % (2 * j))
        e("v_and_b32 v31, 3, v30")
        e("v_xor_b32 v31, v31, v28")
        e("v_add_u32 v30, %s, v30" % sr(sT0))
        e("v_lshlrev_b32 v30, 13, v30")
        e("v_lshl_add_u32 v30, v31, 6, v30")
        e("v_add_u32 v30, v30, v29")
        e("v_subrev_u32 %s, %d, v30" % (vr(vWd[j]), 1024 * j))
    e("s_and_b32 %s, %s, 1" % (sr(sT0), sr(sWave)))
    e("s_lshl_b32 %s, %s, 8" % (sr(sT1), sr(sT0)))
    e("v_add_u32 v27, %s, v0" % sr(sT1))
    for j in range(4):
        e("v_add_u32 v28, %d, v27" % (64 * j))
        e("v_mul_u32_u24 v29, 4682, v28")
        e("v_lshrrev_b32 v29, 16, v29")
        e("v_mul_u32_u24 v30, 14, v29")
        e("v_sub_u32 v30, v28, v30")
        e("v_mul_u32_u24 v29, 7168, v29")
        e("v_lshl_add_u32 v29, v30, 4, v29")
        e("v_subrev_u32 %s, %d, v29" % (vr(vWdN[j]), 1024 * j))
    e("s_lshl_b32 %s, %s, 30" % (sr(sT1), sr(sT0)))
    e("v_or_b32 %s, %s, %s" % (vr(vWdN[3]), sr(sT1), vr(vWdN[3])))
    e("s_lshr_b32 %s, %s, 1" % (sr(sT1), sr(sWave)))
    e("s_mul_i32 %s, %s, 7296" % (sr(sT2), sr(sT1)))
    e("s_lshl_b32 %s, %s, 12" % (sr(sT3), sr(sT0)))
    e("s_add_u32 s98, %s, %s" % (sr(sT2), sr(sT3)))
    e("s_cmp_eq_u32 %s, 0" % sr(sT0))
    e("s_cselect_b32 s99, s98, %d" % (14464 - 3072))
    e("s_lshl_b32 %s, %s, 12" % (sr(sWm0a), sr(sWave)))
    e("s_mov_b32 %s, %s" % (sr(sWm0b), sr(sWm0a)))
    e("s_waitcnt lgkmcnt(0)")
    e("s_mov_b32 %s, %s" % (sr(SRD_O), sr(S_WS)))
    e("s_mov_b32 %s, %s" % (sr(SRD_O + 1), sr(S_WS + 1)))
    stamp(a, opt, 0)
    e("s_lshl_b32 s9, s2, 10")
    e("s_add_u32 s9, s9, %d" % (WS_STAMP + (1 << 20)))
    stamp_ts(a, opt)
    e("s_mov_b32 %s, %s" % (sr(SRD_X), sr(S_X)))
    e("s_mov_b32 %s, %s" % (sr(SRD_X + 1), sr(S_X + 1)))
    e("s_mov_b32 %s, %d" % (sr(SRD_X + 2), 2048 * 1024 * 2))
    e("s_mov_b32 %s, %s" % (sr(SRD_W), sr(S_GW)))
    e("s_mov_b32 %s, %s" % (sr(SRD_W + 1), sr(S_GW + 1)))
    e("s_mov_b32 %s, 2048" % sr(SRD_W + 2))
    e("s_lshl_b32 %s, s2, 3" % sr(sT0))
    e("s_lshl_b32 %s, %s, 1" % (sr(sT1), sr(sWave)))
    e("s_add_u32 %s, %s, %s" % (sr(sT0), sr(sT0), sr(sT1)))
    e("s_lshl_b32 %s, %s, 11" % (sr(sT1), sr(sT0)))
    e("v_lshlrev_b32 v27, 5, v0")
    e("buffer_load_dwordx4 v[32:35], v27, %s, %s offen" % (sr(SRD_X, 4), sr(sT1)))
    e("buffer_load_dwordx4 v[36:39], v27, %s, %s offen offset:16" % (sr(SRD_X, 4), sr(sT1)))
    e("buffer_load_dwordx4 v[40:43], v27, %s, %s offen offset:2048" % (sr(SRD_X, 4), sr(sT1)))
    e("buffer_load_dwordx4 v[44:47], v27, %s, %s offen offset:2064" % (sr(SRD_X, 4), sr(sT1)))
    e("buffer_load_dwordx4 v[48:51], v27, %s, 0 offen" % sr(SRD_W, 4))
    e("buffer_load_dwordx4 v[52:55], v27, %s, 0 offen offset:16" % sr(SRD_W, 4))
    e("s_lshl_b32 s100, %s, 2" % sr(sT0))
    e("s_add_u32 s100, s100, %d" % WS_G)
    e("s_cmp_eq_u32 %s, 0" % sr(sJob))
    e("s_cbranch_scc0 %s_setB" % name)
    e("s_lshl_b32 %s, %s, 19" % (sr(sXk), sr(sTm)))
    e("s_mov_b32 %s, 65536" % sr(sXrow32))
    e("s_mov_b32 %s, %s" % (sr(SRD_W), sr(S_WQ)))
    e("s_mov_b32 %s, %s" % (sr(SRD_W + 1), sr(S_WQ + 1)))
    e("s_mov_b32 %s, %d" % (sr(SRD_W + 2), 1024 * 4096 * 2))
    e("s_mov_b32 %s, 8" % sr(sIter))
    e("s_branch %s_setC" % name)
    a.label(name + "_setB")
    e("s_mov_b32 %s, %s" % (sr(SRD_X), sr(S_CKV)))
    e("s_mov_b32 %s, %s" % (sr(SRD_X + 1), sr(S_CKV + 1)))
    e("s_mov_b32 %s, %d" % (sr(SRD_X + 2), 2048 * 512 * 2))
    e("s_lshl_b32 %s, %s, 18" % (sr(sXk), sr(sTm)))
    e("s_mov_b32 %s, 32768" % sr(sXrow32))
    e("s_mov_b32 %s, %s" % (sr(SRD_W), sr(S_WUK)))
    e("s_mov_b32 %s, %s" % (sr(SRD_W + 1), sr(S_WUK + 1)))
    e("s_mov_b32 %s, %d" % (sr(SRD_W + 2), 512 * 4096 * 2))
    e("s_mov_b32 %s, 4" % sr(sIter))
    a.label(name + "_setC")
    e("s_lshl_b32 %s, %s, 9" % (sr(sWk), sr(sTn8)))
    e("s_mov_b32 %s, %d" % (sr(sWstep), 32 * 8192))

    def set_next_gu():
        e("s_mov_b32 %s, %s" % (sr(sNXlo), sr(S_X)))
        e("s_mov_b32 %s, %s" % (sr(sNXhi), sr(S_X + 1)))
        e("s_mov_b32 %s, %d" % (sr(sNXn), 2048 * 1024 * 2))
        e("s_lshl_b32 %s, %s, 19" % (sr(sNXk), sr(sTm)))
        e("s_mov_b32 %s, 65536" % sr(sNXrow32))
        e("s_cmp_lt_u32 %s, 2" % sr(sWave))
        e("s_cselect_b32 %s, %s, %s" % (sr(sNWlo), sr(S_WG), sr(S_WU)))
        e("s_cselect_b32 %s, %s, %s" % (sr(sNWhi), sr(S_WG + 1), sr(S_WU + 1)))
        e("s_mov_b32 %s, %d" % (sr(sNWn), 1024 * 3584 * 2))
        e("s_mul_i32 %s, %s, 224" % (sr(sNWk), sr(sTn7)))
        e("s_mov_b32 %s, %d" % (sr(sNWstep), 32 * 7168))
        e("s_mov_b32 %s, s98" % sr(sNm0a))
        e("s_mov_b32 %s, s99" % sr(sNm0b))

    def set_next_v():
        e("s_mov_b32 %s, %s" % (sr(sNXlo), sr(S_CKV)))
        e("s_mov_b32 %s, %s" % (sr(sNXhi), sr(S_CKV + 1)))
        e("s_mov_b32 %s, %d" % (sr(sNXn), 2048 * 512 * 2))
        e("s_lshl_b32 %s, %s, 18" % (sr(sNXk), sr(sTm)))
        e("s_mov_b32 %s, 32768" % sr(sNXrow32))
        e("s_mov_b32 %s, %s" % (sr(sNWlo), sr(S_WUV)))
        e("s_mov_b32 %s, %s" % (sr(sNWhi), sr(S_WUV + 1)))
        e("s_mov_b32 %s, %d" % (sr(sNWn), 512 * 4096 * 2))
        e("s_lshl_b32 %s, %s, 9" % (sr(sNWk), sr(sTn8)))
        e("s_mov_b32 %s, %d" % (sr(sNWstep), 32 * 8192))
        e("s_mov_b32 %s, %s" % (sr(sNm0a), sr(sWm0a)))
        e("s_mov_b32 %s, %s" % (sr(sNm0b), sr(sWm0b)))

    def set_next_null():
        e("s_mov_b32 %s, 0" % sr(sNXn))
        e("s_mov_b32 %s, 0" % sr(sNWn))

    for x in flat_dma(dmaW(0)) + flat_dma(dmaX(0)) + flat_dma(dmaX(1)) + flat_dma(dmaW(1)) + \
            flat_dma(dmaX(0)) + flat_dma(dmaW(2)) + flat_dma(dmaX(1)):
        e(x)
    e("s_cmp_eq_u32 %s, 0" % sr(sJob))
    e("s_cbranch_scc0 %s_nB" % name)
    set_next_gu()
    e("s_branch %s_nC" % name)
    a.label(name + "_nB")
    set_next_v()
    a.label(name + "_nC")
    e("s_waitcnt vmcnt(28)")
    e("v_mov_b32 v28, 0")
    e("v_mov_b32 v29, 0")
    for i in range(8):
        e("v_dot2_f32_bf16 v28, v%d, v%d, v28" % (32 + i, 48 + i))
        e("v_dot2_f32_bf16 v29, v%d, v%d, v29" % (40 + i, 48 + i))
    e("s_nop 2")
    for mode in ("row_shr:1", "row_shr:2", "row_shr:4", "row_shr:8", "row_bcast:15 row_mask:0xa", "row_bcast:31 row_mask:0xc"):
        rm = "" if "row_mask" in mode else " row_mask:0xf"
        e("v_add_f32_dpp v28, v28, v28 %s%s bank_mask:0xf" % (mode, rm))
        e("v_add_f32_dpp v29, v29, v29 %s%s bank_mask:0xf" % (mode, rm))
        e("s_nop 0")
    e("v_mul_f32 v28, %s, v28" % f32(-1.4426950408889634))
    e("v_mul_f32 v29, %s, v29" % f32(-1.4426950408889634))
    e("v_exp_f32 v28, v28")
    e("v_exp_f32 v29, v29")
    e("s_nop 0")
    e("v_add_f32 v28, 1.0, v28")
    e("v_add_f32 v29, 1.0, v29")
    e("v_rcp_f32 v28, v28")
    e("v_rcp_f32 v29, v29")
    e("v_cmp_eq_u32 vcc, 63, v0")
    e("v_mov_b32 v30, 0")
    e("s_and_saveexec_b64 s[76:77], vcc")
    e("buffer_store_dwordx2 v[28:29], v30, %s, s100 offen" % sr(SRD_O, 4))
    e("s_mov_b64 exec, s[76:77]")
    e("s_lshl_b32 %s, %s, 14" % (sr(sT0), sr(sWave)))
    e("v_lshlrev_b32 %s, 4, v0" % vr(vSt))
    e("v_add_u32 %s, %s, %s" % (vr(vSt), sr(sT0), vr(vSt)))

    def vsw_k(a, which):
        if which == 'W':
            l = a.newlabel("vsw")
            a.e("s_cmp_lg_u32 %s, 0" % sr(sJob))
            a.e("s_cbranch_scc1 %s" % l)
            for j in range(4):
                a.e("v_mov_b32 %s, %s" % (vr(vWd[j]), vr(vWdN[j])))
            a.label(l)

    def vsw_v(a, which):
        for j in range(4):
            if which == 'W':
                a.e("v_mov_b32 %s, %s" % (vr(vWd[j]), vr(vWdN[j])))
            else:
                a.e("v_mov_b32 %s, %s" % (vr(vXd[j]), vr(vXdN[j])))

    def vsw_g(a, which):
        pass

    interval(a, 'K', 0, opt, 'A', kindA='none')
    stamp(a, opt, 1)
    interval(a, 'K', 0, opt, 'B', zeroB=True)
    e("s_branch %s_k_entry" % name)
    loop(a, 'K', name + "_k", opt, vsw_k)
    stamp(a, opt, 2)
    e("s_cmp_lg_u32 %s, 0" % sr(sJob))
    e("s_cbranch_scc1 %s_k2v" % name)
    interval(a, 'G', 0, opt, 'A', kindA='K')
    qs = 1.4426950408889634 / (128.0 ** 0.5)
    e("s_mov_b32 %s, %s" % (sr(sCA), f32(qs)))
    e("s_mov_b32 %s, %s" % (sr(sCA + 1), f32(qs)))
    e("s_lshl_b32 %s, %s, 20" % (sr(sOb), sr(sTn8)))
    e("s_lshl_b32 %s, %s, 16" % (sr(sT0), sr(sTm)))
    e("s_add_u32 %s, %s, %s" % (sr(sOb), sr(sOb), sr(sT0)))
    if WS_Q:
        e("s_add_u32 %s, %s, %d" % (sr(sOb), sr(sOb), WS_Q))
    epilogue_kqv(a, 'K', scale=sCA)
    e("s_branch %s_gu_start" % name)
    a.label(name + "_k2v")
    interval(a, 'V', 0, opt, 'A', kindA='K')
    e("s_lshl_b32 %s, %s, 20" % (sr(sOb), sr(sTn8)))
    e("s_lshl_b32 %s, %s, 16" % (sr(sT0), sr(sTm)))
    e("s_add_u32 %s, %s, %s" % (sr(sOb), sr(sOb), sr(sT0)))
    e("s_add_u32 %s, %s, %d" % (sr(sOb), sr(sOb), WS_K))
    epilogue_kqv(a, 'K')
    stamp(a, opt, 3)
    set_next_gu()
    e("s_mov_b32 %s, 4" % sr(sIter))
    interval(a, 'V', 0, opt, 'B', zeroB=True)
    e("s_branch %s_v_entry" % name)
    loop(a, 'V', name + "_v", opt, vsw_v)
    stamp(a, opt, 4)
    interval(a, 'G', 0, opt, 'A', kindA='V')
    e("s_add_u32 %s, %s, %d" % (sr(sOb), sr(sOb), WS_V - WS_K))
    epilogue_kqv(a, 'V')
    a.label(name + "_gu_start")
    stamp(a, opt, 5)
    set_next_null()
    e("s_mov_b32 %s, 8" % sr(sIter))
    interval(a, 'G', 0, opt, 'B', zeroB=True)
    e("s_branch %s_g_entry" % name)
    loop(a, 'G', name + "_g", opt, vsw_g)
    stamp(a, opt, 6)
    e("s_waitcnt lgkmcnt(0)")
    for m in mfmas('G', 1):
        e(m)
    e("s_mul_i32 %s, %s, %d" % (sr(sOb), sr(sTm), 8 * 480 * 1024))
    e("s_mul_i32 %s, %s, 7168" % (sr(sT0), sr(sTn7)))
    e("s_add_u32 %s, %s, %s" % (sr(sOb), sr(sOb), sr(sT0)))
    e("s_add_u32 %s, %s, %d" % (sr(sOb), sr(sOb), WS_A3 + 256 * 1024))
    e("s_mul_i32 %s, %s, %d" % (sr(sT0), sr(sWave), 2 * 480 * 1024))
    e("v_lshlrev_b32 %s, 4, v0" % vr(vSt))
    e("v_add_u32 %s, %s, %s" % (vr(vSt), sr(sT0), vr(vSt)))
    epilogue_gu(a)
    stamp(a, opt, 7)
    if opt.get('stamp'):
        e("s_waitcnt vmcnt(0)")
    stamp(a, opt, 8)
    a.label(name + "_end")
    e("s_endpgm")
    return kernel_desc(name, 368, 102, 256)
```

```python
from asmlib import *
from l1 import WS_Q, WS_K, WS_V, WS_A3, WS_G, WS_SIZE, f32, WS_STAMP

LDS = 163840
NSLOT = 5

S_WS = 4
SRD = 8
sWave, sHead, sPair = 12, 13, 14
sQb = 15
sN = 16
sT = 17
sThr = 18
sLoop = 19
sRd = 20
sWr = 21
sWrEnd = 22
sDT, sDNT = 23, 24
sDK, sDV = 25, 26
sKb, sVb = 27, 28
sNTB = 29
sT0, sT1, sT2 = 30, 31, 32
sBlk = 33
sMaskB = 34
sTHR = 35
sWrBeg = 36
sNEG = 37

vLane16 = 1
vDma = 2
vRd = 3
vDl = 4
vNegm = 5
vL = 6
vLs = 7
vG = 8
vTmp = [10, 11, 12, 13, 14, 15]
vE = [16, 17, 18, 19, 20, 21, 22, 23]
vC = 32
vS = [48, 64]
vP = [80, 88]
vO = 96
aQ = 0
aQ2 = 32
aK = 64
aV = 96


def stamp(a, opt, idx):
    if not opt.get('stamp'):
        return
    a.e("s_memtime s[40:41]")
    a.e("s_memrealtime s[42:43]")
    a.e("s_lshl_b32 s44, s2, 8")
    a.e("s_add_u32 s44, s44, %d" % (WS_STAMP + idx * 16))
    a.e("s_waitcnt lgkmcnt(0)")
    l = a.newlabel("st")
    a.e("s_cmp_lg_u32 %s, 0" % sr(sWave))
    a.e("s_cbranch_scc1 %s" % l)
    a.e("s_mov_b64 s[46:47], exec")
    a.e("s_mov_b64 exec, 1")
    for i in range(4):
        a.e("v_mov_b32 v%d, s%d" % (28 + i, 40 + i))
    a.e("v_mov_b32 v27, 0")
    a.e("buffer_store_dwordx4 v[28:31], v27, %s, s44 offen" % sr(SRD, 4))
    a.e("s_mov_b64 exec, s[46:47]")
    a.label(l)


def stamp_ts(a, opt):
    if not opt.get('ts'):
        return
    l = a.newlabel("ts")
    a.e("s_cmp_lg_u32 %s, 0" % sr(sWave))
    a.e("s_cbranch_scc1 %s" % l)
    a.e("s_memtime s[40:41]")
    a.e("s_memrealtime s[42:43]")
    a.e("s_waitcnt lgkmcnt(0)")
    a.e("s_mov_b64 s[46:47], exec")
    a.e("s_mov_b64 exec, 1")
    for i in range(4):
        a.e("v_mov_b32 v%d, s%d" % (28 + i, 40 + i))
    a.e("v_mov_b32 v27, 0")
    a.e("buffer_store_dwordx4 v[28:31], v27, %s, s45 offen" % sr(SRD, 4))
    a.e("s_add_u32 s45, s45, 16")
    a.e("s_mov_b64 exec, s[46:47]")
    a.label(l)


def qk_mfmas(par):
    out = []
    for ks in range(8):
        c = vr(vC, 16) if ks == 0 else vr(vS[par], 16)
        out.append("v_mfma_f32_32x32x16_bf16 %s, %s, %s, %s" % (vr(vS[par], 16), ar(aK + 4 * ks, 4), ar(aQ + 4 * ks, 4), c))
    return out


def pv_mfmas(par):
    out = []
    for g in range(2):
        for db in range(4):
            o = vr(vO + 16 * db, 16)
            out.append("v_mfma_f32_32x32x16_bf16 %s, %s, %s, %s" % (o, ar(aV + 4 * (g * 4 + db), 4), vr(vP[par] + 4 * g, 4), o))
    return out


def k_reads(sb):
    return ["ds_read_b128 %s, %s offset:%d" % (ar(aK + 4 * ks, 4), vr(vRd), sb * 8192 + ks * 1024) for ks in range(8)]


def v_reads(sb):
    return ["ds_read_b128 %s, %s offset:%d" % (ar(aV + 4 * j, 4), vr(vRd), 16384 + sb * 8192 + j * 1024) for j in range(8)]


def sm_items(par):
    it = []
    S = vS[par]
    P = vP[par]
    pend = []
    for r in range(16):
        e = vE[r % 8]
        it.append((8, "v_exp_f32 %s, %s" % (vr(e), vr(S + r))))
        it.extend(pend)
        pend = []
        if r == 1:
            pend.append((4, "v_add_f32 %s, %s, %s" % (vr(vLs), vr(vE[0]), vr(vE[1]))))
        elif r > 1:
            pend.append((4, "v_add_f32 %s, %s, %s" % (vr(vLs), vr(vLs), vr(e))))
        if r & 1:
            pend.append((4, "v_cvt_pk_bf16_f32 %s, %s, %s" % (vr(P + (r >> 1)), vr(vE[(r - 1) % 8]), vr(e))))
    pend.insert(0, (4, "s_nop 0"))
    it.extend(pend)
    it.append((4, "v_cmp_lt_f32 vcc, %s, %s" % (sr(sTHR), vr(vLs))))
    return it


def dma_items(which):
    it = []
    if which == 'K':
        it.append("s_mov_b32 m0, %s" % sr(sWr))
    else:
        it.append("s_add_u32 m0, %s, 16384" % sr(sWr))
    so = sDK if which == 'K' else sDV
    d = ["buffer_load_dwordx4 %s, %s, %s offen offset:%d lds" % (vr(vDma), sr(SRD, 4), sr(so), j * 1024) for j in range(4)]
    return it, d


def dma_advance():
    return [
        "s_add_u32 %s, %s, 32768" % (sr(sWr), sr(sWr)),
        "s_cmp_eq_u32 %s, %s" % (sr(sWr), sr(sWrEnd)),
        "s_cselect_b32 %s, %s, %s" % (sr(sWr), sr(sWrBeg), sr(sWr)),
        "s_add_u32 %s, %s, 1" % (sr(sDT), sr(sDT)),
        "s_cmp_gt_u32 %s, %s" % (sr(sDT), sr(sDNT)),
        "s_cselect_b32 %s, 0, %s" % (sr(sDT), sr(sDT)),
        "s_cselect_b32 %s, %s, %s" % (sr(sDNT), sr(sNTB), sr(sDNT)),
        "s_sub_u32 %s, %s, 1" % (sr(sT0), sr(sDNT)),
        "s_min_u32 %s, %s, %s" % (sr(sT0), sr(sT0), sr(sDT)),
        "s_lshl_b32 %s, %s, 14" % (sr(sT0), sr(sT0)),
        "s_add_u32 %s, %s, %s" % (sr(sDK), sr(sT0), sr(sKb)),
        "s_max_u32 %s, %s, 1" % (sr(sT0), sr(sDT)),
        "s_lshl_b32 %s, %s, 14" % (sr(sT0), sr(sT0)),
        "s_add_u32 %s, %s, %s" % (sr(sDV), sr(sT0), sr(sVb)),
    ]


def rd_advance():
    return [
        "s_add_u32 %s, %s, 32768" % (sr(sRd), sr(sRd)),
        "s_cmp_eq_u32 %s, %d" % (sr(sRd), NSLOT * 32768),
        "s_cselect_b32 %s, 0, %s" % (sr(sRd), sr(sRd)),
    ]


def stage_sched(par, qk=True, pv=True, sm=True, kr=True, vr_=True, addl=True, first_half_extra=None):
    mf = (qk_mfmas(par ^ 1) if qk else [None] * 8) + (pv_mfmas(par ^ 1) if pv else [None] * 8)
    fill = {g: [] for g in range(-1, 16)}
    used = {g: 0 for g in range(-1, 16)}

    def put(g, s, c=4):
        fill[g].append(s)
        used[g] += c
    pre = {g: [] for g in range(16)}
    vsb = 1 if par == 0 else 0
    ksb = 0 if par == 0 else 1
    if vr_:
        for j, r in enumerate(v_reads(vsb)):
            put(j, r)
    if kr:
        for j, r in enumerate(k_reads(ksb)):
            put(8 + j, r)
    if qk:
        pre[0].append("s_waitcnt lgkmcnt(4)")
        pre[4].append("s_waitcnt lgkmcnt(%d)" % (4 if vr_ else 0))
    if pv:
        pre[8].append("s_waitcnt lgkmcnt(4)")
        pre[12].append("s_waitcnt lgkmcnt(%d)" % (4 if kr else 0))
    for g in (4, 8, 12):
        if pre[g]:
            used[g - 1] += 4
    if addl:
        put(0, "v_add_f32 %s, %s, %s" % (vr(vL), vr(vL), vr(vLs)))
    if par == 0:
        m0, d = dma_items('K')
        put(8, m0[0])
        for j in range(4):
            put(9 + 2 * j, d[j])
    else:
        m0, d = dma_items('V')
        put(0, m0[0])
        for j in range(4):
            put(1 + 2 * j, d[j])
        adv = dma_advance()
        put(9, adv[0]); put(9, adv[1]); put(9, adv[2])
        put(11, adv[3]); put(11, adv[4]); put(11, adv[5]); put(11, adv[6])
        put(13, adv[7]); put(13, adv[8]); put(13, adv[9]); put(13, adv[10])
        put(14, adv[11]); put(14, adv[12]); put(14, adv[13])
    if par == 0:
        for x in rd_advance():
            put(6, x)
    if sm:
        g = 0
        for c, s in sm_items(par):
            while g < 15 and used[g] + c > 24:
                g += 1
            put(g, s, c)
    put(15, "s_cmp_ge_u32 %s, %s" % (sr(sT), sr(sThr)))
    return mf, fill, pre


HACK = {}


def emit_half(a, sched, lo, hi):
    mf, fill, pre = sched
    for g in range(lo, hi):
        for s in pre[g]:
            a.e(s)
        if mf[g]:
            a.e(mf[g])
        for s in fill[g]:
            if HACK.get('nodma') and s.startswith('buffer_load'):
                continue
            if HACK.get('noread') and s.startswith('ds_read'):
                continue
            if HACK.get('noexp') and s.startswith('v_exp'):
                continue
            if HACK.get('nosm_after') and lo == 8 and g < 8 + HACK['nosm_after'] and (s.startswith('v_exp') or s.startswith('v_add_f32') or s.startswith('v_cvt')):
                continue
            if HACK.get('nosm_before') and hi == 8 and (s.startswith('v_exp') or s.startswith('v_add_f32') or s.startswith('v_cvt')):
                continue
            if HACK.get('nosm') and (s.startswith('v_exp') or s.startswith('v_add_f32') or s.startswith('v_cvt')):
                continue
            a.e(s)


def barrier(a):
    a.e("s_waitcnt vmcnt(16)")
    if not HACK.get('nobar'):
        a.e("s_barrier")
    a.e("v_add_u32 %s, %s, %s" % (vr(vRd), sr(sRd), vr(vLane16)))


def maskprep(a):
    e = a.e
    e("s_lshl_b32 %s, %s, 5" % (sr(sT1), sr(sT1)))
    e("s_sub_i32 %s, %s, %s" % (sr(sT1), sr(sMaskB), sr(sT1)))
    e("v_add_u32 %s, %s, %s" % (vr(vTmp[0]), sr(sT1), vr(vDl)))
    e("v_mov_b32 %s, %s" % (vr(vTmp[1]), sr(sNEG)))
    for r in range(16):
        kc = 8 * (r >> 2) + (r & 3)
        sp = 48 + 2 * (r & 3)
        e("v_cmp_gt_i32 %s, %d, %s" % (sr(sp, 2), kc, vr(vTmp[0])))
        if (r & 3) == 3:
            for q in range(4):
                rr = r - 3 + q
                e("v_cndmask_b32 %s, %s, %s, %s" % (vr(vC + rr), vr(vNegm), vr(vTmp[1]), sr(48 + 2 * q, 2)))


def stage_end(a, par, name, handlers):
    ret = a.newlabel(name + "_ret")
    sp = a.newlabel(name + "_sp")
    sl = a.newlabel(name + "_sl")
    a.e("s_cbranch_scc1 %s" % sp)
    a.e("s_cbranch_vccnz %s" % sl)
    a.label(ret)
    a.e("s_add_u32 %s, %s, 1" % (sr(sT), sr(sT)))
    handlers.append((par, sp, sl, ret))


def emit_handler(a, par, sp, sl, ret):
    e = a.e
    S = vS[par]
    Sn = vS[par ^ 1]
    P = vP[par]
    mask = a.newlabel("hmask")
    common = a.newlabel("hcommon")
    init = a.newlabel("hinit")
    a.label(sp)
    e("s_cmp_eq_u32 %s, -1" % sr(sT))
    e("s_cbranch_scc1 %s" % sl)
    e("s_cbranch_vccz %s" % mask)
    a.label(sl)
    t0, t1, t2, t3 = vTmp[0], vTmp[1], vTmp[2], vTmp[3]
    e("v_max3_f32 %s, %s, %s, %s" % (vr(t0), vr(S), vr(S + 1), vr(S + 2)))
    for r in range(3, 15, 2):
        e("v_max3_f32 %s, %s, %s, %s" % (vr(t0), vr(t0), vr(S + r), vr(S + r + 1)))
    e("v_max_f32 %s, %s, %s" % (vr(t0), vr(t0), vr(S + 15)))
    e("v_mov_b32 %s, %s" % (vr(t1), vr(t0)))
    e("s_nop 1")
    e("v_permlane32_swap_b32 %s, %s" % (vr(t0), vr(t1)))
    e("s_nop 1")
    e("v_max_f32 %s, %s, %s" % (vr(t0), vr(t0), vr(t1)))
    e("s_cmp_eq_u32 %s, -1" % sr(sT))
    e("s_cbranch_scc1 %s" % common)
    e("v_max_f32 %s, 0, %s" % (vr(t0), vr(t0)))
    e("v_exp_f32 %s, -%s" % (vr(t1), vr(t0)))
    e("s_nop 0")
    e("v_mul_f32 %s, %s, %s" % (vr(vL), vr(vL), vr(t1)))
    for i in range(64):
        e("v_mul_f32 %s, %s, %s" % (vr(vO + i), vr(vO + i), vr(t1)))
    a.label(common)
    e("v_sub_f32 %s, %s, %s" % (vr(vNegm), vr(vNegm), vr(t0)))
    for r in range(16):
        e("v_sub_f32 %s, %s, %s" % (vr(Sn + r), vr(Sn + r), vr(t0)))
    for r in range(16):
        e("v_sub_f32 %s, %s, %s" % (vr(S + r), vr(S + r), vr(t0)))
    for r in range(16):
        e("v_exp_f32 %s, %s" % (vr(S + r), vr(S + r)))
    e("v_add_f32 %s, %s, %s" % (vr(vLs), vr(S), vr(S + 1)))
    for r in range(2, 16):
        e("v_add_f32 %s, %s, %s" % (vr(vLs), vr(vLs), vr(S + r)))
    for r in range(8):
        e("v_cvt_pk_bf16_f32 %s, %s, %s" % (vr(P + r), vr(S + 2 * r), vr(S + 2 * r + 1)))
    a.label(mask)
    e("s_add_u32 %s, %s, 3" % (sr(sT1), sr(sT)))
    maskprep(a)
    e("s_branch %s" % ret)


def gen_l2(a, name, opt):
    kernel_header(a, name)
    HACK.update(opt)
    e = a.e
    handlers = []
    e("s_cmp_ge_u32 s2, 256")
    e("s_cbranch_scc1 %s_end" % name)
    e("s_load_dwordx2 s[4:5], s[0:1], 104")
    e("v_lshrrev_b32 v10, 6, v0")
    e("v_and_b32 v0, 63, v0")
    e("v_readfirstlane_b32 %s, v10" % sr(sWave))
    e("s_and_b32 %s, s2, 7" % sr(sT0))
    e("s_lshr_b32 %s, s2, 3" % sr(sT1))
    e("s_and_b32 %s, %s, 7" % (sr(sPair), sr(sT1)))
    e("s_lshr_b32 %s, %s, 3" % (sr(sT1), sr(sT1)))
    e("s_lshl_b32 %s, %s, 2" % (sr(sHead), sr(sT0)))
    e("s_add_u32 %s, %s, %s" % (sr(sHead), sr(sHead), sr(sT1)))
    e("s_mov_b32 %s, %d" % (sr(SRD + 2), WS_SIZE))
    e("s_mov_b32 %s, 0x20000" % sr(SRD + 3))
    e("s_mov_b32 %s, %s" % (sr(sTHR), f32(4096.0)))
    e("s_mov_b32 %s, %s" % (sr(sNEG), f32(-1e30)))
    e("v_lshlrev_b32 %s, 4, v0" % vr(vLane16))
    e("s_lshl_b32 %s, %s, 12" % (sr(sWrBeg), sr(sWave)))
    e("v_add_u32 %s, %s, %s" % (vr(vDma), sr(sWrBeg), vr(vLane16)))
    e("s_mov_b32 %s, %s" % (sr(sWr), sr(sWrBeg)))
    e("s_add_u32 %s, %s, %d" % (sr(sWrEnd), sr(sWrBeg), NSLOT * 32768))
    e("s_mov_b32 %s, 0" % sr(sRd))
    e("v_and_b32 v10, 31, v0")
    e("v_lshrrev_b32 v11, 5, v0")
    e("v_lshlrev_b32 v11, 2, v11")
    e("v_sub_u32 %s, v10, v11" % vr(vDl))
    e("s_lshl_b32 %s, %s, 19" % (sr(sT0), sr(sHead)))
    e("s_add_u32 %s, %s, %d" % (sr(sKb), sr(sT0), WS_K))
    e("s_add_u32 %s, %s, %d" % (sr(sVb), sr(sT0), WS_V - 16384))
    e("s_sub_u32 %s, 15, %s" % (sr(sQb), sr(sPair)))
    e("s_add_u32 %s, %s, 1" % (sr(sDNT), sr(sQb)))
    e("s_lshl_b32 %s, %s, 1" % (sr(sDNT), sr(sDNT)))
    e("s_add_u32 %s, %s, 1" % (sr(sNTB), sr(sPair)))
    e("s_lshl_b32 %s, %s, 1" % (sr(sNTB), sr(sNTB)))
    e("s_mov_b32 %s, 0" % sr(sDT))
    e("s_mov_b32 %s, %s" % (sr(sDK), sr(sKb)))
    e("s_add_u32 %s, %s, 16384" % (sr(sDV), sr(sVb)))
    e("s_mov_b32 %s, 0" % sr(sBlk))
    e("s_waitcnt lgkmcnt(0)")
    e("s_mov_b32 %s, s4" % sr(SRD))
    e("s_mov_b32 %s, s5" % sr(SRD + 1))
    stamp(a, opt, 0)
    e("s_lshl_b32 s45, s2, 10")
    e("s_add_u32 s45, s45, %d" % (WS_STAMP + (2 << 20)))
    stamp_ts(a, opt)

    def dma_interval():
        for w in ('K', 'V'):
            m0, d = dma_items(w)
            e(m0[0])
            e("s_nop 0")
            for x in d:
                e(x)
        for x in dma_advance():
            e(x)
    def qload(areg, qb_sgpr):
        e("s_lshl_b32 %s, %s, 2" % (sr(sT1), sr(qb_sgpr)))
        e("s_add_u32 %s, %s, %s" % (sr(sT1), sr(sT1), sr(sWave)))
        e("s_lshl_b32 %s, %s, 13" % (sr(sT2), sr(sT1)))
        e("s_lshl_b32 %s, %s, 19" % (sr(sT0), sr(sHead)))
        e("s_add_u32 %s, %s, %s" % (sr(sT2), sr(sT2), sr(sT0)))
        if WS_Q:
            e("s_add_u32 %s, %s, %d" % (sr(sT2), sr(sT2), WS_Q))
        e("s_add_u32 %s, %s, 4096" % (sr(sT0), sr(sT2)))
        for ks in range(8):
            e("buffer_load_dwordx4 %s, %s, %s, %s offen offset:%d" % (
                ar(areg + 4 * ks, 4), vr(vLane16), sr(SRD, 4), sr(sT2 if ks < 4 else sT0), (ks & 3) * 1024))
        e("s_lshl_b32 %s, %s, 7" % (sr(sT1), sr(sT1)))
        e("s_add_u32 %s, %s, %d" % (sr(sT1), sr(sT1), WS_G))
    e("v_lshlrev_b32 v10, 2, v10")
    qload(aQ, sQb)
    e("buffer_load_dword %s, v10, %s, %s offen" % (vr(vG), sr(SRD, 4), sr(sT1)))
    dma_interval()
    dma_interval()
    dma_interval()
    qload(aQ2, sPair)
    e("buffer_load_dword %s, v10, %s, %s offen" % (vr(vG + 1), sr(SRD, 4), sr(sT1)))
    e("s_waitcnt vmcnt(25)")
    a.label(name + "_blk")
    e("s_add_u32 %s, %s, 1" % (sr(sN), sr(sQb)))
    e("s_lshl_b32 %s, %s, 1" % (sr(sLoop), sr(sN)))
    e("s_lshl_b32 %s, %s, 2" % (sr(sN), sr(sN)))
    e("s_sub_u32 %s, %s, 1" % (sr(sLoop), sr(sLoop)))
    e("s_max_u32 %s, %s, 7" % (sr(sThr), sr(sN)))
    e("s_sub_u32 %s, %s, 7" % (sr(sThr), sr(sThr)))
    e("s_add_u32 %s, %s, %s" % (sr(sMaskB), sr(sN), sr(sWave)))
    e("s_sub_u32 %s, %s, 4" % (sr(sMaskB), sr(sMaskB)))
    e("s_lshl_b32 %s, %s, 5" % (sr(sMaskB), sr(sMaskB)))
    e("s_mov_b32 %s, -1" % sr(sT))
    e("v_mov_b32 %s, 0" % vr(vNegm))
    e("v_mov_b32 %s, 0" % vr(vL))
    e("v_mov_b32 %s, 0" % vr(vLs))
    barrier(a)
    for r in k_reads(0):
        e(r)
    m0, d = dma_items('K')
    e(m0[0])
    e("s_mov_b32 %s, 0" % sr(sT1))
    for x in d:
        e(x)
    maskprep(a)
    for i in range(8):
        e("v_mov_b32 %s, 0" % vr(vP[1] + i))
    e("s_waitcnt lgkmcnt(0)")
    q0 = qk_mfmas(0)
    kr1 = k_reads(1)
    m0, d = dma_items('V')
    e(m0[0])
    for i in range(8):
        e(q0[i])
        e(kr1[i])
        if i < 4:
            e(d[i])
        for j in range(4):
            e("v_mov_b32 %s, 0" % vr(vO + 4 * i + j))
    for x in dma_advance():
        e(x)
    e("s_mov_b32 %s, 1" % sr(sT1))
    maskprep(a)
    e("s_waitcnt lgkmcnt(0)")
    q1 = qk_mfmas(1)
    vr1 = v_reads(1)
    for i in range(8):
        e(q1[i])
        e(vr1[i])
        for j in range(4):
            e("v_mov_b32 %s, 0" % vr(vO + 32 + 4 * i + j))
    for x in rd_advance():
        e(x)
    stamp(a, opt, 1)
    ev = stage_sched(0)
    od = stage_sched(1)
    a.label(name + "_loop")
    stamp_ts(a, opt)
    barrier(a)
    emit_half(a, ev, 8, 16)
    stage_end(a, 0, name, handlers)
    emit_half(a, od, 0, 16)
    stage_end(a, 1, name, handlers)
    emit_half(a, ev, 0, 8)
    e("s_sub_u32 %s, %s, 1" % (sr(sLoop), sr(sLoop)))
    e("s_cmp_lg_u32 %s, 0" % sr(sLoop))
    e("s_cbranch_scc1 %s_loop" % name)
    ev2 = stage_sched(0, kr=False)
    od2 = stage_sched(1, qk=False, kr=False)
    barrier(a)
    emit_half(a, ev2, 8, 16)
    stage_end(a, 0, name, handlers)
    emit_half(a, od2, 0, 16)
    stage_end(a, 1, name, handlers)
    for r in v_reads(1):
        e(r)
    e("v_add_f32 %s, %s, %s" % (vr(vL), vr(vL), vr(vLs)))
    for x in rd_advance():
        e(x)
    e("v_mov_b32 %s, %s" % (vr(vTmp[0]), vr(vL)))
    e("s_nop 1")
    e("v_permlane32_swap_b32 %s, %s" % (vr(vTmp[0]), vr(vL)))
    e("s_nop 1")
    e("v_add_f32 %s, %s, %s" % (vr(vL), vr(vL), vr(vTmp[0])))
    e("v_rcp_f32 %s, %s" % (vr(vL), vr(vL)))
    pv = pv_mfmas(1)
    e("s_waitcnt lgkmcnt(4)")
    for i in range(4):
        e(pv[i])
    e("s_waitcnt lgkmcnt(0)")
    for i in range(4, 8):
        e(pv[i])
    e("v_mul_f32 %s, %s, %s" % (vr(vTmp[0]), vr(vL), vr(vG)))
    e("v_mov_b32 %s, %s" % (vr(vTmp[1]), vr(vTmp[0])))
    e("s_lshl_b32 %s, %s, 2" % (sr(sT1), sr(sQb)))
    e("s_add_u32 %s, %s, %s" % (sr(sT1), sr(sT1), sr(sWave)))
    e("s_mul_i32 %s, %s, %d" % (sr(sT1), sr(sT1), 480 * 1024))
    e("s_lshl_b32 %s, %s, 13" % (sr(sT2), sr(sHead)))
    e("s_add_u32 %s, %s, %s" % (sr(sT1), sr(sT1), sr(sT2)))
    e("s_add_u32 %s, %s, %d" % (sr(sT1), sr(sT1), WS_A3))
    e("s_add_u32 %s, %s, 4096" % (sr(sT2), sr(sT1)))
    stamp(a, opt, 2)
    e("s_nop 3")
    for db in range(4):
        r = vO + 16 * db
        for i in range(0, 16, 2):
            e("v_pk_mul_f32 %s, %s, %s" % (vr(r + i, 2), vr(r + i, 2), vr(vTmp[0], 2)))
        for g in range(2):
            for i in range(4):
                e("v_cvt_pk_bf16_f32 %s, %s, %s" % (vr(r + 8 * g + i), vr(r + 8 * g + 2 * i), vr(r + 8 * g + 2 * i + 1)))
            fi = db * 2 + g
            e("buffer_store_dwordx4 %s, %s, %s, %s offen offset:%d" % (
                vr(r + 8 * g, 4), vr(vLane16), sr(SRD, 4), sr(sT1 if fi < 4 else sT2), (fi & 3) * 1024))
    e("s_cmp_lg_u32 %s, 0" % sr(sBlk))
    e("s_cbranch_scc1 %s_fin" % name)
    e("s_mov_b32 %s, 1" % sr(sBlk))
    e("s_mov_b32 %s, %s" % (sr(sQb), sr(sPair)))
    for i in range(32):
        e("v_accvgpr_mov_b32 %s, %s" % (ar(aQ + i), ar(aQ2 + i)))
    e("v_mov_b32 %s, %s" % (vr(vG), vr(vG + 1)))
    e("s_branch %s_blk" % name)
    a.label(name + "_fin")
    stamp(a, opt, 3)
    a.label(name + "_end")
    e("s_endpgm")
    for h in handlers:
        emit_handler(a, *h)
    return kernel_desc(name, 160 + 128, 64, 160)
```

```python
from asmlib import *
from l1 import WS_A3, WS_G, WS_P, WS_SIZE, f32, WS_STAMP

LDS = 131072

SRD_WS, SRD_W, SRD_OUT, SRD_DBG = 8, 12, 16, 20
sWave, sTm, sTn, sRole = 24, 25, 26, 27
sXk, sWk, sIter, sM0 = 28, 29, 30, 31
sT0, sT1, sT2, sTile = 32, 33, 34, 35
S_WO, S_WD, S_OUT, S_DBG, S_WS = 40, 44, 48, 50, 52

vX = [1, 2, 3, 4]
vWd = [5, 6, 7, 8]
vWr = [9, 10, 11, 12]
vL16 = 13
vT = [14, 15, 16, 17, 18, 19]
vWF = 32
vTMP = 64
vACC = 128
aACC = 0
aX = 128


def acc(nb, tb):
    if tb < 2:
        return ('v', vACC + 16 * (tb * 4 + nb))
    return ('a', aACC + 16 * ((tb - 2) * 4 + nb))


def stamp_ts(a, opt):
    if not opt.get('ts'):
        return
    l = a.newlabel("ts")
    a.e("s_cmp_lg_u32 %s, 0" % sr(sWave))
    a.e("s_cbranch_scc1 %s" % l)
    a.e("s_memtime s[56:57]")
    a.e("s_memrealtime s[58:59]")
    a.e("s_waitcnt lgkmcnt(0)")
    a.e("s_mov_b64 s[60:61], exec")
    a.e("s_mov_b64 exec, 1")
    for i in range(4):
        a.e("v_mov_b32 v%d, s%d" % (28 + i, 56 + i))
    a.e("v_mov_b32 v27, 0")
    a.e("buffer_store_dwordx4 v[28:31], v27, %s, s62 offen" % sr(SRD_WS, 4))
    a.e("s_add_u32 s62, s62, 16")
    a.e("s_mov_b64 exec, s[60:61]")
    a.label(l)


def loads(slot):
    pre = "s_add_u32 m0, %s, %d" % (sr(sM0), slot * 4096)
    d = ["buffer_load_dwordx4 %s, %s, %s offen offset:%d lds" % (vr(vWd[j]), sr(SRD_W, 4), sr(sWk), j * 1024) for j in range(4)]
    x = ["buffer_load_dwordx4 %s, %s, %s, %s offen" % (ar(aX + 16 * slot + 4 * tb, 4), vr(vX[tb]), sr(SRD_WS, 4), sr(sXk)) for tb in range(4)]
    post = ["s_add_u32 %s, %s, %d" % (sr(sWk), sr(sWk), 64 * 2048), "s_add_u32 %s, %s, 4096" % (sr(sXk), sr(sXk))]
    return pre, d, x, post


def wreads(slot, fs):
    out = []
    for nb in range(4):
        for t in range(2):
            out.append("ds_read_b64_tr_b16 %s, %s offset:%d" % (vr(vWF + 16 * fs + 4 * nb + 2 * t, 2), vr(vWr[nb]), slot * 4096 + t * 2048))
    return out


def step(a, i, zero=False, do_load=True, do_read=True, vm=44):
    slot = i % 8
    fs = i % 2
    a.e("s_waitcnt vmcnt(%d) lgkmcnt(0)" % vm)
    mf = []
    for nb in range(4):
        for tb in range(4):
            d = reg(acc(nb, tb), 16)
            mf.append("v_mfma_f32_32x32x16_bf16 %s, %s, %s, %s" % (d, vr(vWF + 16 * fs + 4 * nb, 4), ar(aX + 16 * slot + 4 * tb, 4), "0" if zero else d))
    fill = {}
    if do_read:
        for j, r in enumerate(wreads((i + 1) % 8, fs ^ 1)):
            fill.setdefault(j, []).append(r)
    if do_load:
        pre, d, x, post = loads((i + 7) % 8)
        fill.setdefault(0, []).append(pre)
        for j in range(4):
            fill.setdefault(1 + 2 * j, []).append(d[j])
        for j in range(4):
            fill.setdefault(8 + 2 * j, []).append(x[j])
        fill.setdefault(15, []).extend(post)
    interleave(a, mf, fill)


def gen_l3(a, name, opt):
    kernel_header(a, name)
    e = a.e
    e("s_cmp_ge_u32 s2, 256")
    e("s_cbranch_scc1 %s_end" % name)
    e("s_load_dwordx2 %s, s[0:1], 40" % sr(S_WO, 2))
    e("s_load_dwordx2 %s, s[0:1], 72" % sr(S_WD, 2))
    e("s_load_dwordx2 %s, s[0:1], 88" % sr(S_OUT, 2))
    e("s_load_dwordx2 %s, s[0:1], 96" % sr(S_DBG, 2))
    e("s_load_dwordx2 %s, s[0:1], 104" % sr(S_WS, 2))
    e("v_lshrrev_b32 v14, 6, v0")
    e("v_and_b32 v0, 63, v0")
    e("v_readfirstlane_b32 %s, v14" % sr(sWave))
    e("s_and_b32 %s, s2, 7" % sr(sT0))
    e("s_lshr_b32 %s, s2, 3" % sr(sT1))
    e("s_and_b32 %s, %s, 3" % (sr(sTm), sr(sT0)))
    e("s_lshl_b32 %s, %s, 2" % (sr(sTm), sr(sTm)))
    e("s_and_b32 %s, %s, 3" % (sr(sT2), sr(sT1)))
    e("s_add_u32 %s, %s, %s" % (sr(sTm), sr(sTm), sr(sT2)))
    e("s_lshr_b32 %s, %s, 2" % (sr(sTn), sr(sT0)))
    e("s_lshl_b32 %s, %s, 2" % (sr(sTn), sr(sTn)))
    e("s_bfe_u32 %s, %s, 0x20002" % (sr(sT2), sr(sT1)))
    e("s_add_u32 %s, %s, %s" % (sr(sTn), sr(sTn), sr(sT2)))
    e("s_lshr_b32 %s, %s, 4" % (sr(sRole), sr(sT1)))
    e("s_lshl_b32 %s, %s, 3" % (sr(sTile), sr(sTm)))
    e("s_add_u32 %s, %s, %s" % (sr(sTile), sr(sTile), sr(sTn)))
    for s in (SRD_WS, SRD_W, SRD_OUT, SRD_DBG):
        e("s_mov_b32 %s, 0x20000" % sr(s + 3))
    e("s_mov_b32 %s, %d" % (sr(SRD_WS + 2), WS_SIZE))
    e("s_mov_b32 %s, %d" % (sr(SRD_OUT + 2), 2048 * 1024 * 2))
    e("s_mov_b32 %s, 256" % sr(SRD_DBG + 2))
    e("s_lshl_b32 %s, %s, 15" % (sr(sM0), sr(sWave)))
    e("v_lshlrev_b32 %s, 4, v0" % vr(vL16))
    for tb in range(4):
        e("s_xor_b32 %s, %s, %d" % (sr(sT0), sr(sWave), tb))
        e("s_mul_i32 %s, %s, %d" % (sr(sT0), sr(sT0), 480 * 1024))
        e("v_add_u32 %s, %s, %s" % (vr(vX[tb]), sr(sT0), vr(vL16)))
    e("v_lshrrev_b32 v14, 4, v0")
    e("v_bfe_u32 v15, v0, 2, 2")
    e("v_xor_b32 v16, v15, v14")
    e("v_and_b32 v17, 3, v0")
    e("v_lshlrev_b32 v18, 11, v14")
    e("v_lshl_add_u32 v18, v16, 6, v18")
    e("v_lshl_add_u32 %s, v17, 4, v18" % vr(vWd[0]))
    for j in range(1, 4):
        e("v_add_u32 %s, %d, %s" % (vr(vWd[j]), j * 7168, vr(vWd[0])))
    e("v_lshrrev_b32 v14, 5, v0")
    e("v_lshl_add_u32 v14, v14, 2, v15")
    e("v_lshlrev_b32 v14, 8, v14")
    e("v_bfe_u32 v16, v0, 4, 1")
    e("v_lshl_add_u32 v14, v16, 5, v14")
    e("v_lshl_add_u32 v14, v17, 3, v14")
    e("v_add_u32 v14, %s, v14" % sr(sM0))
    for nb in range(4):
        e("v_xor_b32 v16, %d, v15" % nb)
        e("v_lshl_add_u32 %s, v16, 6, v14" % vr(vWr[nb]))
    e("s_mul_i32 %s, %s, %d" % (sr(sXk), sr(sTm), 4 * 480 * 1024))
    e("s_lshl_b32 %s, %s, 10" % (sr(sT0), sr(sWave)))
    e("s_add_u32 %s, %s, %s" % (sr(sXk), sr(sXk), sr(sT0)))
    e("s_add_u32 %s, %s, %d" % (sr(sXk), sr(sXk), WS_A3))
    e("s_lshl_b32 %s, %s, 15" % (sr(sWk), sr(sWave)))
    e("s_lshl_b32 %s, %s, 8" % (sr(sT0), sr(sTn)))
    e("s_add_u32 %s, %s, %s" % (sr(sWk), sr(sWk), sr(sT0)))
    e("s_waitcnt lgkmcnt(0)")
    e("s_cmp_eq_u32 %s, 0" % sr(sRole))
    e("s_cselect_b32 %s, %s, %s" % (sr(SRD_W), sr(S_WD), sr(S_WO)))
    e("s_cselect_b32 %s, %s, %s" % (sr(SRD_W + 1), sr(S_WD + 1), sr(S_WO + 1)))
    e("s_mov_b32 %s, %d" % (sr(sT0), 3584 * 2048))
    e("s_cselect_b32 %s, %s, %d" % (sr(SRD_W + 2), sr(sT0), 4096 * 2048))
    e("s_cselect_b32 %s, 6, 7" % sr(sIter))
    e("s_cselect_b32 %s, %d, 0" % (sr(sT0), 256 * 1024))
    e("s_add_u32 %s, %s, %s" % (sr(sXk), sr(sXk), sr(sT0)))
    for d, s in ((SRD_WS, S_WS), (SRD_OUT, S_OUT), (SRD_DBG, S_DBG)):
        e("s_mov_b32 %s, %s" % (sr(d), sr(s)))
        e("s_mov_b32 %s, %s" % (sr(d + 1), sr(s + 1)))
    if opt.get('ts'):
        e("s_lshl_b32 s62, s2, 10")
        e("s_add_u32 s62, s62, %d" % (WS_STAMP + (3 << 20)))
    stamp_ts(a, opt)
    for i in range(7):
        pre, d, x, post = loads(i)
        e(pre)
        e("s_nop 0")
        for s in d + x + post:
            e(s)
    e("s_waitcnt vmcnt(52)")
    for r in wreads(0, 0):
        e(r)
    step(a, 0, zero=True)
    e("s_branch %s_s1" % name)
    a.label(name + "_loop")
    stamp_ts(a, opt)
    step(a, 0)
    a.label(name + "_s1")
    for i in range(1, 8):
        step(a, i)
    e("s_sub_u32 %s, %s, 1" % (sr(sIter), sr(sIter)))
    e("s_cmp_lg_u32 %s, 0" % sr(sIter))
    e("s_cbranch_scc1 %s_loop" % name)
    step(a, 0)
    for i in range(1, 8):
        step(a, i, do_load=False, do_read=(i < 7), vm=(52 - 8 * i) if i < 7 else 0)
    stamp_ts(a, opt)
    e("s_lshl_b32 %s, %s, 2" % (sr(sT0), sr(sTm)))
    e("s_add_u32 %s, %s, %s" % (sr(sT0), sr(sT0), sr(sWave)))
    e("s_lshl_b32 %s, %s, 7" % (sr(sT1), sr(sT0)))
    e("s_add_u32 %s, %s, %d" % (sr(sT1), sr(sT1), WS_G))
    e("v_and_b32 v14, 31, v0")
    e("v_lshlrev_b32 v15, 2, v14")
    e("buffer_load_dword v16, v15, %s, %s offen" % (sr(SRD_WS, 4), sr(sT1)))
    e("v_add_u32 v18, %s, %s" % (sr(sM0), vr(vL16)))
    e("s_xor_b32 %s, %s, 0x10000" % (sr(sT1), sr(sM0)))
    e("v_add_u32 v19, %s, %s" % (sr(sT1), vr(vL16)))
    e("s_xor_b32 %s, %s, 0x8000" % (sr(sT1), sr(sM0)))
    e("v_add_u32 v20, %s, %s" % (sr(sT1), vr(vL16)))
    e("s_nop 7")
    for q in range(32):
        e("ds_write_b128 v18, %s offset:%d" % (ar(aACC + 4 * q, 4), q * 1024))
    e("s_waitcnt lgkmcnt(0)")
    e("s_barrier")
    for half in range(2):
        for q in range(16):
            e("ds_read_b128 %s, v19 offset:%d" % (vr(vTMP + 4 * q, 4), (half * 16 + q) * 1024))
        for q in range(16):
            e("s_waitcnt lgkmcnt(%d)" % (15 - q))
            for i in range(0, 4, 2):
                r = vACC + half * 64 + 4 * q + i
                e("v_pk_add_f32 %s, %s, %s" % (vr(r, 2), vr(r, 2), vr(vTMP + 4 * q + i, 2)))
    e("s_barrier")
    for q in range(16):
        e("ds_write_b128 v18, %s offset:%d" % (vr(vACC + 64 + 4 * q, 4), q * 1024))
    e("s_waitcnt lgkmcnt(0)")
    e("s_barrier")
    for q in range(16):
        e("ds_read_b128 %s, v20 offset:%d" % (vr(vTMP + 4 * q, 4), q * 1024))
    for q in range(16):
        e("s_waitcnt lgkmcnt(%d)" % (15 - q))
        for i in range(0, 4, 2):
            r = vACC + 4 * q + i
            e("v_pk_add_f32 %s, %s, %s" % (vr(r, 2), vr(r, 2), vr(vTMP + 4 * q + i, 2)))
    stamp_ts(a, opt)
    e("s_lshl_b32 %s, %s, 16" % (sr(sT1), sr(sTile)))
    e("s_lshl_b32 %s, %s, 14" % (sr(sT2), sr(sWave)))
    e("s_add_u32 %s, %s, %s" % (sr(sT1), sr(sT1), sr(sT2)))
    e("s_add_u32 %s, %s, %d" % (sr(sT1), sr(sT1), WS_P))
    e("s_lshr_b32 %s, %s, 5" % (sr(sT2), sr(sTile)))
    e("s_lshl_b32 %s, %s, 2" % (sr(sT2), sr(sT2)))
    e("s_and_b32 s36, %s, 31" % sr(sTile))
    e("s_lshl_b32 s36, 1, s36")
    e("s_cmp_lg_u32 %s, 0" % sr(sRole))
    e("s_cbranch_scc1 %s_cons" % name)
    e("s_waitcnt vmcnt(0)")
    e("v_sub_f32 v16, 1.0, v16")
    e("v_mov_b32 v17, v16")
    for q in range(16):
        for i in range(0, 4, 2):
            r = vACC + 4 * q + i
            e("v_pk_mul_f32 %s, %s, v[16:17]" % (vr(r, 2), vr(r, 2)))
        if q and q % 4 == 0:
            e("s_add_u32 %s, %s, 4096" % (sr(sT1), sr(sT1)))
        e("buffer_store_dwordx4 %s, %s, %s, %s offen offset:%d sc1" % (vr(vACC + 4 * q, 4), vr(vL16), sr(SRD_WS, 4), sr(sT1), (q & 3) * 1024))
    e("s_waitcnt vmcnt(0)")
    e("s_barrier")
    e("s_cmp_lg_u32 %s, 0" % sr(sWave))
    e("s_cbranch_scc1 %s_fin" % name)
    e("v_mov_b32 v16, s36")
    e("v_mov_b32 v17, 0")
    e("s_mov_b64 exec, 1")
    e("buffer_atomic_or v16, v17, %s, %s offen sc1" % (sr(SRD_DBG, 4), sr(sT2)))
    e("s_branch %s_fin" % name)
    a.label(name + "_cons")
    e("v_mov_b32 v17, 0")
    e("s_mov_b32 s37, 0x100000")
    a.label(name + "_poll")
    e("buffer_load_dword v16, v17, %s, %s offen sc1" % (sr(SRD_DBG, 4), sr(sT2)))
    e("s_waitcnt vmcnt(0)")
    e("v_readfirstlane_b32 s38, v16")
    e("s_and_b32 s38, s38, s36")
    e("s_cbranch_scc1 %s_got" % name)
    e("s_sleep 2")
    e("s_sub_u32 s37, s37, 1")
    e("s_cmp_lg_u32 s37, 0")
    e("s_cbranch_scc1 %s_poll" % name)
    a.label(name + "_got")
    e("buffer_inv sc1")
    e("s_waitcnt vmcnt(0)")
    for q in range(16):
        if q and q % 4 == 0:
            e("s_add_u32 %s, %s, 4096" % (sr(sT1), sr(sT1)))
        e("buffer_load_dwordx4 %s, %s, %s, %s offen offset:%d sc1" % (vr(vTMP + 4 * q, 4), vr(vL16), sr(SRD_WS, 4), sr(sT1), (q & 3) * 1024))
    e("v_lshlrev_b32 v15, 11, v14")
    e("v_lshrrev_b32 v16, 5, v0")
    e("v_lshl_add_u32 v15, v16, 4, v15")
    e("s_lshl_b32 %s, %s, 16" % (sr(sT0), sr(sT0)))
    e("s_lshl_b32 %s, %s, 8" % (sr(sT2), sr(sTn)))
    e("s_add_u32 %s, %s, %s" % (sr(sT0), sr(sT0), sr(sT2)))
    for pq in range(8):
        e("s_waitcnt vmcnt(%d)" % (14 - 2 * pq + pq))
        r = vACC + 8 * pq
        for i in range(0, 8, 2):
            e("v_pk_add_f32 %s, %s, %s" % (vr(r + i, 2), vr(r + i, 2), vr(vTMP + 8 * pq + i, 2)))
        for i in range(4):
            e("v_cvt_pk_bf16_f32 %s, %s, %s" % (vr(r + i), vr(r + 2 * i), vr(r + 2 * i + 1)))
        e("s_nop 1")
        e("v_permlane32_swap_b32 %s, %s" % (vr(r), vr(r + 2)))
        e("v_permlane32_swap_b32 %s, %s" % (vr(r + 1), vr(r + 3)))
        e("buffer_store_dwordx4 %s, v15, %s, %s offen offset:%d" % (vr(r, 4), sr(SRD_OUT, 4), sr(sT0), pq * 32))
    a.label(name + "_fin")
    stamp_ts(a, opt)
    a.label(name + "_end")
    e("s_endpgm")
    return kernel_desc(name, 512, 72, 256)
```

```python
import sys, json
from asmlib import *
import l1

HEADER = open('gated_mix__compressed_kv_cla__geglu_ffn__prompt.s.ref').read().split("; Override launch")[0]


def build(opt, kernels=("l1",)):
    a = Asm()
    launches = []
    descs = []
    body = Asm()
    if "l1" in kernels:
        descs.append(l1.gen_l1(body, "l1_kernel", opt.get('l1', {})))
        launches.append("; @launch kernel=l1_kernel grid=(256,1,1) block=(256,1,1) lds=163840")
    if "l2" in kernels:
        import l2
        descs.append(l2.gen_l2(body, "l2_kernel", opt.get('l2', {})))
        launches.append("; @launch kernel=l2_kernel grid=(256,1,1) block=(256,1,1) lds=%d" % l2.LDS)
    if "l3" in kernels:
        import l3
        descs.append(l3.gen_l3(body, "l3_kernel", opt.get('l3', {})))
        launches.append("; @launch kernel=l3_kernel grid=(256,1,1) block=(256,1,1) lds=%d" % l3.LDS)
    out = HEADER + "\n".join(launches) + "\n"
    out += '.amdgcn_target "amdgcn-amd-amdhsa--gfx950"\n.text\n'
    out += body.text()
    out += '.section .rodata,"a"\n'
    for d in descs:
        out += ".p2align 6\n" + d
    return out


if __name__ == "__main__":
    outp = sys.argv[1]
    kernels = sys.argv[2].split(",") if len(sys.argv) > 2 else ["l1", "l2", "l3"]
    opt = json.loads(sys.argv[3]) if len(sys.argv) > 3 else {}
    open(outp, "w").write(build(opt, kernels))
```

```python
from asmlib import *
import struct

import os
WS_BASE = int(os.environ.get("WS_BASE_MB", "0")) << 20
WS_Q = WS_BASE + 0
WS_K = WS_BASE + (16 << 20)
WS_V = WS_BASE + (32 << 20)
WS_A3 = WS_BASE + (48 << 20)
WS_G = WS_BASE + (80 << 20)
WS_P = WS_BASE + (81 << 20)
WS_SIZE = 268435456


def f32(x):
    return "0x%08x" % struct.unpack("<I", struct.pack("<f", x))[0]


S_X, S_CKV, S_WQ, S_WUK, S_WUV, S_WO, S_BX, S_WG, S_WU, S_WD, S_GW, S_OUT, S_DBG, S_WS = [16 + 2 * i for i in range(14)]
SRD_X, SRD_W, SRD_O = 44, 48, 52
sXk, sXk2, sWk, sWstep, sXrow32 = 56, 57, 58, 59, 60
sXdst, sXbeg, sXend = 61, 62, 63
sWm0a, sWm0b = 64, 65
sIter, sWave, sJob = 66, 67, 68
sTm, sTn8, sTn7 = 69, 70, 71
sRslot, sDelta, sCp, sCm = 72, 73, 74, 75
sT0, sT1, sT2, sT3 = 76, 77, 78, 79
sOb = 80
sNXlo, sNXhi, sNXn, sNXk, sNXrow32 = 81, 82, 83, 84, 85
sNWlo, sNWhi, sNWn, sNWk, sNWstep, sNm0a, sNm0b = 86, 87, 88, 89, 90, 91, 92
sCA, sCB = 94, 95
sCC = 96

vXr = [1, 2, 3, 4]
vWr8 = [5, 6, 7, 8]
vWr7 = 9
vXd = [10, 11, 12, 13]
vWd = [14, 15, 16, 17]
vXdN = [18, 19, 20, 21]
vWdN = [22, 23, 24, 25]
vSt = 26
vT = [27, 28, 29, 30, 31]
ACC0 = 32

XBASE = 65536


def acc(blk):
    if blk < 14:
        return ('v', ACC0 + 16 * blk)
    return ('a', 16 * (blk - 14))


def fragX(s, tb):
    return 32 + s * 40 + 4 * tb


def fragW(s, nb):
    return 32 + s * 40 + 8 + 4 * nb


HACK = {}


def mfmas(kind, s, zero=False):
    NB = 7 if kind == 'G' else 8
    out = []
    if HACK.get('m16'):
        for nb in range(NB):
            for tb in range(2):
                w = ar(fragW(s, nb), 4)
                x = ar(fragX(s, tb), 4)
                x2 = ar(fragX(s, tb ^ 1), 4)
                two = []
                for q in range(2):
                    d = reg(acc(nb * 2 + tb), 4, 8 * s + 4 * q)
                    two.append("v_mfma_f32_16x16x32_bf16 %s, %s, %s, %s" % (d, w if q == 0 else x2, x if q == 0 else w, d))
                out.append("\n  ".join(two))
        return out
    for nb in range(NB):
        for tb in range(2):
            d = reg(acc(nb * 2 + tb), 16)
            w = ar(fragW(s, nb), 4)
            x = ar(fragX(s, tb), 4)
            A, B = (x, w) if kind == 'V' else (w, x)
            out.append("v_mfma_f32_32x32x16_bf16 %s, %s, %s, %s" % (d, A, B, "0" if zero else d))
    return out


def reads(kind, p, k):
    slot = p % 4
    s = 2 * (p & 1) + k
    out = []
    if HACK.get('noread') and HACK.get('inloop'):
        return out
    for tb in range(2):
        out.append("ds_read_b128 %s, %s offset:%d" % (ar(fragX(k, tb), 4), vr(vXr[s]), tb * 4096))
    NB = 7 if kind == 'G' else 8
    for nb in range(NB):
        for t in range(2):
            if kind == 'G':
                addr = vWr7
                off = slot * 16384 + (16 * k + 4 * t) * 224 + nb * 32
            else:
                addr = vWr8[nb & 3]
                off = slot * 16384 + (16 * k + 4 * t) * 512 + (nb >> 2) * 256
            out.append("ds_read_b64_tr_b16 %s, %s offset:%d" % (ar(fragW(k, nb) + 2 * t, 2), vr(addr), off))
    return out


def dmaW(slot):
    g = []
    for j in range(4):
        l = []
        if j == 0:
            l.append("s_add_u32 m0, %s, %d" % (sr(sWm0a), slot * 16384))
        if j == 3:
            l.append("s_add_u32 m0, %s, %d" % (sr(sWm0b), slot * 16384))
        l.append(("DMA", "buffer_load_dwordx4 %s, %s, %s offen offset:%d lds" % (vr(vWd[j]), sr(SRD_W, 4), sr(sWk), j * 1024)))
        g.append(l)
    g[3].append("s_add_u32 %s, %s, %s" % (sr(sWk), sr(sWk), sr(sWstep)))
    return g


def dmaX(half):
    g = []
    for j in range(4):
        l = []
        if j == 0:
            if half == 0:
                l.append("s_mov_b32 m0, %s" % sr(sXdst))
            else:
                l.append("s_add_u32 m0, %s, 4096" % sr(sXdst))
        l.append(("DMA", "buffer_load_dwordx4 %s, %s, %s offen offset:%d lds" % (
            vr(vXd[j]), sr(SRD_X, 4), sr(sXk if half == 0 else sXk2), j * 1024)))
        g.append(l)
    if half == 0:
        g[3].append("s_add_u32 %s, %s, %s" % (sr(sXk2), sr(sXk), sr(sXrow32)))
        g[3].append("s_add_u32 %s, %s, 128" % (sr(sXk), sr(sXk)))
    else:
        g[3].append("s_add_u32 %s, %s, 8192" % (sr(sXdst), sr(sXdst)))
        g[3].append("s_cmp_eq_u32 %s, %s" % (sr(sXdst), sr(sXend)))
        g[3].append("s_cselect_b32 %s, %s, %s" % (sr(sXdst), sr(sXbeg), sr(sXdst)))
    return g


def flat_dma(groups):
    out = []
    for l in groups:
        prev_m0 = False
        for s in l:
            if isinstance(s, tuple):
                if prev_m0:
                    out.append("s_nop 0")
                out.append(s[1])
                prev_m0 = False
            else:
                out.append(s)
                prev_m0 = " m0," in s
    return out


def group(a, kind_m, s, zero, rd, dma, extra=None, opt=None):
    m = mfmas(kind_m, s, zero) if kind_m else []
    n = len(m)
    fill = {}
    if n == 0:
        for r in rd:
            a.e(r)
        for x in flat_dma(dma):
            a.e(x)
        for x in (extra or []):
            a.e(x)
        return
    rpg = opt.get('rpg', 2)
    g = 0
    i = 0
    while i < len(rd):
        fill.setdefault(g, []).extend(rd[i:i + rpg])
        i += rpg
        g += 1
    first = opt.get('dma_first', n - 7)
    step = opt.get('dma_step', 2)
    pos = first
    for l in dma:
        pre = []
        post = []
        seen = False
        for sx in l:
            if isinstance(sx, tuple):
                seen = True
                if not (HACK.get('nodma') and HACK.get('inloop')):
                    post.append(sx[1])
            elif not seen:
                pre.append(sx)
            else:
                post.append(sx)
        pp = min(pos, n - 1)
        if pre:
            fill.setdefault(pp - 1, []).extend(pre)
        fill.setdefault(pp, []).extend(post)
        pos += step
    for gi, x in (extra or []):
        fill.setdefault(gi, []).append(x)
    interleave(a, m, fill)


def xr_update(s):
    return "v_add_u32 %s, %s, %s" % (vr(vXr[s]), sr(sDelta), vr(vXr[s]))


def delta_update():
    return ["s_add_u32 %s, %s, 1" % (sr(sRslot), sr(sRslot)),
            "s_cmp_eq_u32 %s, 3" % sr(sRslot),
            "s_cselect_b32 %s, %s, %s" % (sr(sDelta), sr(sCm), sr(sCp)),
            "s_cselect_b32 %s, 0, %s" % (sr(sRslot), sr(sRslot))]


SRD_P = 12
sPfA, sPfB = 4, 6
sPfOff = 3
vPf = 31


def pf_setup(lst):
    return [
        "s_and_b32 %s, %s, 15" % (sr(sT2), sr(lst)),
        "s_lshl_b32 %s, %s, 3" % (sr(sT2), sr(sT2)),
        "s_load_dwordx2 %s, s[0:1], %s" % (sr(SRD_P, 2), sr(sT2)),
        "s_bfe_u32 %s, %s, 0x40004" % (sr(sT3), sr(lst)),
        "s_cmp_eq_u32 %s, 15" % sr(sT3),
        "s_cselect_b32 %s, 0, -1" % sr(sPfB),
        "s_lshl_b32 %s, %s, 20" % (sr(sT3), sr(sT3)),
        "s_add_u32 %s, %s, %s" % (sr(sT3), sr(sT3), sr(sPfOff)),
        "s_lshr_b64 %s, %s, 8" % (sr(lst, 2), sr(lst, 2)),
        "s_or_b32 %s, %s, 0xf0000000" % (sr(lst + 1), sr(lst + 1)),
    ]


def pf_load():
    return "buffer_load_dword v30, %s, %s, %s offen" % (vr(vPf), sr(SRD_P, 4), sr(sT3))


def pf_list(entries):
    v = 0
    for i in range(8):
        sl, mb = entries[i] if i < len(entries) else (0, 15)
        v |= (sl | (mb << 4)) << (8 * i)
    return v


def pf_lists(a, A, B):
    la, lb = pf_list([tuple(x) for x in A]), pf_list([tuple(x) for x in B])
    a.e("s_mov_b32 %s, 0x%x" % (sr(sPfA), la & 0xffffffff))
    a.e("s_mov_b32 %s, 0x%x" % (sr(sPfA + 1), la >> 32))


def switchX(a):
    a.e("s_mov_b32 %s, %s" % (sr(SRD_X), sr(sNXlo)))
    a.e("s_mov_b32 %s, %s" % (sr(SRD_X + 1), sr(sNXhi)))
    a.e("s_mov_b32 %s, %s" % (sr(SRD_X + 2), sr(sNXn)))
    a.e("s_mov_b32 %s, %s" % (sr(sXk), sr(sNXk)))
    a.e("s_mov_b32 %s, %s" % (sr(sXrow32), sr(sNXrow32)))


def switchW(a):
    a.e("s_mov_b32 %s, %s" % (sr(SRD_W), sr(sNWlo)))
    a.e("s_mov_b32 %s, %s" % (sr(SRD_W + 1), sr(sNWhi)))
    a.e("s_mov_b32 %s, %s" % (sr(SRD_W + 2), sr(sNWn)))
    a.e("s_mov_b32 %s, %s" % (sr(sWk), sr(sNWk)))
    a.e("s_mov_b32 %s, %s" % (sr(sWstep), sr(sNWstep)))
    a.e("s_mov_b32 %s, %s" % (sr(sWm0a), sr(sNm0a)))
    a.e("s_mov_b32 %s, %s" % (sr(sWm0b), sr(sNm0b)))


def groupA_extras(p):
    ex = []
    pm = (p - 1) % 4
    s_prev = 2 * (pm & 1) + 1
    ex.append((10, xr_update(s_prev)))
    return ex


def groupB_extras(p):
    ex = []
    s_prev = 2 * (p & 1) + 0
    if (p & 1) == 0:
        for i, x in enumerate(delta_update()):
            ex.append((9, x))
    ex.append((11, xr_update(s_prev)))
    return ex


def interval(a, kind, p, opt, half='both', kindA=None, zeroB=False):
    if half in ('both', 'A'):
        a.e("s_waitcnt vmcnt(%d) lgkmcnt(0)" % (19 if opt.get('pf') and kindA != 'none' else 16))
        a.e("s_barrier")
        ka = kind if kindA is None else kindA
        ex = groupA_extras(p)
        if ka == 'none':
            ka = None
            ex = []
        if opt.get('pf') and p == 1:
            for i, x in enumerate(pf_setup(sPfA)):
                ex.append((10 if i < 4 else 12, x))
        group(a, ka, 1, False, reads(kind, p, 0), dmaW((p + 3) % 4), ex, opt)
    if half in ('both', 'B'):
        a.e("s_waitcnt lgkmcnt(0)")
        exb = groupB_extras(p)
        if opt.get('pf'):
            exb.append((8, "s_cmp_eq_u32 %s, %d" % (sr(sWave), p)))
            exb.append((8, "s_cselect_b32 %s, %s, 0" % (sr(SRD_P + 2), sr(sPfB))))
            exb.append((13 if kind == 'G' else 15, pf_load()))
        group(a, kind, 0, zeroB, reads(kind, p, 1), dmaX(p & 1), exb, opt)


def loop(a, kind, name, opt, vswitch):
    HACK['inloop'] = 1
    a.label(name + "_top")
    interval(a, kind, 0, opt, 'A')
    a.e("s_cmp_lg_u32 %s, 1" % sr(sIter))
    a.e("s_cbranch_scc1 %s_nsx" % name)
    switchX(a)
    vswitch(a, 'X')
    a.label(name + "_nsx")
    interval(a, kind, 0, opt, 'B')
    a.label(name + "_entry")
    stamp_ts(a, opt)
    a.e("s_cmp_lg_u32 %s, 1" % sr(sIter))
    a.e("s_cbranch_scc1 %s_nsw" % name)
    switchW(a)
    vswitch(a, 'W')
    a.label(name + "_nsw")
    for p in (1, 2, 3):
        interval(a, kind, p, opt)
    a.e("s_sub_u32 %s, %s, 1" % (sr(sIter), sr(sIter)))
    a.e("s_cmp_lg_u32 %s, 0" % sr(sIter))
    a.e("s_cbranch_scc1 %s_top" % name)
    HACK['inloop'] = 0


def epi_store_block(a, blk, offs, scale=None):
    k, r = acc(blk)
    if k == 'a':
        raise RuntimeError
    if scale is not None:
        for i in range(0, 16, 2):
            a.e("v_pk_mul_f32 %s, %s, %s" % (vr(r + i, 2), vr(r + i, 2), sr(scale, 2)))
    for g in range(2):
        for i in range(4):
            a.e("v_cvt_pk_bf16_f32 %s, %s, %s" % (vr(r + 8 * g + i), vr(r + 8 * g + 2 * i), vr(r + 8 * g + 2 * i + 1)))
        so, imm = offs[g]
        a.e("buffer_store_dwordx4 %s, %s, %s, %s offen offset:%d" % (vr(r + 8 * g, 4), vr(vSt), sr(SRD_O, 4), sr(so), imm))


def epilogue_kqv(a, kind, scale=None):
    a.e("s_nop 7")
    a.e("s_nop 7")
    order = list(range(16))
    for blk in order:
        nb, tb = blk >> 1, blk & 1
        db = nb & 3
        base = (nb >> 2) * 524288 + tb * 8192
        if kind == 'V':
            o = [base + db * 1024, base + 4096 + db * 1024]
        else:
            o = [base + (db * 2) * 1024, base + (db * 2 + 1) * 1024]
        offs = []
        for g in range(2):
            hi = o[g] & ~4095
            st = sT0 + g
            if g == 0 or (o[0] & ~4095) != hi:
                a.e("s_add_u32 %s, %s, %d" % (sr(st), sr(sOb), hi))
            else:
                st = sT0
            offs.append((st, o[g] & 4095))
        if blk >= 14:
            k, r = acc(blk)
            _, rv = acc(blk - 14)
            for i in range(16):
                a.e("v_accvgpr_read_b32 %s, %s" % (vr(rv + i), ar(r + i)))
            epi_store_block(a, blk - 14, offs, scale)
        else:
            epi_store_block(a, blk, offs, scale)


def epilogue_gu(a):
    A = -2.0 * 1.4426950408889634 * 0.7978845608028654
    B = A * 0.044715
    a.e("s_mov_b32 %s, %s" % (sr(sCA), f32(A)))
    a.e("s_mov_b32 %s, %s" % (sr(sCA + 1), f32(A)))
    a.e("s_mov_b32 %s, %s" % (sr(sCC), f32(B)))
    a.e("s_mov_b32 %s, %s" % (sr(sCC + 1), f32(B)))
    a.e("v_mov_b32 v10, %s" % sr(sCA))
    a.e("v_mov_b32 v11, %s" % sr(sCA))
    a.e("s_nop 7")
    a.e("s_nop 7")
    T = [12, 14, 16, 18, 20, 22, 24, 28]
    for blk in range(14):
        nb, tb = blk >> 1, blk & 1
        _, r = acc(blk)
        o = tb * 480 * 1024 + nb * 1024
        a.e("s_add_u32 %s, %s, %d" % (sr(sT0), sr(sOb), o & ~4095))
        P = [12, 14, 16, 18]
        for i in range(4):
            a.e("v_pk_mul_f32 %s, %s, %s" % (vr(P[i], 2), vr(r + 2 * i, 2), vr(r + 2 * i, 2)))
        for i in range(4):
            a.e("v_pk_fma_f32 %s, %s, %s, v[10:11]" % (vr(P[i], 2), vr(P[i], 2), sr(sCC, 2)))
        for i in range(4):
            a.e("v_pk_mul_f32 %s, %s, %s" % (vr(P[i], 2), vr(P[i], 2), vr(r + 2 * i, 2)))
        for i in range(8):
            a.e("v_exp_f32 %s, %s" % (vr(12 + i), vr(12 + i)))
        for i in range(4):
            a.e("v_pk_mul_f32 %s, %s, %s" % (vr(r + 2 * i, 2), vr(r + 2 * i, 2), vr(r + 8 + 2 * i, 2)))
        for i in range(4):
            a.e("v_pk_add_f32 %s, %s, 1.0 op_sel_hi:[1,0]" % (vr(P[i], 2), vr(P[i], 2)))
        for i in range(8):
            a.e("v_rcp_f32 %s, %s" % (vr(12 + i), vr(12 + i)))
        a.e("s_nop 0")
        for i in range(4):
            a.e("v_pk_mul_f32 %s, %s, %s" % (vr(r + 2 * i, 2), vr(r + 2 * i, 2), vr(P[i], 2)))
        for i in range(4):
            a.e("v_cvt_pk_bf16_f32 %s, %s, %s" % (vr(r + 8 + i), vr(r + 2 * i), vr(r + 2 * i + 1)))
        a.e("buffer_store_dwordx4 %s, %s, %s, %s offen offset:%d" % (vr(r + 8, 4), vr(vSt), sr(SRD_O, 4), sr(sT0), o & 4095))


WS_STAMP = 128 << 20


def stamp(a, opt, idx, srd=SRD_O, tmp=(vT[0], vT[1], vT[3])):
    if not opt.get('stamp'):
        return
    a.e("s_memtime s[4:5]")
    a.e("s_memrealtime s[6:7]")
    a.e("s_lshl_b32 s8, s2, 8")
    a.e("s_add_u32 s8, s8, %d" % (WS_STAMP + idx * 16))
    a.e("s_waitcnt lgkmcnt(0)")
    l = a.newlabel("st")
    a.e("s_cmp_lg_u32 %s, 0" % sr(sWave))
    a.e("s_cbranch_scc1 %s" % l)
    a.e("s_mov_b64 s[10:11], exec")
    a.e("s_mov_b64 exec, 1")
    a.e("v_mov_b32 v28, s4")
    a.e("v_mov_b32 v29, s5")
    a.e("v_mov_b32 v30, s6")
    a.e("v_mov_b32 v31, s7")
    a.e("v_mov_b32 v27, 0")
    a.e("buffer_store_dwordx4 v[28:31], v27, %s, s8 offen" % sr(srd, 4))
    a.e("s_mov_b64 exec, s[10:11]")
    a.label(l)


def stamp_ts(a, opt):
    if not opt.get('ts'):
        return
    l = a.newlabel("ts")
    a.e("s_cmp_lg_u32 %s, 0" % sr(sWave))
    a.e("s_cbranch_scc1 %s" % l)
    a.e("s_memtime s[10:11]")
    a.e("s_waitcnt lgkmcnt(0)")
    a.e("s_mov_b64 exec, 1")
    a.e("v_mov_b32 v28, s10")
    a.e("v_mov_b32 v29, s11")
    a.e("v_mov_b32 v27, 0")
    a.e("s_memrealtime s[10:11]")
    a.e("buffer_store_dwordx2 v[28:29], v27, %s, s9 offen" % sr(SRD_O, 4))
    a.e("s_waitcnt lgkmcnt(0)")
    a.e("v_mov_b32 v28, s10")
    a.e("v_mov_b32 v29, s11")
    a.e("buffer_store_dwordx2 v[28:29], v27, %s, s9 offen offset:8" % sr(SRD_O, 4))
    a.e("s_add_u32 s9, s9, 16")
    a.e("s_mov_b64 exec, -1")
    a.label(l)


def gen_l1(a, name, opt):
    kernel_header(a, name)
    HACK.update(opt)
    e = a.e
    e("s_cmp_ge_u32 s2, 256")
    e("s_cbranch_scc1 %s_end" % name)
    e("s_load_dwordx16 s[16:31], s[0:1], 0")
    e("s_load_dwordx8 s[32:39], s[0:1], 64")
    e("s_load_dwordx4 s[40:43], s[0:1], 96")
    e("v_lshrrev_b32 v27, 6, v0")
    e("v_and_b32 v0, 63, v0")
    e("v_readfirstlane_b32 %s, v27" % sr(sWave))
    e("s_and_b32 %s, s2, 7" % sr(sT0))
    e("s_lshr_b32 %s, s2, 3" % sr(sT1))
    e("s_and_b32 %s, %s, 1" % (sr(sT2), sr(sT0)))
    e("s_lshl_b32 %s, %s, 2" % (sr(sT2), sr(sT2)))
    e("s_and_b32 %s, %s, 3" % (sr(sT3), sr(sT1)))
    e("s_add_u32 %s, %s, %s" % (sr(sTm), sr(sT2), sr(sT3)))
    e("s_lshr_b32 %s, %s, 1" % (sr(sT0), sr(sT0)))
    e("s_lshr_b32 %s, %s, 2" % (sr(sT2), sr(sT1)))
    e("s_lshl_b32 %s, %s, 3" % (sr(sT3), sr(sT0)))
    e("s_add_u32 %s, %s, %s" % (sr(sTn7), sr(sT3), sr(sT2)))
    e("s_and_b32 %s, %s, 3" % (sr(sT2), sr(sT2)))
    e("s_lshl_b32 %s, %s, 2" % (sr(sT3), sr(sT0)))
    e("s_add_u32 %s, %s, %s" % (sr(sTn8), sr(sT3), sr(sT2)))
    e("s_lshr_b32 %s, %s, 4" % (sr(sJob), sr(sT1)))
    e("s_mov_b32 %s, 0x20000" % sr(SRD_X + 3))
    e("s_mov_b32 %s, 0x20000" % sr(SRD_W + 3))
    e("s_mov_b32 %s, 0x20000" % sr(SRD_O + 3))
    e("s_mov_b32 %s, %d" % (sr(SRD_O + 2), WS_SIZE))
    e("s_mov_b32 %s, 8192" % sr(sCp))
    e("s_mov_b32 %s, -16384" % sr(sCm))
    e("s_mov_b32 %s, 0" % sr(sRslot))
    e("s_mul_i32 %s, %s, 24576" % (sr(sXbeg), sr(sWave)))
    e("s_add_u32 %s, %s, %d" % (sr(sXbeg), sr(sXbeg), XBASE))
    e("s_add_u32 %s, %s, 24576" % (sr(sXend), sr(sXbeg)))
    e("s_mov_b32 %s, %s" % (sr(sXdst), sr(sXbeg)))
    e("v_and_b32 v27, 31, v0")
    e("v_lshrrev_b32 v28, 5, v0")
    e("v_bfe_u32 v29, v0, 1, 3")
    e("v_lshlrev_b32 v30, 7, v27")
    e("v_add_u32 v30, %s, v30" % sr(sXbeg))
    for s in range(4):
        e("v_add_u32 v31, %d, v28" % (2 * s))
        e("v_xor_b32 v31, v31, v29")
        e("v_lshl_add_u32 %s, v31, 4, v30" % vr(vXr[s]))
    e("v_bfe_u32 v27, v0, 2, 2")
    e("v_bfe_u32 v29, v0, 4, 1")
    e("v_and_b32 v30, 3, v0")
    e("v_lshl_add_u32 v31, v28, 3, v27")
    e("v_lshlrev_b32 v30, 3, v30")
    e("v_mul_u32_u24 %s, 224, v31" % vr(vWr7))
    e("v_mul_u32_u24 v26, 7296, v29")
    e("v_add3_u32 %s, %s, v26, v30" % (vr(vWr7), vr(vWr7)))
    e("v_lshlrev_b32 v31, 9, v31")
    e("v_lshl_add_u32 v31, v29, 5, v31")
    e("v_add_u32 v31, v31, v30")
    for q in range(4):
        e("v_xor_b32 v30, %d, v27" % q)
        e("v_lshl_add_u32 %s, v30, 6, v31" % vr(vWr8[q]))
    e("v_lshrrev_b32 v27, 3, v0")
    e("s_lshl_b32 %s, %s, 6" % (sr(sT0), sr(sWave)))
    e("v_add_u32 v27, %s, v27" % sr(sT0))
    e("v_and_b32 v28, 7, v0")
    e("v_lshrrev_b32 v29, 4, v0")
    e("v_xor_b32 v28, v28, v29")
    e("v_xor_b32 v29, 4, v28")
    e("s_movk_i32 %s, 11" % sr(sT1))
    e("s_sub_u32 %s, %s, %s" % (sr(sT1), sr(sT1), sr(sJob)))
    for j in range(4):
        ch = 28 if (j & 1) == 0 else 29
        e("v_add_u32 v30, %d, v27" % (8 * j))
        e("v_lshlrev_b32 v31, 11, v30")
        e("v_lshl_add_u32 v31, v%d, 4, v31" % ch)
        e("v_subrev_u32 %s, %d, v31" % (vr(vXdN[j]), 1024 * j))
        e("v_lshlrev_b32 v31, %s, v30" % sr(sT1))
        e("v_lshl_add_u32 v31, v%d, 4, v31" % ch)
        e("v_subrev_u32 %s, %d, v31" % (vr(vXd[j]), 1024 * j))
    e("v_lshrrev_b32 v27, 5, v0")
    e("s_lshl_b32 %s, %s, 3" % (sr(sT0), sr(sWave)))
    e("v_bfe_u32 v28, v0, 2, 3")
    e("v_and_b32 v29, 3, v0")
    e("v_lshlrev_b32 v29, 4, v29")
    for j in range(4):
        e("v_add_u32 v30, %d, v27" % (2 * j))
        e("v_and_b32 v31, 3, v30")
        e("v_xor_b32 v31, v31, v28")
        e("v_add_u32 v30, %s, v30" % sr(sT0))
        e("v_lshlrev_b32 v30, 13, v30")
        e("v_lshl_add_u32 v30, v31, 6, v30")
        e("v_add_u32 v30, v30, v29")
        e("v_subrev_u32 %s, %d, v30" % (vr(vWd[j]), 1024 * j))
    e("s_and_b32 %s, %s, 1" % (sr(sT0), sr(sWave)))
    e("s_lshl_b32 %s, %s, 8" % (sr(sT1), sr(sT0)))
    e("v_add_u32 v27, %s, v0" % sr(sT1))
    for j in range(4):
        e("v_add_u32 v28, %d, v27" % (64 * j))
        e("v_mul_u32_u24 v29, 4682, v28")
        e("v_lshrrev_b32 v29, 16, v29")
        e("v_mul_u32_u24 v30, 14, v29")
        e("v_sub_u32 v30, v28, v30")
        e("v_mul_u32_u24 v29, 7168, v29")
        e("v_lshl_add_u32 v29, v30, 4, v29")
        e("v_subrev_u32 %s, %d, v29" % (vr(vWdN[j]), 1024 * j))
    e("s_lshl_b32 %s, %s, 30" % (sr(sT1), sr(sT0)))
    e("v_or_b32 %s, %s, %s" % (vr(vWdN[3]), sr(sT1), vr(vWdN[3])))
    e("s_lshr_b32 %s, %s, 1" % (sr(sT1), sr(sWave)))
    e("s_mul_i32 %s, %s, 7296" % (sr(sT2), sr(sT1)))
    e("s_lshl_b32 %s, %s, 12" % (sr(sT3), sr(sT0)))
    e("s_add_u32 s98, %s, %s" % (sr(sT2), sr(sT3)))
    e("s_cmp_eq_u32 %s, 0" % sr(sT0))
    e("s_cselect_b32 s99, s98, %d" % (14464 - 3072))
    e("s_lshl_b32 %s, %s, 12" % (sr(sWm0a), sr(sWave)))
    e("s_mov_b32 %s, %s" % (sr(sWm0b), sr(sWm0a)))
    e("s_waitcnt lgkmcnt(0)")
    e("s_mov_b32 %s, %s" % (sr(SRD_O), sr(S_WS)))
    e("s_mov_b32 %s, %s" % (sr(SRD_O + 1), sr(S_WS + 1)))
    stamp(a, opt, 0)
    e("s_lshl_b32 s9, s2, 10")
    e("s_add_u32 s9, s9, %d" % (WS_STAMP + (1 << 20)))
    stamp_ts(a, opt)
    e("s_mov_b32 %s, %s" % (sr(SRD_X), sr(S_X)))
    e("s_mov_b32 %s, %s" % (sr(SRD_X + 1), sr(S_X + 1)))
    e("s_mov_b32 %s, %d" % (sr(SRD_X + 2), 2048 * 1024 * 2))
    e("s_mov_b32 %s, %s" % (sr(SRD_W), sr(S_GW)))
    e("s_mov_b32 %s, %s" % (sr(SRD_W + 1), sr(S_GW + 1)))
    e("s_mov_b32 %s, 2048" % sr(SRD_W + 2))
    e("s_lshl_b32 %s, s2, 3" % sr(sT0))
    e("s_lshl_b32 %s, %s, 1" % (sr(sT1), sr(sWave)))
    e("s_add_u32 %s, %s, %s" % (sr(sT0), sr(sT0), sr(sT1)))
    e("s_lshl_b32 %s, %s, 11" % (sr(sT1), sr(sT0)))
    e("v_lshlrev_b32 v27, 5, v0")
    e("buffer_load_dwordx4 v[32:35], v27, %s, %s offen" % (sr(SRD_X, 4), sr(sT1)))
    e("buffer_load_dwordx4 v[36:39], v27, %s, %s offen offset:16" % (sr(SRD_X, 4), sr(sT1)))
    e("buffer_load_dwordx4 v[40:43], v27, %s, %s offen offset:2048" % (sr(SRD_X, 4), sr(sT1)))
    e("buffer_load_dwordx4 v[44:47], v27, %s, %s offen offset:2064" % (sr(SRD_X, 4), sr(sT1)))
    e("buffer_load_dwordx4 v[48:51], v27, %s, 0 offen" % sr(SRD_W, 4))
    e("buffer_load_dwordx4 v[52:55], v27, %s, 0 offen offset:16" % sr(SRD_W, 4))
    e("s_lshl_b32 s100, %s, 2" % sr(sT0))
    e("s_add_u32 s100, s100, %d" % WS_G)
    e("s_cmp_eq_u32 %s, 0" % sr(sJob))
    e("s_cbranch_scc0 %s_setB" % name)
    e("s_lshl_b32 %s, %s, 19" % (sr(sXk), sr(sTm)))
    e("s_mov_b32 %s, 65536" % sr(sXrow32))
    e("s_mov_b32 %s, %s" % (sr(SRD_W), sr(S_WQ)))
    e("s_mov_b32 %s, %s" % (sr(SRD_W + 1), sr(S_WQ + 1)))
    e("s_mov_b32 %s, %d" % (sr(SRD_W + 2), 1024 * 4096 * 2))
    e("s_mov_b32 %s, 8" % sr(sIter))
    e("s_branch %s_setC" % name)
    a.label(name + "_setB")
    e("s_mov_b32 %s, %s" % (sr(SRD_X), sr(S_CKV)))
    e("s_mov_b32 %s, %s" % (sr(SRD_X + 1), sr(S_CKV + 1)))
    e("s_mov_b32 %s, %d" % (sr(SRD_X + 2), 2048 * 512 * 2))
    e("s_lshl_b32 %s, %s, 18" % (sr(sXk), sr(sTm)))
    e("s_mov_b32 %s, 32768" % sr(sXrow32))
    e("s_mov_b32 %s, %s" % (sr(SRD_W), sr(S_WUK)))
    e("s_mov_b32 %s, %s" % (sr(SRD_W + 1), sr(S_WUK + 1)))
    e("s_mov_b32 %s, %d" % (sr(SRD_W + 2), 512 * 4096 * 2))
    e("s_mov_b32 %s, 4" % sr(sIter))
    a.label(name + "_setC")
    e("s_lshl_b32 %s, %s, 9" % (sr(sWk), sr(sTn8)))
    e("s_mov_b32 %s, %d" % (sr(sWstep), 32 * 8192))

    def set_next_gu():
        e("s_mov_b32 %s, %s" % (sr(sNXlo), sr(S_X)))
        e("s_mov_b32 %s, %s" % (sr(sNXhi), sr(S_X + 1)))
        e("s_mov_b32 %s, %d" % (sr(sNXn), 2048 * 1024 * 2))
        e("s_lshl_b32 %s, %s, 19" % (sr(sNXk), sr(sTm)))
        e("s_mov_b32 %s, 65536" % sr(sNXrow32))
        e("s_cmp_lt_u32 %s, 2" % sr(sWave))
        e("s_cselect_b32 %s, %s, %s" % (sr(sNWlo), sr(S_WG), sr(S_WU)))
        e("s_cselect_b32 %s, %s, %s" % (sr(sNWhi), sr(S_WG + 1), sr(S_WU + 1)))
        e("s_mov_b32 %s, %d" % (sr(sNWn), 1024 * 3584 * 2))
        e("s_mul_i32 %s, %s, 224" % (sr(sNWk), sr(sTn7)))
        e("s_mov_b32 %s, %d" % (sr(sNWstep), 32 * 7168))
        e("s_mov_b32 %s, s98" % sr(sNm0a))
        e("s_mov_b32 %s, s99" % sr(sNm0b))

    def set_next_v():
        e("s_mov_b32 %s, %s" % (sr(sNXlo), sr(S_CKV)))
        e("s_mov_b32 %s, %s" % (sr(sNXhi), sr(S_CKV + 1)))
        e("s_mov_b32 %s, %d" % (sr(sNXn), 2048 * 512 * 2))
        e("s_lshl_b32 %s, %s, 18" % (sr(sNXk), sr(sTm)))
        e("s_mov_b32 %s, 32768" % sr(sNXrow32))
        e("s_mov_b32 %s, %s" % (sr(sNWlo), sr(S_WUV)))
        e("s_mov_b32 %s, %s" % (sr(sNWhi), sr(S_WUV + 1)))
        e("s_mov_b32 %s, %d" % (sr(sNWn), 512 * 4096 * 2))
        e("s_lshl_b32 %s, %s, 9" % (sr(sNWk), sr(sTn8)))
        e("s_mov_b32 %s, %d" % (sr(sNWstep), 32 * 8192))
        e("s_mov_b32 %s, %s" % (sr(sNm0a), sr(sWm0a)))
        e("s_mov_b32 %s, %s" % (sr(sNm0b), sr(sWm0b)))

    def set_next_null():
        e("s_mov_b32 %s, 0" % sr(sNXn))
        e("s_mov_b32 %s, 0" % sr(sNWn))

    for x in flat_dma(dmaW(0)) + flat_dma(dmaX(0)) + flat_dma(dmaX(1)) + flat_dma(dmaW(1)) + \
            flat_dma(dmaX(0)) + flat_dma(dmaW(2)) + flat_dma(dmaX(1)):
        e(x)
    e("s_cmp_eq_u32 %s, 0" % sr(sJob))
    e("s_cbranch_scc0 %s_nB" % name)
    set_next_gu()
    e("s_branch %s_nC" % name)
    a.label(name + "_nB")
    set_next_v()
    a.label(name + "_nC")
    e("s_waitcnt vmcnt(28)")
    e("v_mov_b32 v28, 0")
    e("v_mov_b32 v29, 0")
    for i in range(8):
        e("v_dot2_f32_bf16 v28, v%d, v%d, v28" % (32 + i, 48 + i))
        e("v_dot2_f32_bf16 v29, v%d, v%d, v29" % (40 + i, 48 + i))
    e("s_nop 2")
    for mode in ("row_shr:1", "row_shr:2", "row_shr:4", "row_shr:8", "row_bcast:15 row_mask:0xa", "row_bcast:31 row_mask:0xc"):
        rm = "" if "row_mask" in mode else " row_mask:0xf"
        e("v_add_f32_dpp v28, v28, v28 %s%s bank_mask:0xf" % (mode, rm))
        e("v_add_f32_dpp v29, v29, v29 %s%s bank_mask:0xf" % (mode, rm))
        e("s_nop 0")
    e("v_mul_f32 v28, %s, v28" % f32(-1.4426950408889634))
    e("v_mul_f32 v29, %s, v29" % f32(-1.4426950408889634))
    e("v_exp_f32 v28, v28")
    e("v_exp_f32 v29, v29")
    e("s_nop 0")
    e("v_add_f32 v28, 1.0, v28")
    e("v_add_f32 v29, 1.0, v29")
    e("v_rcp_f32 v28, v28")
    e("v_rcp_f32 v29, v29")
    e("v_cmp_eq_u32 vcc, 63, v0")
    e("v_mov_b32 v30, 0")
    e("s_and_saveexec_b64 s[76:77], vcc")
    e("buffer_store_dwordx2 v[28:29], v30, %s, s100 offen" % sr(SRD_O, 4))
    e("s_mov_b64 exec, s[76:77]")
    e("s_lshl_b32 %s, %s, 14" % (sr(sT0), sr(sWave)))
    e("v_lshlrev_b32 %s, 4, v0" % vr(vSt))
    e("v_add_u32 %s, %s, %s" % (vr(vSt), sr(sT0), vr(vSt)))

    def vsw_k(a, which):
        if which == 'W':
            l = a.newlabel("vsw")
            a.e("s_cmp_lg_u32 %s, 0" % sr(sJob))
            a.e("s_cbranch_scc1 %s" % l)
            for j in range(4):
                a.e("v_mov_b32 %s, %s" % (vr(vWd[j]), vr(vWdN[j])))
            a.label(l)

    def vsw_v(a, which):
        for j in range(4):
            if which == 'W':
                a.e("v_mov_b32 %s, %s" % (vr(vWd[j]), vr(vWdN[j])))
            else:
                a.e("v_mov_b32 %s, %s" % (vr(vXd[j]), vr(vXdN[j])))

    def vsw_g(a, which):
        pass

    if opt.get('pf'):
        pf_lists(a, opt['pf'][0], opt['pf'][1])
        e("s_mov_b32 %s, 0x20000" % sr(SRD_P + 3))
        e("s_lshl_b32 %s, s2, 2" % sr(sPfOff))
        e("s_add_u32 %s, %s, %s" % (sr(sPfOff), sr(sPfOff), sr(sWave)))
        e("s_lshl_b32 %s, %s, 12" % (sr(sPfOff), sr(sPfOff)))
        e("v_lshlrev_b32 %s, 6, v0" % vr(vPf))
        e("s_mov_b32 %s, %s" % (sr(SRD_P), sr(S_X)))
        e("s_mov_b32 %s, %s" % (sr(SRD_P + 1), sr(S_X + 1)))
        e("s_mov_b32 %s, 0" % sr(SRD_P + 2))
        e("s_mov_b32 %s, 0" % sr(sPfB))
        e("s_mov_b32 %s, 0" % sr(sT3))
        e(pf_load())
    interval(a, 'K', 0, opt, 'A', kindA='none')
    stamp(a, opt, 1)
    interval(a, 'K', 0, opt, 'B', zeroB=True)
    e("s_branch %s_k_entry" % name)
    loop(a, 'K', name + "_k", opt, vsw_k)
    stamp(a, opt, 2)
    e("s_cmp_lg_u32 %s, 0" % sr(sJob))
    e("s_cbranch_scc1 %s_k2v" % name)
    interval(a, 'G', 0, opt, 'A', kindA='K')
    qs = 1.4426950408889634 / (128.0 ** 0.5)
    e("s_mov_b32 %s, %s" % (sr(sCA), f32(qs)))
    e("s_mov_b32 %s, %s" % (sr(sCA + 1), f32(qs)))
    e("s_lshl_b32 %s, %s, 20" % (sr(sOb), sr(sTn8)))
    e("s_lshl_b32 %s, %s, 16" % (sr(sT0), sr(sTm)))
    e("s_add_u32 %s, %s, %s" % (sr(sOb), sr(sOb), sr(sT0)))
    if WS_Q:
        e("s_add_u32 %s, %s, %d" % (sr(sOb), sr(sOb), WS_Q))
    epilogue_kqv(a, 'K', scale=sCA)
    e("s_branch %s_gu_start" % name)
    a.label(name + "_k2v")
    interval(a, 'V', 0, opt, 'A', kindA='K')
    e("s_lshl_b32 %s, %s, 20" % (sr(sOb), sr(sTn8)))
    e("s_lshl_b32 %s, %s, 16" % (sr(sT0), sr(sTm)))
    e("s_add_u32 %s, %s, %s" % (sr(sOb), sr(sOb), sr(sT0)))
    e("s_add_u32 %s, %s, %d" % (sr(sOb), sr(sOb), WS_K))
    epilogue_kqv(a, 'K')
    stamp(a, opt, 3)
    set_next_gu()
    e("s_mov_b32 %s, 4" % sr(sIter))
    interval(a, 'V', 0, opt, 'B', zeroB=True)
    e("s_branch %s_v_entry" % name)
    loop(a, 'V', name + "_v", opt, vsw_v)
    stamp(a, opt, 4)
    interval(a, 'G', 0, opt, 'A', kindA='V')
    e("s_add_u32 %s, %s, %d" % (sr(sOb), sr(sOb), WS_V - WS_K))
    epilogue_kqv(a, 'V')
    a.label(name + "_gu_start")
    stamp(a, opt, 5)
    set_next_null()
    if opt.get('pf'):
        pf_lists(a, opt['pf'][2], opt['pf'][3])
    e("s_mov_b32 %s, 8" % sr(sIter))
    interval(a, 'G', 0, opt, 'B', zeroB=True)
    e("s_branch %s_g_entry" % name)
    loop(a, 'G', name + "_g", opt, vsw_g)
    stamp(a, opt, 6)
    e("s_waitcnt lgkmcnt(0)")
    for m in mfmas('G', 1):
        e(m)
    e("s_mul_i32 %s, %s, %d" % (sr(sOb), sr(sTm), 8 * 480 * 1024))
    e("s_mul_i32 %s, %s, 7168" % (sr(sT0), sr(sTn7)))
    e("s_add_u32 %s, %s, %s" % (sr(sOb), sr(sOb), sr(sT0)))
    e("s_add_u32 %s, %s, %d" % (sr(sOb), sr(sOb), WS_A3 + 256 * 1024))
    e("s_mul_i32 %s, %s, %d" % (sr(sT0), sr(sWave), 2 * 480 * 1024))
    e("v_lshlrev_b32 %s, 4, v0" % vr(vSt))
    e("v_add_u32 %s, %s, %s" % (vr(vSt), sr(sT0), vr(vSt)))
    epilogue_gu(a)
    stamp(a, opt, 7)
    if opt.get('stamp'):
        e("s_waitcnt vmcnt(0)")
    stamp(a, opt, 8)
    a.label(name + "_end")
    e("s_endpgm")
    return kernel_desc(name, 368, 102, 256)
```

```python
from asmlib import *
from l1 import WS_Q, WS_K, WS_V, WS_A3, WS_G, WS_SIZE, f32, WS_STAMP

LDS = 163840
NSLOT = 5

S_WS = 4
SRD = 8
sWave, sHead, sPair = 12, 13, 14
sQb = 15
sN = 16
sT = 17
sThr = 18
sLoop = 19
sRd = 20
sWr = 21
sWrEnd = 22
sDT, sDNT = 23, 24
sDK, sDV = 25, 26
sKb, sVb = 27, 28
sNTB = 29
sT0, sT1, sT2 = 30, 31, 32
sBlk = 33
sMaskB = 34
sTHR = 35
sWrBeg = 36
sNEG = 37

vLane16 = 1
vDma = 2
vRd = 3
vDl = 4
vNegm = 5
vL = 6
vLs = 7
vG = 8
vTmp = [10, 11, 12, 13, 14, 15]
vE = [16, 17, 18, 19, 20, 21, 22, 23]
vC = 32
vS = [48, 64]
vP = [80, 88]
vO = 96
aQ = 0
aQ2 = 32
aK = 64
aV = 96


def stamp(a, opt, idx):
    if not opt.get('stamp'):
        return
    a.e("s_memtime s[40:41]")
    a.e("s_memrealtime s[42:43]")
    a.e("s_lshl_b32 s44, s2, 8")
    a.e("s_add_u32 s44, s44, %d" % (WS_STAMP + idx * 16))
    a.e("s_waitcnt lgkmcnt(0)")
    l = a.newlabel("st")
    a.e("s_cmp_lg_u32 %s, 0" % sr(sWave))
    a.e("s_cbranch_scc1 %s" % l)
    a.e("s_mov_b64 s[46:47], exec")
    a.e("s_mov_b64 exec, 1")
    for i in range(4):
        a.e("v_mov_b32 v%d, s%d" % (28 + i, 40 + i))
    a.e("v_mov_b32 v27, 0")
    a.e("buffer_store_dwordx4 v[28:31], v27, %s, s44 offen" % sr(SRD, 4))
    a.e("s_mov_b64 exec, s[46:47]")
    a.label(l)


def stamp_ts(a, opt):
    if not opt.get('ts'):
        return
    l = a.newlabel("ts")
    a.e("s_cmp_lg_u32 %s, 0" % sr(sWave))
    a.e("s_cbranch_scc1 %s" % l)
    a.e("s_memtime s[40:41]")
    a.e("s_memrealtime s[42:43]")
    a.e("s_waitcnt lgkmcnt(0)")
    a.e("s_mov_b64 s[46:47], exec")
    a.e("s_mov_b64 exec, 1")
    for i in range(4):
        a.e("v_mov_b32 v%d, s%d" % (28 + i, 40 + i))
    a.e("v_mov_b32 v27, 0")
    a.e("buffer_store_dwordx4 v[28:31], v27, %s, s45 offen" % sr(SRD, 4))
    a.e("s_add_u32 s45, s45, 16")
    a.e("s_mov_b64 exec, s[46:47]")
    a.label(l)


def qk_mfmas(par):
    out = []
    for ks in range(8):
        c = vr(vC, 16) if ks == 0 else vr(vS[par], 16)
        out.append("v_mfma_f32_32x32x16_bf16 %s, %s, %s, %s" % (vr(vS[par], 16), ar(aK + 4 * ks, 4), ar(aQ + 4 * ks, 4), c))
    return out


def pv_mfmas(par):
    out = []
    for g in range(2):
        for db in range(4):
            o = vr(vO + 16 * db, 16)
            out.append("v_mfma_f32_32x32x16_bf16 %s, %s, %s, %s" % (o, ar(aV + 4 * (g * 4 + db), 4), vr(vP[par] + 4 * g, 4), o))
    return out


def k_reads(sb):
    return ["ds_read_b128 %s, %s offset:%d" % (ar(aK + 4 * ks, 4), vr(vRd), sb * 8192 + ks * 1024) for ks in range(8)]


def v_reads(sb):
    return ["ds_read_b128 %s, %s offset:%d" % (ar(aV + 4 * j, 4), vr(vRd), 16384 + sb * 8192 + j * 1024) for j in range(8)]


def sm_items(par):
    it = []
    S = vS[par]
    P = vP[par]
    pend = []
    for r in range(16):
        e = vE[r % 8]
        it.append((8, "v_exp_f32 %s, %s" % (vr(e), vr(S + r))))
        it.extend(pend)
        pend = []
        if r == 1:
            pend.append((4, "v_add_f32 %s, %s, %s" % (vr(vLs), vr(vE[0]), vr(vE[1]))))
        elif r > 1:
            pend.append((4, "v_add_f32 %s, %s, %s" % (vr(vLs), vr(vLs), vr(e))))
        if r & 1:
            pend.append((4, "v_cvt_pk_bf16_f32 %s, %s, %s" % (vr(P + (r >> 1)), vr(vE[(r - 1) % 8]), vr(e))))
    pend.insert(0, (4, "s_nop 0"))
    it.extend(pend)
    it.append((4, "v_cmp_lt_f32 vcc, %s, %s" % (sr(sTHR), vr(vLs))))
    return it


def dma_items(which):
    it = []
    if which == 'K':
        it.append("s_mov_b32 m0, %s" % sr(sWr))
    else:
        it.append("s_add_u32 m0, %s, 16384" % sr(sWr))
    so = sDK if which == 'K' else sDV
    d = ["buffer_load_dwordx4 %s, %s, %s offen offset:%d lds" % (vr(vDma), sr(SRD, 4), sr(so), j * 1024) for j in range(4)]
    return it, d


def dma_advance():
    return [
        "s_add_u32 %s, %s, 32768" % (sr(sWr), sr(sWr)),
        "s_cmp_eq_u32 %s, %s" % (sr(sWr), sr(sWrEnd)),
        "s_cselect_b32 %s, %s, %s" % (sr(sWr), sr(sWrBeg), sr(sWr)),
        "s_add_u32 %s, %s, 1" % (sr(sDT), sr(sDT)),
        "s_cmp_gt_u32 %s, %s" % (sr(sDT), sr(sDNT)),
        "s_cselect_b32 %s, 0, %s" % (sr(sDT), sr(sDT)),
        "s_cselect_b32 %s, %s, %s" % (sr(sDNT), sr(sNTB), sr(sDNT)),
        "s_sub_u32 %s, %s, 1" % (sr(sT0), sr(sDNT)),
        "s_min_u32 %s, %s, %s" % (sr(sT0), sr(sT0), sr(sDT)),
        "s_lshl_b32 %s, %s, 14" % (sr(sT0), sr(sT0)),
        "s_add_u32 %s, %s, %s" % (sr(sDK), sr(sT0), sr(sKb)),
        "s_max_u32 %s, %s, 1" % (sr(sT0), sr(sDT)),
        "s_lshl_b32 %s, %s, 14" % (sr(sT0), sr(sT0)),
        "s_add_u32 %s, %s, %s" % (sr(sDV), sr(sT0), sr(sVb)),
    ]


def rd_advance():
    return [
        "s_add_u32 %s, %s, 32768" % (sr(sRd), sr(sRd)),
        "s_cmp_eq_u32 %s, %d" % (sr(sRd), NSLOT * 32768),
        "s_cselect_b32 %s, 0, %s" % (sr(sRd), sr(sRd)),
    ]


def stage_sched(par, qk=True, pv=True, sm=True, kr=True, vr_=True, addl=True, first_half_extra=None):
    mf = (qk_mfmas(par ^ 1) if qk else [None] * 8) + (pv_mfmas(par ^ 1) if pv else [None] * 8)
    fill = {g: [] for g in range(-1, 16)}
    used = {g: 0 for g in range(-1, 16)}

    def put(g, s, c=4):
        fill[g].append(s)
        used[g] += c
    pre = {g: [] for g in range(16)}
    vsb = 1 if par == 0 else 0
    ksb = 0 if par == 0 else 1
    if vr_:
        for j, r in enumerate(v_reads(vsb)):
            put(j, r)
    if kr:
        for j, r in enumerate(k_reads(ksb)):
            put(8 + j, r)
    if qk:
        pre[0].append("s_waitcnt lgkmcnt(4)")
        pre[4].append("s_waitcnt lgkmcnt(%d)" % (4 if vr_ else 0))
    if pv:
        pre[8].append("s_waitcnt lgkmcnt(4)")
        pre[12].append("s_waitcnt lgkmcnt(%d)" % (4 if kr else 0))
    for g in (4, 8, 12):
        if pre[g]:
            used[g - 1] += 4
    if addl:
        put(0, "v_add_f32 %s, %s, %s" % (vr(vL), vr(vL), vr(vLs)))
    if par == 0:
        m0, d = dma_items('K')
        put(8, m0[0])
        for j in range(4):
            put(9 + 2 * j, d[j])
    else:
        m0, d = dma_items('V')
        put(0, m0[0])
        for j in range(4):
            put(1 + 2 * j, d[j])
        adv = dma_advance()
        put(9, adv[0]); put(9, adv[1]); put(9, adv[2])
        put(11, adv[3]); put(11, adv[4]); put(11, adv[5]); put(11, adv[6])
        put(13, adv[7]); put(13, adv[8]); put(13, adv[9]); put(13, adv[10])
        put(14, adv[11]); put(14, adv[12]); put(14, adv[13])
    if par == 0:
        for x in rd_advance():
            put(6, x)
    if sm:
        g = 0
        for c, s in sm_items(par):
            while g < 15 and used[g] + c > 24:
                g += 1
            put(g, s, c)
    put(15, "s_cmp_ge_u32 %s, %s" % (sr(sT), sr(sThr)))
    return mf, fill, pre


HACK = {}


def emit_half(a, sched, lo, hi):
    mf, fill, pre = sched
    for g in range(lo, hi):
        for s in pre[g]:
            a.e(s)
        if mf[g]:
            a.e(mf[g])
        for s in fill[g]:
            if HACK.get('nodma') and s.startswith('buffer_load'):
                continue
            if HACK.get('noread') and s.startswith('ds_read'):
                continue
            if HACK.get('noexp') and s.startswith('v_exp'):
                continue
            if HACK.get('nosm_after') and lo == 8 and g < 8 + HACK['nosm_after'] and (s.startswith('v_exp') or s.startswith('v_add_f32') or s.startswith('v_cvt')):
                continue
            if HACK.get('nosm_before') and hi == 8 and (s.startswith('v_exp') or s.startswith('v_add_f32') or s.startswith('v_cvt')):
                continue
            if HACK.get('nosm') and (s.startswith('v_exp') or s.startswith('v_add_f32') or s.startswith('v_cvt')):
                continue
            a.e(s)


def barrier(a):
    a.e("s_waitcnt vmcnt(16)")
    if not HACK.get('nobar'):
        a.e("s_barrier")
    a.e("v_add_u32 %s, %s, %s" % (vr(vRd), sr(sRd), vr(vLane16)))


def maskprep(a):
    e = a.e
    e("s_lshl_b32 %s, %s, 5" % (sr(sT1), sr(sT1)))
    e("s_sub_i32 %s, %s, %s" % (sr(sT1), sr(sMaskB), sr(sT1)))
    e("v_add_u32 %s, %s, %s" % (vr(vTmp[0]), sr(sT1), vr(vDl)))
    e("v_mov_b32 %s, %s" % (vr(vTmp[1]), sr(sNEG)))
    for r in range(16):
        kc = 8 * (r >> 2) + (r & 3)
        sp = 48 + 2 * (r & 3)
        e("v_cmp_gt_i32 %s, %d, %s" % (sr(sp, 2), kc, vr(vTmp[0])))
        if (r & 3) == 3:
            for q in range(4):
                rr = r - 3 + q
                e("v_cndmask_b32 %s, %s, %s, %s" % (vr(vC + rr), vr(vNegm), vr(vTmp[1]), sr(48 + 2 * q, 2)))


def stage_end(a, par, name, handlers):
    ret = a.newlabel(name + "_ret")
    sp = a.newlabel(name + "_sp")
    sl = a.newlabel(name + "_sl")
    a.e("s_cbranch_scc1 %s" % sp)
    a.e("s_cbranch_vccnz %s" % sl)
    a.label(ret)
    a.e("s_add_u32 %s, %s, 1" % (sr(sT), sr(sT)))
    handlers.append((par, sp, sl, ret))


def emit_handler(a, par, sp, sl, ret):
    e = a.e
    S = vS[par]
    Sn = vS[par ^ 1]
    P = vP[par]
    mask = a.newlabel("hmask")
    common = a.newlabel("hcommon")
    init = a.newlabel("hinit")
    a.label(sp)
    e("s_cmp_eq_u32 %s, -1" % sr(sT))
    e("s_cbranch_scc1 %s" % sl)
    e("s_cbranch_vccz %s" % mask)
    a.label(sl)
    t0, t1, t2, t3 = vTmp[0], vTmp[1], vTmp[2], vTmp[3]
    e("v_max3_f32 %s, %s, %s, %s" % (vr(t0), vr(S), vr(S + 1), vr(S + 2)))
    for r in range(3, 15, 2):
        e("v_max3_f32 %s, %s, %s, %s" % (vr(t0), vr(t0), vr(S + r), vr(S + r + 1)))
    e("v_max_f32 %s, %s, %s" % (vr(t0), vr(t0), vr(S + 15)))
    e("v_mov_b32 %s, %s" % (vr(t1), vr(t0)))
    e("s_nop 1")
    e("v_permlane32_swap_b32 %s, %s" % (vr(t0), vr(t1)))
    e("s_nop 1")
    e("v_max_f32 %s, %s, %s" % (vr(t0), vr(t0), vr(t1)))
    e("s_cmp_eq_u32 %s, -1" % sr(sT))
    e("s_cbranch_scc1 %s" % common)
    e("v_max_f32 %s, 0, %s" % (vr(t0), vr(t0)))
    e("v_exp_f32 %s, -%s" % (vr(t1), vr(t0)))
    e("s_nop 0")
    e("v_mul_f32 %s, %s, %s" % (vr(vL), vr(vL), vr(t1)))
    for i in range(64):
        e("v_mul_f32 %s, %s, %s" % (vr(vO + i), vr(vO + i), vr(t1)))
    a.label(common)
    e("v_sub_f32 %s, %s, %s" % (vr(vNegm), vr(vNegm), vr(t0)))
    for r in range(16):
        e("v_sub_f32 %s, %s, %s" % (vr(Sn + r), vr(Sn + r), vr(t0)))
    for r in range(16):
        e("v_sub_f32 %s, %s, %s" % (vr(S + r), vr(S + r), vr(t0)))
    for r in range(16):
        e("v_exp_f32 %s, %s" % (vr(S + r), vr(S + r)))
    e("v_add_f32 %s, %s, %s" % (vr(vLs), vr(S), vr(S + 1)))
    for r in range(2, 16):
        e("v_add_f32 %s, %s, %s" % (vr(vLs), vr(vLs), vr(S + r)))
    for r in range(8):
        e("v_cvt_pk_bf16_f32 %s, %s, %s" % (vr(P + r), vr(S + 2 * r), vr(S + 2 * r + 1)))
    a.label(mask)
    e("s_add_u32 %s, %s, 3" % (sr(sT1), sr(sT)))
    maskprep(a)
    e("s_branch %s" % ret)


def gen_l2(a, name, opt):
    kernel_header(a, name)
    HACK.update(opt)
    e = a.e
    handlers = []
    e("s_cmp_ge_u32 s2, 256")
    e("s_cbranch_scc1 %s_end" % name)
    e("s_load_dwordx2 s[4:5], s[0:1], 104")
    e("s_load_dwordx2 s[56:57], s[0:1], 40")
    e("s_load_dwordx2 s[60:61], s[0:1], 72")
    e("v_lshrrev_b32 v10, 6, v0")
    e("v_and_b32 v0, 63, v0")
    e("v_readfirstlane_b32 %s, v10" % sr(sWave))
    e("s_and_b32 %s, s2, 7" % sr(sT0))
    e("s_lshr_b32 %s, s2, 3" % sr(sT1))
    e("s_and_b32 %s, %s, 7" % (sr(sPair), sr(sT1)))
    e("s_lshr_b32 %s, %s, 3" % (sr(sT1), sr(sT1)))
    e("s_lshl_b32 %s, %s, 2" % (sr(sHead), sr(sT0)))
    e("s_add_u32 %s, %s, %s" % (sr(sHead), sr(sHead), sr(sT1)))
    e("s_mov_b32 %s, %d" % (sr(SRD + 2), WS_SIZE))
    e("s_mov_b32 %s, 0x20000" % sr(SRD + 3))
    e("s_mov_b32 %s, %s" % (sr(sTHR), f32(4096.0)))
    e("s_mov_b32 %s, %s" % (sr(sNEG), f32(-1e30)))
    e("v_lshlrev_b32 %s, 4, v0" % vr(vLane16))
    e("s_lshl_b32 %s, %s, 12" % (sr(sWrBeg), sr(sWave)))
    e("v_add_u32 %s, %s, %s" % (vr(vDma), sr(sWrBeg), vr(vLane16)))
    e("s_mov_b32 %s, %s" % (sr(sWr), sr(sWrBeg)))
    e("s_add_u32 %s, %s, %d" % (sr(sWrEnd), sr(sWrBeg), NSLOT * 32768))
    e("s_mov_b32 %s, 0" % sr(sRd))
    e("v_and_b32 v10, 31, v0")
    e("v_lshrrev_b32 v11, 5, v0")
    e("v_lshlrev_b32 v11, 2, v11")
    e("v_sub_u32 %s, v10, v11" % vr(vDl))
    e("s_lshl_b32 %s, %s, 19" % (sr(sT0), sr(sHead)))
    e("s_add_u32 %s, %s, %d" % (sr(sKb), sr(sT0), WS_K))
    e("s_add_u32 %s, %s, %d" % (sr(sVb), sr(sT0), WS_V - 16384))
    e("s_sub_u32 %s, 15, %s" % (sr(sQb), sr(sPair)))
    e("s_add_u32 %s, %s, 1" % (sr(sDNT), sr(sQb)))
    e("s_lshl_b32 %s, %s, 1" % (sr(sDNT), sr(sDNT)))
    e("s_add_u32 %s, %s, 1" % (sr(sNTB), sr(sPair)))
    e("s_lshl_b32 %s, %s, 1" % (sr(sNTB), sr(sNTB)))
    e("s_mov_b32 %s, 0" % sr(sDT))
    e("s_mov_b32 %s, %s" % (sr(sDK), sr(sKb)))
    e("s_add_u32 %s, %s, 16384" % (sr(sDV), sr(sVb)))
    e("s_mov_b32 %s, 0" % sr(sBlk))
    e("s_waitcnt lgkmcnt(0)")
    e("s_mov_b32 %s, s4" % sr(SRD))
    e("s_mov_b32 %s, s5" % sr(SRD + 1))
    e("s_mov_b32 s58, %d" % (4096 * 2048))
    e("s_mov_b32 s59, 0x20000")
    e("s_lshl_b32 s62, s2, 2")
    e("s_add_u32 s62, s62, %s" % sr(sWave))
    e("s_lshl_b32 s62, s62, 13")
    e("s_add_u32 s63, s62, 4096")
    e("v_lshlrev_b32 v24, 6, v0")
    stamp(a, opt, 0)
    e("s_lshl_b32 s45, s2, 10")
    e("s_add_u32 s45, s45, %d" % (WS_STAMP + (2 << 20)))
    stamp_ts(a, opt)

    def dma_interval():
        for w in ('K', 'V'):
            m0, d = dma_items(w)
            e(m0[0])
            e("s_nop 0")
            for x in d:
                e(x)
        for x in dma_advance():
            e(x)
    def qload(areg, qb_sgpr):
        e("s_lshl_b32 %s, %s, 2" % (sr(sT1), sr(qb_sgpr)))
        e("s_add_u32 %s, %s, %s" % (sr(sT1), sr(sT1), sr(sWave)))
        e("s_lshl_b32 %s, %s, 13" % (sr(sT2), sr(sT1)))
        e("s_lshl_b32 %s, %s, 19" % (sr(sT0), sr(sHead)))
        e("s_add_u32 %s, %s, %s" % (sr(sT2), sr(sT2), sr(sT0)))
        if WS_Q:
            e("s_add_u32 %s, %s, %d" % (sr(sT2), sr(sT2), WS_Q))
        e("s_add_u32 %s, %s, 4096" % (sr(sT0), sr(sT2)))
        for ks in range(8):
            e("buffer_load_dwordx4 %s, %s, %s, %s offen offset:%d" % (
                ar(areg + 4 * ks, 4), vr(vLane16), sr(SRD, 4), sr(sT2 if ks < 4 else sT0), (ks & 3) * 1024))
        e("s_lshl_b32 %s, %s, 7" % (sr(sT1), sr(sT1)))
        e("s_add_u32 %s, %s, %d" % (sr(sT1), sr(sT1), WS_G))
    e("v_lshlrev_b32 v10, 2, v10")
    qload(aQ, sQb)
    e("buffer_load_dword %s, v10, %s, %s offen" % (vr(vG), sr(SRD, 4), sr(sT1)))
    dma_interval()
    dma_interval()
    dma_interval()
    qload(aQ2, sPair)
    e("buffer_load_dword %s, v10, %s, %s offen" % (vr(vG + 1), sr(SRD, 4), sr(sT1)))
    e("s_waitcnt vmcnt(25)")
    a.label(name + "_blk")
    e("s_add_u32 %s, %s, 1" % (sr(sN), sr(sQb)))
    e("s_lshl_b32 %s, %s, 1" % (sr(sLoop), sr(sN)))
    e("s_lshl_b32 %s, %s, 2" % (sr(sN), sr(sN)))
    e("s_sub_u32 %s, %s, 1" % (sr(sLoop), sr(sLoop)))
    e("s_max_u32 %s, %s, 7" % (sr(sThr), sr(sN)))
    e("s_sub_u32 %s, %s, 7" % (sr(sThr), sr(sThr)))
    e("s_add_u32 %s, %s, %s" % (sr(sMaskB), sr(sN), sr(sWave)))
    e("s_sub_u32 %s, %s, 4" % (sr(sMaskB), sr(sMaskB)))
    e("s_lshl_b32 %s, %s, 5" % (sr(sMaskB), sr(sMaskB)))
    e("s_mov_b32 %s, -1" % sr(sT))
    e("v_mov_b32 %s, 0" % vr(vNegm))
    e("v_mov_b32 %s, 0" % vr(vL))
    e("v_mov_b32 %s, 0" % vr(vLs))
    barrier(a)
    for r in k_reads(0):
        e(r)
    m0, d = dma_items('K')
    e(m0[0])
    e("s_mov_b32 %s, 0" % sr(sT1))
    for x in d:
        e(x)
    if opt.get('pf', 1):
        e("buffer_load_dword v25, v24, s[56:59], s62 offen")
        e("buffer_load_dword v26, v24, s[56:59], s63 offen")
        e("s_mov_b32 s56, s60")
        e("s_mov_b32 s57, s61")
        e("s_mov_b32 s58, %d" % (3584 * 2048))
    maskprep(a)
    for i in range(8):
        e("v_mov_b32 %s, 0" % vr(vP[1] + i))
    e("s_waitcnt lgkmcnt(0)")
    q0 = qk_mfmas(0)
    kr1 = k_reads(1)
    m0, d = dma_items('V')
    e(m0[0])
    for i in range(8):
        e(q0[i])
        e(kr1[i])
        if i < 4:
            e(d[i])
        for j in range(4):
            e("v_mov_b32 %s, 0" % vr(vO + 4 * i + j))
    for x in dma_advance():
        e(x)
    e("s_mov_b32 %s, 1" % sr(sT1))
    maskprep(a)
    e("s_waitcnt lgkmcnt(0)")
    q1 = qk_mfmas(1)
    vr1 = v_reads(1)
    for i in range(8):
        e(q1[i])
        e(vr1[i])
        for j in range(4):
            e("v_mov_b32 %s, 0" % vr(vO + 32 + 4 * i + j))
    for x in rd_advance():
        e(x)
    stamp(a, opt, 1)
    ev = stage_sched(0)
    od = stage_sched(1)
    a.label(name + "_loop")
    stamp_ts(a, opt)
    barrier(a)
    emit_half(a, ev, 8, 16)
    stage_end(a, 0, name, handlers)
    emit_half(a, od, 0, 16)
    stage_end(a, 1, name, handlers)
    emit_half(a, ev, 0, 8)
    e("s_sub_u32 %s, %s, 1" % (sr(sLoop), sr(sLoop)))
    e("s_cmp_lg_u32 %s, 0" % sr(sLoop))
    e("s_cbranch_scc1 %s_loop" % name)
    ev2 = stage_sched(0, kr=False)
    od2 = stage_sched(1, qk=False, kr=False)
    barrier(a)
    emit_half(a, ev2, 8, 16)
    stage_end(a, 0, name, handlers)
    emit_half(a, od2, 0, 16)
    stage_end(a, 1, name, handlers)
    for r in v_reads(1):
        e(r)
    e("v_add_f32 %s, %s, %s" % (vr(vL), vr(vL), vr(vLs)))
    for x in rd_advance():
        e(x)
    e("v_mov_b32 %s, %s" % (vr(vTmp[0]), vr(vL)))
    e("s_nop 1")
    e("v_permlane32_swap_b32 %s, %s" % (vr(vTmp[0]), vr(vL)))
    e("s_nop 1")
    e("v_add_f32 %s, %s, %s" % (vr(vL), vr(vL), vr(vTmp[0])))
    e("v_rcp_f32 %s, %s" % (vr(vL), vr(vL)))
    pv = pv_mfmas(1)
    e("s_waitcnt lgkmcnt(4)")
    for i in range(4):
        e(pv[i])
    e("s_waitcnt lgkmcnt(0)")
    for i in range(4, 8):
        e(pv[i])
    e("v_mul_f32 %s, %s, %s" % (vr(vTmp[0]), vr(vL), vr(vG)))
    e("v_mov_b32 %s, %s" % (vr(vTmp[1]), vr(vTmp[0])))
    e("s_lshl_b32 %s, %s, 2" % (sr(sT1), sr(sQb)))
    e("s_add_u32 %s, %s, %s" % (sr(sT1), sr(sT1), sr(sWave)))
    e("s_mul_i32 %s, %s, %d" % (sr(sT1), sr(sT1), 480 * 1024))
    e("s_lshl_b32 %s, %s, 13" % (sr(sT2), sr(sHead)))
    e("s_add_u32 %s, %s, %s" % (sr(sT1), sr(sT1), sr(sT2)))
    e("s_add_u32 %s, %s, %d" % (sr(sT1), sr(sT1), WS_A3))
    e("s_add_u32 %s, %s, 4096" % (sr(sT2), sr(sT1)))
    stamp(a, opt, 2)
    e("s_nop 3")
    for db in range(4):
        r = vO + 16 * db
        for i in range(0, 16, 2):
            e("v_pk_mul_f32 %s, %s, %s" % (vr(r + i, 2), vr(r + i, 2), vr(vTmp[0], 2)))
        for g in range(2):
            for i in range(4):
                e("v_cvt_pk_bf16_f32 %s, %s, %s" % (vr(r + 8 * g + i), vr(r + 8 * g + 2 * i), vr(r + 8 * g + 2 * i + 1)))
            fi = db * 2 + g
            e("buffer_store_dwordx4 %s, %s, %s, %s offen offset:%d" % (
                vr(r + 8 * g, 4), vr(vLane16), sr(SRD, 4), sr(sT1 if fi < 4 else sT2), (fi & 3) * 1024))
    e("s_cmp_lg_u32 %s, 0" % sr(sBlk))
    e("s_cbranch_scc1 %s_fin" % name)
    e("s_mov_b32 %s, 1" % sr(sBlk))
    e("s_mov_b32 %s, %s" % (sr(sQb), sr(sPair)))
    for i in range(32):
        e("v_accvgpr_mov_b32 %s, %s" % (ar(aQ + i), ar(aQ2 + i)))
    e("v_mov_b32 %s, %s" % (vr(vG), vr(vG + 1)))
    e("s_branch %s_blk" % name)
    a.label(name + "_fin")
    stamp(a, opt, 3)
    a.label(name + "_end")
    e("s_endpgm")
    for h in handlers:
        emit_handler(a, *h)
    return kernel_desc(name, 160 + 128, 72, 160)
```

```python
from asmlib import *
from l1 import WS_A3, WS_G, WS_P, WS_SIZE, f32, WS_STAMP

LDS = 131072

SRD_WS, SRD_W, SRD_OUT, SRD_DBG = 8, 12, 16, 20
sWave, sTm, sTn, sRole = 24, 25, 26, 27
sXk, sWk, sIter, sM0 = 28, 29, 30, 31
sT0, sT1, sT2, sTile = 32, 33, 34, 35
S_WO, S_WD, S_OUT, S_DBG, S_WS = 40, 44, 48, 50, 52

vX = [1, 2, 3, 4]
vWd = [5, 6, 7, 8]
vWr = [9, 10, 11, 12]
vL16 = 13
vT = [14, 15, 16, 17, 18, 19]
vWF = 32
vTMP = 64
vACC = 128
aACC = 0
aX = 128


HACK = {}


def acc(nb, tb):
    if tb < 2:
        return ('v', vACC + 16 * (tb * 4 + nb))
    return ('a', aACC + 16 * ((tb - 2) * 4 + nb))


def stamp_ts(a, opt):
    if not opt.get('ts'):
        return
    l = a.newlabel("ts")
    a.e("s_cmp_lg_u32 %s, 0" % sr(sWave))
    a.e("s_cbranch_scc1 %s" % l)
    a.e("s_memtime s[56:57]")
    a.e("s_memrealtime s[58:59]")
    a.e("s_waitcnt lgkmcnt(0)")
    a.e("s_mov_b64 s[60:61], exec")
    a.e("s_mov_b64 exec, 1")
    for i in range(4):
        a.e("v_mov_b32 v%d, s%d" % (28 + i, 56 + i))
    a.e("v_mov_b32 v27, 0")
    a.e("buffer_store_dwordx4 v[28:31], v27, %s, s62 offen" % sr(SRD_WS, 4))
    a.e("s_add_u32 s62, s62, 16")
    a.e("s_mov_b64 exec, s[60:61]")
    a.label(l)


def loads(slot):
    pre = "s_add_u32 m0, %s, %d" % (sr(sM0), slot * 4096)
    d = ["buffer_load_dwordx4 %s, %s, %s offen offset:%d lds" % (vr(vWd[j]), sr(SRD_W, 4), sr(sWk), j * 1024) for j in range(4)]
    x = ["buffer_load_dwordx4 %s, %s, %s, %s offen" % (ar(aX + 16 * slot + 4 * tb, 4), vr(vX[tb]), sr(SRD_WS, 4), sr(sXk)) for tb in range(4)]
    post = ["s_add_u32 %s, %s, %d" % (sr(sWk), sr(sWk), 0 if HACK.get('hotw') else 64 * 2048), "s_add_u32 %s, %s, %d" % (sr(sXk), sr(sXk), 0 if HACK.get('hotx') else 4096)]
    if HACK.get('ntw'):
        d = [q.replace(' lds', ' nt lds') for q in d]
    if HACK.get('ntx'):
        x = [q + ' nt' for q in x]
    return pre, d, x, post


def wreads(slot, fs):
    out = []
    for nb in range(4):
        for t in range(2):
            out.append("ds_read_b64_tr_b16 %s, %s offset:%d" % (vr(vWF + 16 * fs + 4 * nb + 2 * t, 2), vr(vWr[nb]), slot * 4096 + t * 2048))
    return out


def step(a, i, zero=False, do_load=True, do_read=True, vm=44):
    slot = i % 8
    fs = i % 2
    a.e("s_waitcnt vmcnt(%d) lgkmcnt(0)" % vm)
    mf = []
    for nb in range(4):
        for tb in range(4):
            d = reg(acc(nb, tb), 16)
            mf.append("v_mfma_f32_32x32x16_bf16 %s, %s, %s, %s" % (d, vr(vWF + 16 * fs + 4 * nb, 4), ar(aX + 16 * slot + 4 * tb, 4), "0" if zero else d))
    fill = {}
    if do_read:
        for j, r in enumerate(wreads((i + 1) % 8, fs ^ 1)):
            fill.setdefault(j, []).append(r)
    if do_load:
        pre, d, x, post = loads((i + 7) % 8)
        fill.setdefault(0, []).append(pre)
        for j in range(4):
            fill.setdefault(1 + 2 * j, []).append(d[j])
        for j in range(4):
            fill.setdefault(8 + 2 * j, []).append(x[j])
        fill.setdefault(15, []).extend(post)
    interleave(a, mf, fill)


def gen_l3(a, name, opt):
    kernel_header(a, name)
    HACK.update(opt)
    e = a.e
    e("s_cmp_ge_u32 s2, 256")
    e("s_cbranch_scc1 %s_end" % name)
    e("s_load_dwordx2 %s, s[0:1], 40" % sr(S_WO, 2))
    e("s_load_dwordx2 %s, s[0:1], 72" % sr(S_WD, 2))
    e("s_load_dwordx2 %s, s[0:1], 88" % sr(S_OUT, 2))
    e("s_load_dwordx2 %s, s[0:1], 96" % sr(S_DBG, 2))
    e("s_load_dwordx2 %s, s[0:1], 104" % sr(S_WS, 2))
    e("v_lshrrev_b32 v14, 6, v0")
    e("v_and_b32 v0, 63, v0")
    e("v_readfirstlane_b32 %s, v14" % sr(sWave))
    e("s_and_b32 %s, s2, 7" % sr(sT0))
    e("s_lshr_b32 %s, s2, 3" % sr(sT1))
    e("s_and_b32 %s, %s, 3" % (sr(sTm), sr(sT0)))
    e("s_lshl_b32 %s, %s, 2" % (sr(sTm), sr(sTm)))
    e("s_and_b32 %s, %s, 3" % (sr(sT2), sr(sT1)))
    e("s_add_u32 %s, %s, %s" % (sr(sTm), sr(sTm), sr(sT2)))
    e("s_lshr_b32 %s, %s, 2" % (sr(sTn), sr(sT0)))
    e("s_lshl_b32 %s, %s, 2" % (sr(sTn), sr(sTn)))
    e("s_bfe_u32 %s, %s, 0x20002" % (sr(sT2), sr(sT1)))
    e("s_add_u32 %s, %s, %s" % (sr(sTn), sr(sTn), sr(sT2)))
    e("s_lshr_b32 %s, %s, 4" % (sr(sRole), sr(sT1)))
    e("s_lshl_b32 %s, %s, 3" % (sr(sTile), sr(sTm)))
    e("s_add_u32 %s, %s, %s" % (sr(sTile), sr(sTile), sr(sTn)))
    for s in (SRD_WS, SRD_W, SRD_OUT, SRD_DBG):
        e("s_mov_b32 %s, 0x20000" % sr(s + 3))
    e("s_mov_b32 %s, %d" % (sr(SRD_WS + 2), WS_SIZE))
    e("s_mov_b32 %s, %d" % (sr(SRD_OUT + 2), 2048 * 1024 * 2))
    e("s_mov_b32 %s, 256" % sr(SRD_DBG + 2))
    e("s_lshl_b32 %s, %s, 15" % (sr(sM0), sr(sWave)))
    e("v_lshlrev_b32 %s, 4, v0" % vr(vL16))
    for tb in range(4):
        e("s_xor_b32 %s, %s, %d" % (sr(sT0), sr(sWave), tb))
        e("s_mul_i32 %s, %s, %d" % (sr(sT0), sr(sT0), 480 * 1024))
        e("v_add_u32 %s, %s, %s" % (vr(vX[tb]), sr(sT0), vr(vL16)))
    e("v_lshrrev_b32 v14, 4, v0")
    e("v_bfe_u32 v15, v0, 2, 2")
    e("v_xor_b32 v16, v15, v14")
    e("v_and_b32 v17, 3, v0")
    e("v_lshlrev_b32 v18, 11, v14")
    e("v_lshl_add_u32 v18, v16, 6, v18")
    e("v_lshl_add_u32 %s, v17, 4, v18" % vr(vWd[0]))
    for j in range(1, 4):
        e("v_add_u32 %s, %d, %s" % (vr(vWd[j]), j * 7168, vr(vWd[0])))
    e("v_lshrrev_b32 v14, 5, v0")
    e("v_lshl_add_u32 v14, v14, 2, v15")
    e("v_lshlrev_b32 v14, 8, v14")
    e("v_bfe_u32 v16, v0, 4, 1")
    e("v_lshl_add_u32 v14, v16, 5, v14")
    e("v_lshl_add_u32 v14, v17, 3, v14")
    e("v_add_u32 v14, %s, v14" % sr(sM0))
    for nb in range(4):
        e("v_xor_b32 v16, %d, v15" % nb)
        e("v_lshl_add_u32 %s, v16, 6, v14" % vr(vWr[nb]))
    e("s_mul_i32 %s, %s, %d" % (sr(sXk), sr(sTm), 4 * 480 * 1024))
    e("s_lshl_b32 %s, %s, 10" % (sr(sT0), sr(sWave)))
    e("s_add_u32 %s, %s, %s" % (sr(sXk), sr(sXk), sr(sT0)))
    e("s_add_u32 %s, %s, %d" % (sr(sXk), sr(sXk), WS_A3))
    e("s_lshl_b32 %s, %s, 15" % (sr(sWk), sr(sWave)))
    e("s_lshl_b32 %s, %s, 8" % (sr(sT0), sr(sTn)))
    e("s_add_u32 %s, %s, %s" % (sr(sWk), sr(sWk), sr(sT0)))
    e("s_waitcnt lgkmcnt(0)")
    e("s_cmp_eq_u32 %s, 0" % sr(sRole))
    e("s_cselect_b32 %s, %s, %s" % (sr(SRD_W), sr(S_WD), sr(S_WO)))
    e("s_cselect_b32 %s, %s, %s" % (sr(SRD_W + 1), sr(S_WD + 1), sr(S_WO + 1)))
    e("s_mov_b32 %s, %d" % (sr(sT0), 3584 * 2048))
    e("s_cselect_b32 %s, %s, %d" % (sr(SRD_W + 2), sr(sT0), 4096 * 2048))
    e("s_cselect_b32 %s, 6, 7" % sr(sIter))
    e("s_cselect_b32 %s, %d, 0" % (sr(sT0), 256 * 1024))
    e("s_add_u32 %s, %s, %s" % (sr(sXk), sr(sXk), sr(sT0)))
    for d, s in ((SRD_WS, S_WS), (SRD_OUT, S_OUT), (SRD_DBG, S_DBG)):
        e("s_mov_b32 %s, %s" % (sr(d), sr(s)))
        e("s_mov_b32 %s, %s" % (sr(d + 1), sr(s + 1)))
    if opt.get('ts'):
        e("s_lshl_b32 s62, s2, 10")
        e("s_add_u32 s62, s62, %d" % (WS_STAMP + (3 << 20)))
    stamp_ts(a, opt)
    for i in range(7):
        pre, d, x, post = loads(i)
        e(pre)
        e("s_nop 0")
        for s in d + x + post:
            e(s)
    e("s_waitcnt vmcnt(52)")
    for r in wreads(0, 0):
        e(r)
    step(a, 0, zero=True)
    e("s_branch %s_s1" % name)
    a.label(name + "_loop")
    stamp_ts(a, opt)
    step(a, 0)
    a.label(name + "_s1")
    for i in range(1, 8):
        step(a, i)
    e("s_sub_u32 %s, %s, 1" % (sr(sIter), sr(sIter)))
    e("s_cmp_lg_u32 %s, 0" % sr(sIter))
    e("s_cbranch_scc1 %s_loop" % name)
    step(a, 0)
    for i in range(1, 8):
        step(a, i, do_load=False, do_read=(i < 7), vm=(52 - 8 * i) if i < 7 else 0)
    stamp_ts(a, opt)
    e("s_lshl_b32 %s, %s, 2" % (sr(sT0), sr(sTm)))
    e("s_add_u32 %s, %s, %s" % (sr(sT0), sr(sT0), sr(sWave)))
    e("s_lshl_b32 %s, %s, 7" % (sr(sT1), sr(sT0)))
    e("s_add_u32 %s, %s, %d" % (sr(sT1), sr(sT1), WS_G))
    e("v_and_b32 v14, 31, v0")
    e("v_lshlrev_b32 v15, 2, v14")
    e("buffer_load_dword v16, v15, %s, %s offen" % (sr(SRD_WS, 4), sr(sT1)))
    e("v_add_u32 v18, %s, %s" % (sr(sM0), vr(vL16)))
    e("s_xor_b32 %s, %s, 0x10000" % (sr(sT1), sr(sM0)))
    e("v_add_u32 v19, %s, %s" % (sr(sT1), vr(vL16)))
    e("s_xor_b32 %s, %s, 0x8000" % (sr(sT1), sr(sM0)))
    e("v_add_u32 v20, %s, %s" % (sr(sT1), vr(vL16)))
    e("s_nop 7")
    for q in range(32):
        e("ds_write_b128 v18, %s offset:%d" % (ar(aACC + 4 * q, 4), q * 1024))
    e("s_waitcnt lgkmcnt(0)")
    e("s_barrier")
    for half in range(2):
        for q in range(16):
            e("ds_read_b128 %s, v19 offset:%d" % (vr(vTMP + 4 * q, 4), (half * 16 + q) * 1024))
        for q in range(16):
            e("s_waitcnt lgkmcnt(%d)" % (15 - q))
            for i in range(0, 4, 2):
                r = vACC + half * 64 + 4 * q + i
                e("v_pk_add_f32 %s, %s, %s" % (vr(r, 2), vr(r, 2), vr(vTMP + 4 * q + i, 2)))
    e("s_barrier")
    for q in range(16):
        e("ds_write_b128 v18, %s offset:%d" % (vr(vACC + 64 + 4 * q, 4), q * 1024))
    e("s_waitcnt lgkmcnt(0)")
    e("s_barrier")
    for q in range(16):
        e("ds_read_b128 %s, v20 offset:%d" % (vr(vTMP + 4 * q, 4), q * 1024))
    for q in range(16):
        e("s_waitcnt lgkmcnt(%d)" % (15 - q))
        for i in range(0, 4, 2):
            r = vACC + 4 * q + i
            e("v_pk_add_f32 %s, %s, %s" % (vr(r, 2), vr(r, 2), vr(vTMP + 4 * q + i, 2)))
    stamp_ts(a, opt)
    e("s_lshl_b32 %s, %s, 16" % (sr(sT1), sr(sTile)))
    e("s_lshl_b32 %s, %s, 14" % (sr(sT2), sr(sWave)))
    e("s_add_u32 %s, %s, %s" % (sr(sT1), sr(sT1), sr(sT2)))
    e("s_add_u32 %s, %s, %d" % (sr(sT1), sr(sT1), WS_P))
    e("s_lshr_b32 %s, %s, 5" % (sr(sT2), sr(sTile)))
    e("s_lshl_b32 %s, %s, 2" % (sr(sT2), sr(sT2)))
    e("s_and_b32 s36, %s, 31" % sr(sTile))
    e("s_lshl_b32 s36, 1, s36")
    e("s_cmp_lg_u32 %s, 0" % sr(sRole))
    e("s_cbranch_scc1 %s_cons" % name)
    e("s_waitcnt vmcnt(0)")
    e("v_sub_f32 v16, 1.0, v16")
    e("v_mov_b32 v17, v16")
    for q in range(16):
        for i in range(0, 4, 2):
            r = vACC + 4 * q + i
            e("v_pk_mul_f32 %s, %s, v[16:17]" % (vr(r, 2), vr(r, 2)))
        if q and q % 4 == 0:
            e("s_add_u32 %s, %s, 4096" % (sr(sT1), sr(sT1)))
        e("buffer_store_dwordx4 %s, %s, %s, %s offen offset:%d sc1" % (vr(vACC + 4 * q, 4), vr(vL16), sr(SRD_WS, 4), sr(sT1), (q & 3) * 1024))
    e("s_waitcnt vmcnt(0)")
    e("s_barrier")
    e("s_cmp_lg_u32 %s, 0" % sr(sWave))
    e("s_cbranch_scc1 %s_fin" % name)
    e("v_mov_b32 v16, s36")
    e("v_mov_b32 v17, 0")
    e("s_mov_b64 exec, 1")
    e("buffer_atomic_or v16, v17, %s, %s offen sc1" % (sr(SRD_DBG, 4), sr(sT2)))
    e("s_branch %s_fin" % name)
    a.label(name + "_cons")
    e("v_mov_b32 v17, 0")
    e("s_mov_b32 s37, 0x100000")
    a.label(name + "_poll")
    e("buffer_load_dword v16, v17, %s, %s offen sc1" % (sr(SRD_DBG, 4), sr(sT2)))
    e("s_waitcnt vmcnt(0)")
    e("v_readfirstlane_b32 s38, v16")
    e("s_and_b32 s38, s38, s36")
    e("s_cbranch_scc1 %s_got" % name)
    e("s_sleep 2")
    e("s_sub_u32 s37, s37, 1")
    e("s_cmp_lg_u32 s37, 0")
    e("s_cbranch_scc1 %s_poll" % name)
    a.label(name + "_got")
    e("buffer_inv sc1")
    e("s_waitcnt vmcnt(0)")
    for q in range(16):
        if q and q % 4 == 0:
            e("s_add_u32 %s, %s, 4096" % (sr(sT1), sr(sT1)))
        e("buffer_load_dwordx4 %s, %s, %s, %s offen offset:%d sc1" % (vr(vTMP + 4 * q, 4), vr(vL16), sr(SRD_WS, 4), sr(sT1), (q & 3) * 1024))
    e("v_lshlrev_b32 v15, 11, v14")
    e("v_lshrrev_b32 v16, 5, v0")
    e("v_lshl_add_u32 v15, v16, 4, v15")
    e("s_lshl_b32 %s, %s, 16" % (sr(sT0), sr(sT0)))
    e("s_lshl_b32 %s, %s, 8" % (sr(sT2), sr(sTn)))
    e("s_add_u32 %s, %s, %s" % (sr(sT0), sr(sT0), sr(sT2)))
    for pq in range(8):
        e("s_waitcnt vmcnt(%d)" % (14 - 2 * pq + pq))
        r = vACC + 8 * pq
        for i in range(0, 8, 2):
            e("v_pk_add_f32 %s, %s, %s" % (vr(r + i, 2), vr(r + i, 2), vr(vTMP + 8 * pq + i, 2)))
        for i in range(4):
            e("v_cvt_pk_bf16_f32 %s, %s, %s" % (vr(r + i), vr(r + 2 * i), vr(r + 2 * i + 1)))
        e("s_nop 1")
        e("v_permlane32_swap_b32 %s, %s" % (vr(r), vr(r + 2)))
        e("v_permlane32_swap_b32 %s, %s" % (vr(r + 1), vr(r + 3)))
        e("buffer_store_dwordx4 %s, v15, %s, %s offen offset:%d" % (vr(r, 4), sr(SRD_OUT, 4), sr(sT0), pq * 32))
    a.label(name + "_fin")
    stamp_ts(a, opt)
    a.label(name + "_end")
    e("s_endpgm")
    return kernel_desc(name, 512, 72, 256)
```

```python
import sys, json, struct
from asmlib import *

WS_Q = 0
WS_K = 16 << 20
WS_V = 32 << 20
WS_A3 = 48 << 20
WS_G = 80 << 20
WS_P = 81 << 20
WS_STAMP = 128 << 20
WS_SIZE = 268435456
LDS = 163840
WS_F2 = (80 << 20) + 65536
WS_F3 = WS_F2 + 4096
WS_FP = WS_F2 + 8192
ALL1 = 0x01010101

OPT = {}


def f32(x):
    return "0x%08x" % struct.unpack("<I", struct.pack("<f", x))[0]


sPfOff = 3
sPfA, sPfB = 4, 6
sPoll = 7
SRD_DBG, SRD_P = 8, 12
SRD_X, SRD_W, SRD_WS = 44, 48, 52
sWave = 67
sTs = 101
SC = " sc1"


def stamp_ts(a):
    if not OPT.get('ts'):
        return
    l = a.newlabel("ts")
    a.e("s_cmp_lg_u32 %s, 0" % sr(sWave))
    a.e("s_cbranch_scc1 %s" % l)
    a.e("s_memtime vcc")
    a.e("s_waitcnt lgkmcnt(0)")
    a.e("s_mov_b64 exec, 1")
    a.e("v_mov_b32 v30, vcc_lo")
    a.e("v_mov_b32 v31, vcc_hi")
    a.e("s_memrealtime vcc")
    a.e("buffer_store_dwordx2 v[30:31], off, %s, %s" % (sr(SRD_WS, 4), sr(sTs)))
    a.e("s_waitcnt lgkmcnt(0)")
    a.e("v_mov_b32 v30, vcc_lo")
    a.e("v_mov_b32 v31, vcc_hi")
    a.e("buffer_store_dwordx2 v[30:31], off, %s, %s offset:8" % (sr(SRD_WS, 4), sr(sTs)))
    a.e("s_add_u32 %s, %s, 16" % (sr(sTs), sr(sTs)))
    a.e("s_mov_b64 exec, -1")
    a.label(l)


vFl4 = 29


def poll_issue(vdst, srd, soff):
    return "buffer_load_dword %s, %s, %s, %s offen sc1" % (vr(vdst), vr(vFl4), sr(srd, 4), soff)


def poll_check(a, vdst, srd, soff, lanes, tmp):
    ok = a.newlabel("pok")
    sp = a.newlabel("pspin")

    def test():
        a.e("v_cmp_ne_u32 vcc, %s, %s" % (sr(sPoll), vr(vdst)))
        if lanes == 64:
            a.e("s_nop 1")
            a.e("s_cmp_eq_u64 vcc, 0")
        elif lanes == 32:
            a.e("s_nop 1")
            a.e("s_cmp_eq_u32 vcc_lo, 0")
        else:
            a.e("s_nop 1")
            a.e("s_bitcmp0_b32 vcc_lo, 0")
    a.e("s_mov_b32 %s, 0x%x" % (sr(sPoll), ALL1))
    a.e("s_mov_b32 %s, 0x40000" % sr(tmp))
    test()
    a.e("s_cbranch_scc1 %s" % ok)
    a.label(sp)
    a.e("s_sleep 8")
    a.e(poll_issue(vdst, srd, soff))
    a.e("s_sub_u32 %s, %s, 1" % (sr(tmp), sr(tmp)))
    a.e("s_cmp_eq_u32 %s, 0" % sr(tmp))
    a.e("s_cbranch_scc1 %s" % ok)
    a.e("s_waitcnt vmcnt(0)")
    test()
    a.e("s_cbranch_scc0 %s" % sp)
    a.label(ok)


def flag_store(a, kind, vtmp, val, srd, soff, wave0=True):
    l = a.newlabel("fs")
    if wave0:
        a.e("s_cmp_lg_u32 %s, 0" % sr(sWave))
        a.e("s_cbranch_scc1 %s" % l)
    a.e("v_mov_b32 %s, %s" % (vr(vtmp), val))
    a.e("s_mov_b64 exec, 1")
    a.e("buffer_store_%s %s, off, %s, %s sc1" % (kind, vr(vtmp), sr(srd, 4), soff))
    a.e("s_mov_b64 exec, -1")
    a.label(l)


S_X, S_CKV, S_WQ, S_WUK, S_WUV, S_WO, S_BX, S_WG, S_WU, S_WD, S_GW, S_OUT, S_DBG, S_WS = [16 + 2 * i for i in range(14)]
sXk, sXk2, sWk, sWstep, sXrow32 = 56, 57, 58, 59, 60
sXdst, sXbeg, sXend = 61, 62, 63
sWm0a, sWm0b = 64, 65
sIter, sJob = 66, 68
sTm, sTn8, sTn7 = 69, 70, 71
sRslot, sDelta, sCp, sCm = 72, 73, 74, 75
sT0, sT1, sT2, sT3 = 76, 77, 78, 79
sOb = 80
sNXlo, sNXhi, sNXn, sNXk, sNXrow32 = 81, 82, 83, 84, 85
sNWlo, sNWhi, sNWn, sNWk, sNWstep, sNm0a, sNm0b = 86, 87, 88, 89, 90, 91, 92
sCA, sCC = 94, 96
sGm0a, sGm0b, sGoff = 98, 99, 100

vXr = [1, 2, 3, 4]
vWr8 = [5, 6, 7, 8]
vWr7 = 9
vXd = [10, 11, 12, 13]
vWd = [14, 15, 16, 17]
vXdN = [18, 19, 20, 21]
vWdN = [22, 23, 24, 25]
vSt = 26
vPf, vPfD = 27, 28
ACC0 = 32
XBASE = 65536


def acc(blk):
    if blk < 14:
        return ('v', ACC0 + 16 * blk)
    return ('a', 16 * (blk - 14))


def fragX(s, tb):
    return 32 + s * 40 + 4 * tb


def fragW(s, nb):
    return 32 + s * 40 + 8 + 4 * nb


def mfmas(kind, s, zero=False):
    NB = 7 if kind == 'G' else 8
    out = []
    for nb in range(NB):
        for tb in range(2):
            d = reg(acc(nb * 2 + tb), 16)
            w = ar(fragW(s, nb), 4)
            x = ar(fragX(s, tb), 4)
            A, B = (x, w) if kind == 'V' else (w, x)
            out.append("v_mfma_f32_32x32x16_bf16 %s, %s, %s, %s" % (d, A, B, "0" if zero else d))
    return out


def reads(kind, p, k):
    slot = p % 4
    s = 2 * (p & 1) + k
    out = []
    for tb in range(2):
        out.append("ds_read_b128 %s, %s offset:%d" % (ar(fragX(k, tb), 4), vr(vXr[s]), tb * 4096))
    NB = 7 if kind == 'G' else 8
    for nb in range(NB):
        for t in range(2):
            if kind == 'G':
                addr = vWr7
                off = slot * 16384 + (16 * k + 4 * t) * 224 + nb * 32
            else:
                addr = vWr8[nb & 3]
                off = slot * 16384 + (16 * k + 4 * t) * 512 + (nb >> 2) * 256
            out.append("ds_read_b64_tr_b16 %s, %s offset:%d" % (ar(fragW(k, nb) + 2 * t, 2), vr(addr), off))
    return out


def dmaW(slot):
    g = []
    for j in range(4):
        l = []
        if j == 0:
            l.append("s_add_u32 m0, %s, %d" % (sr(sWm0a), slot * 16384))
        if j == 3:
            l.append("s_add_u32 m0, %s, %d" % (sr(sWm0b), slot * 16384))
        l.append(("DMA", "buffer_load_dwordx4 %s, %s, %s offen offset:%d lds" % (vr(vWd[j]), sr(SRD_W, 4), sr(sWk), j * 1024)))
        g.append(l)
    g[3].append("s_add_u32 %s, %s, %s" % (sr(sWk), sr(sWk), sr(sWstep)))
    return g


def dmaX(half):
    g = []
    for j in range(4):
        l = []
        if j == 0:
            if half == 0:
                l.append("s_mov_b32 m0, %s" % sr(sXdst))
            else:
                l.append("s_add_u32 m0, %s, 4096" % sr(sXdst))
        l.append(("DMA", "buffer_load_dwordx4 %s, %s, %s offen offset:%d lds" % (
            vr(vXd[j]), sr(SRD_X, 4), sr(sXk if half == 0 else sXk2), j * 1024)))
        g.append(l)
    if half == 0:
        g[3].append("s_add_u32 %s, %s, %s" % (sr(sXk2), sr(sXk), sr(sXrow32)))
        g[3].append("s_add_u32 %s, %s, 128" % (sr(sXk), sr(sXk)))
    else:
        g[3].append("s_add_u32 %s, %s, 8192" % (sr(sXdst), sr(sXdst)))
        g[3].append("s_cmp_eq_u32 %s, %s" % (sr(sXdst), sr(sXend)))
        g[3].append("s_cselect_b32 %s, %s, %s" % (sr(sXdst), sr(sXbeg), sr(sXdst)))
    return g


def flat_dma(groups):
    out = []
    for l in groups:
        prev_m0 = False
        for s in l:
            if isinstance(s, tuple):
                if prev_m0:
                    out.append("s_nop 0")
                out.append(s[1])
                prev_m0 = False
            else:
                out.append(s)
                prev_m0 = " m0," in s
    return out


def group(a, kind_m, s, zero, rd, dma, extra=None):
    m = mfmas(kind_m, s, zero) if kind_m else []
    n = len(m)
    fill = {}
    if n == 0:
        for r in rd:
            a.e(r)
        for x in flat_dma(dma):
            a.e(x)
        return
    g = 0
    i = 0
    while i < len(rd):
        fill.setdefault(g, []).extend(rd[i:i + 2])
        i += 2
        g += 1
    pos = n - 7
    for l in dma:
        pre, post, seen = [], [], False
        for sx in l:
            if isinstance(sx, tuple):
                seen = True
                post.append(sx[1])
            elif not seen:
                pre.append(sx)
            else:
                post.append(sx)
        if pre:
            fill.setdefault(pos - 1, []).extend(pre)
        fill.setdefault(pos, []).extend(post)
        pos += 2
    for gi, x in (extra or []):
        fill.setdefault(min(gi, n - 1), []).append(x)
    interleave(a, m, fill)


def xr_update(s):
    return "v_add_u32 %s, %s, %s" % (vr(vXr[s]), sr(sDelta), vr(vXr[s]))


def delta_update():
    return ["s_add_u32 %s, %s, 1" % (sr(sRslot), sr(sRslot)),
            "s_cmp_eq_u32 %s, 3" % sr(sRslot),
            "s_cselect_b32 %s, %s, %s" % (sr(sDelta), sr(sCm), sr(sCp)),
            "s_cselect_b32 %s, 0, %s" % (sr(sRslot), sr(sRslot))]


def pf_setup():
    lst = sPfA
    return [
        "s_and_b32 %s, %s, 15" % (sr(sT2), sr(lst)),
        "s_lshl_b32 %s, %s, 3" % (sr(sT2), sr(sT2)),
        "s_load_dwordx2 %s, s[0:1], %s" % (sr(SRD_P, 2), sr(sT2)),
        "s_bfe_u32 %s, %s, 0x40004" % (sr(sT3), sr(lst)),
        "s_cmp_eq_u32 %s, 15" % sr(sT3),
        "s_cselect_b32 %s, 0, -1" % sr(sPfB),
        "s_lshl_b32 %s, %s, 20" % (sr(sT3), sr(sT3)),
        "s_add_u32 %s, %s, %s" % (sr(sT3), sr(sT3), sr(sPfOff)),
        "s_lshr_b64 %s, %s, 8" % (sr(lst, 2), sr(lst, 2)),
        "s_or_b32 %s, %s, 0xf0000000" % (sr(lst + 1), sr(lst + 1)),
    ]


def pf_load():
    return "buffer_load_dword %s, %s, %s, %s offen" % (vr(vPfD), vr(vPf), sr(SRD_P, 4), sr(sT3))


def pf_lists(a, A):
    v = 0
    for i in range(8):
        sl, mb = A[i] if i < len(A) else (0, 15)
        v |= (sl | (mb << 4)) << (8 * i)
    a.e("s_mov_b32 %s, 0x%x" % (sr(sPfA), v & 0xffffffff))
    a.e("s_mov_b32 %s, 0x%x" % (sr(sPfA + 1), v >> 32))


def switchX(a):
    for d, s in ((SRD_X, sNXlo), (SRD_X + 1, sNXhi), (SRD_X + 2, sNXn), (sXk, sNXk), (sXrow32, sNXrow32)):
        a.e("s_mov_b32 %s, %s" % (sr(d), sr(s)))


def switchW(a):
    for d, s in ((SRD_W, sNWlo), (SRD_W + 1, sNWhi), (SRD_W + 2, sNWn), (sWk, sNWk), (sWstep, sNWstep), (sWm0a, sNm0a), (sWm0b, sNm0b)):
        a.e("s_mov_b32 %s, %s" % (sr(d), sr(s)))


def interval(a, kind, p, half='both', kindA=None, zeroB=False):
    if half in ('both', 'A'):
        a.e("s_waitcnt vmcnt(%d) lgkmcnt(0)" % (19 if kindA != 'none' else 16))
        a.e("s_barrier")
        ka = kind if kindA is None else kindA
        ex = [(10, xr_update(2 * (((p - 1) % 4) & 1) + 1))]
        if ka == 'none':
            ka = None
        if p == 1:
            for i, x in enumerate(pf_setup()):
                ex.append((10 if i < 4 else 12, x))
        group(a, ka, 1, False, reads(kind, p, 0), dmaW((p + 3) % 4), ex)
    if half in ('both', 'B'):
        a.e("s_waitcnt lgkmcnt(0)")
        ex = []
        ex.append((8, "s_cmp_eq_u32 %s, %d" % (sr(sWave), p)))
        ex.append((8, "s_cselect_b32 %s, %s, 0" % (sr(SRD_P + 2), sr(sPfB))))
        if (p & 1) == 0:
            for x in delta_update():
                ex.append((9, x))
        ex.append((11, xr_update(2 * (p & 1))))
        ex.append((15, pf_load()))
        group(a, kind, 0, zeroB, reads(kind, p, 1), dmaX(p & 1), ex)


def loop(a, kind, name, vswitch, hook=None):
    a.label(name + "_top")
    interval(a, kind, 0, 'A')
    if hook:
        hook(a)
    a.e("s_cmp_lg_u32 %s, 1" % sr(sIter))
    a.e("s_cbranch_scc1 %s_nsx" % name)
    switchX(a)
    vswitch(a, 'X')
    a.label(name + "_nsx")
    interval(a, kind, 0, 'B')
    a.label(name + "_entry")
    stamp_ts(a)
    a.e("s_cmp_lg_u32 %s, 1" % sr(sIter))
    a.e("s_cbranch_scc1 %s_nsw" % name)
    switchW(a)
    vswitch(a, 'W')
    a.label(name + "_nsw")
    for p in (1, 2, 3):
        interval(a, kind, p)
    a.e("s_sub_u32 %s, %s, 1" % (sr(sIter), sr(sIter)))
    a.e("s_cmp_lg_u32 %s, 0" % sr(sIter))
    a.e("s_cbranch_scc1 %s_top" % name)


def epi_store_block(a, blk, offs, scale=None):
    k, r = acc(blk)
    if scale is not None:
        for i in range(0, 16, 2):
            a.e("v_pk_mul_f32 %s, %s, %s" % (vr(r + i, 2), vr(r + i, 2), sr(scale, 2)))
    for g in range(2):
        for i in range(4):
            a.e("v_cvt_pk_bf16_f32 %s, %s, %s" % (vr(r + 8 * g + i), vr(r + 8 * g + 2 * i), vr(r + 8 * g + 2 * i + 1)))
        so, imm = offs[g]
        a.e("buffer_store_dwordx4 %s, %s, %s, %s offen offset:%d%s" % (vr(r + 8 * g, 4), vr(vSt), sr(SRD_WS, 4), sr(so), imm, SC))


def epilogue_kqv(a, kind, scale=None):
    a.e("s_nop 7")
    a.e("s_nop 7")
    for blk in range(16):
        nb, tb = blk >> 1, blk & 1
        db = nb & 3
        base = (nb >> 2) * 524288 + tb * 8192
        if kind == 'V':
            o = [base + db * 1024, base + 4096 + db * 1024]
        else:
            o = [base + (db * 2) * 1024, base + (db * 2 + 1) * 1024]
        offs = []
        for g in range(2):
            hi = o[g] & ~4095
            st = sT0 + g
            if g == 0 or (o[0] & ~4095) != hi:
                a.e("s_add_u32 %s, %s, %d" % (sr(st), sr(sOb), hi))
            else:
                st = sT0
            offs.append((st, o[g] & 4095))
        if blk >= 14:
            k, r = acc(blk)
            _, rv = acc(blk - 14)
            for i in range(16):
                a.e("v_accvgpr_read_b32 %s, %s" % (vr(rv + i), ar(r + i)))
            epi_store_block(a, blk - 14, offs, scale)
        else:
            epi_store_block(a, blk, offs, scale)


vG1 = [20, 22]


def epilogue_gu(a):
    A = -2.0 * 1.4426950408889634 * 0.7978845608028654
    B = A * 0.044715
    a.e("s_mov_b32 %s, %s" % (sr(sCC), f32(B)))
    a.e("s_mov_b32 %s, %s" % (sr(sCC + 1), f32(B)))
    a.e("v_mov_b32 v10, %s" % f32(A))
    a.e("v_mov_b32 v11, %s" % f32(A))
    for tb in range(2):
        a.e("v_sub_f32 %s, 1.0, %s" % (vr(vG1[tb]), vr(vG1[tb])))
        a.e("v_mov_b32 %s, %s" % (vr(vG1[tb] + 1), vr(vG1[tb])))
    for blk in range(14):
        nb, tb = blk >> 1, blk & 1
        _, r = acc(blk)
        o = tb * 480 * 1024 + nb * 1024
        a.e("s_add_u32 %s, %s, %d" % (sr(sT0), sr(sOb), o & ~4095))
        P = [12, 14, 16, 18]
        for i in range(4):
            a.e("v_pk_mul_f32 %s, %s, %s" % (vr(P[i], 2), vr(r + 2 * i, 2), vr(r + 2 * i, 2)))
        for i in range(4):
            a.e("v_pk_fma_f32 %s, %s, %s, v[10:11]" % (vr(P[i], 2), vr(P[i], 2), sr(sCC, 2)))
        for i in range(4):
            a.e("v_pk_mul_f32 %s, %s, %s" % (vr(P[i], 2), vr(P[i], 2), vr(r + 2 * i, 2)))
        for i in range(8):
            a.e("v_exp_f32 %s, %s" % (vr(12 + i), vr(12 + i)))
        for i in range(4):
            a.e("v_pk_mul_f32 %s, %s, %s" % (vr(r + 2 * i, 2), vr(r + 2 * i, 2), vr(r + 8 + 2 * i, 2)))
        for i in range(4):
            a.e("v_pk_add_f32 %s, %s, 1.0 op_sel_hi:[1,0]" % (vr(P[i], 2), vr(P[i], 2)))
        for i in range(8):
            a.e("v_rcp_f32 %s, %s" % (vr(12 + i), vr(12 + i)))
        for i in range(4):
            a.e("v_pk_mul_f32 %s, %s, %s" % (vr(r + 2 * i, 2), vr(r + 2 * i, 2), vr(vG1[tb], 2)))
        for i in range(4):
            a.e("v_pk_mul_f32 %s, %s, %s" % (vr(r + 2 * i, 2), vr(r + 2 * i, 2), vr(P[i], 2)))
        for i in range(4):
            a.e("v_cvt_pk_bf16_f32 %s, %s, %s" % (vr(r + 8 + i), vr(r + 2 * i), vr(r + 2 * i + 1)))
        a.e("buffer_store_dwordx4 %s, %s, %s, %s offen offset:%d%s" % (vr(r + 8, 4), vr(vSt), sr(SRD_WS, 4), sr(sT0), o & 4095, SC))


def part1(a, name, att_prologue):
    e = a.e
    e("s_load_dwordx16 s[16:31], s[0:1], 0")
    e("s_load_dwordx8 s[32:39], s[0:1], 64")
    e("s_load_dwordx4 s[40:43], s[0:1], 96")
    e("v_lshrrev_b32 v27, 6, v0")
    e("v_and_b32 v0, 63, v0")
    e("v_readfirstlane_b32 %s, v27" % sr(sWave))
    e("v_lshlrev_b32 %s, 2, v0" % vr(vFl4))
    e("s_and_b32 %s, s2, 7" % sr(sT0))
    e("s_lshr_b32 %s, s2, 3" % sr(sT1))
    e("s_and_b32 %s, %s, 1" % (sr(sT2), sr(sT0)))
    e("s_lshl_b32 %s, %s, 2" % (sr(sT2), sr(sT2)))
    e("s_and_b32 %s, %s, 3" % (sr(sT3), sr(sT1)))
    e("s_add_u32 %s, %s, %s" % (sr(sTm), sr(sT2), sr(sT3)))
    e("s_lshr_b32 %s, %s, 1" % (sr(sT0), sr(sT0)))
    e("s_lshr_b32 %s, %s, 2" % (sr(sT2), sr(sT1)))
    e("s_lshl_b32 %s, %s, 3" % (sr(sT3), sr(sT0)))
    e("s_add_u32 %s, %s, %s" % (sr(sTn7), sr(sT3), sr(sT2)))
    e("s_and_b32 %s, %s, 3" % (sr(sT2), sr(sT2)))
    e("s_lshl_b32 %s, %s, 2" % (sr(sT3), sr(sT0)))
    e("s_add_u32 %s, %s, %s" % (sr(sTn8), sr(sT3), sr(sT2)))
    e("s_lshr_b32 %s, %s, 4" % (sr(sJob), sr(sT1)))
    for s in (SRD_X, SRD_W, SRD_WS, SRD_DBG, SRD_P):
        e("s_mov_b32 %s, 0x20000" % sr(s + 3))
    e("s_mov_b32 %s, %d" % (sr(SRD_WS + 2), WS_SIZE))
    e("s_mov_b32 %s, 256" % sr(SRD_DBG + 2))
    e("s_mov_b32 %s, 8192" % sr(sCp))
    e("s_mov_b32 %s, -16384" % sr(sCm))
    e("s_mov_b32 %s, 0" % sr(sRslot))
    e("s_mul_i32 %s, %s, 24576" % (sr(sXbeg), sr(sWave)))
    e("s_add_u32 %s, %s, %d" % (sr(sXbeg), sr(sXbeg), XBASE))
    e("s_add_u32 %s, %s, 24576" % (sr(sXend), sr(sXbeg)))
    e("s_mov_b32 %s, %s" % (sr(sXdst), sr(sXbeg)))
    T0, T1, T2, T3, T4 = 27, 28, 30, 31, 26
    e("v_lshrrev_b32 v%d, 3, v0" % T0)
    e("s_lshl_b32 %s, %s, 6" % (sr(sT0), sr(sWave)))
    e("v_add_u32 v%d, %s, v%d" % (T0, sr(sT0), T0))
    e("v_and_b32 v%d, 7, v0" % T1)
    e("v_lshrrev_b32 v%d, 4, v0" % T4)
    e("v_xor_b32 v%d, v%d, v%d" % (T1, T1, T4))
    e("v_xor_b32 v%d, 4, v%d" % (T4, T1))
    e("s_movk_i32 %s, 11" % sr(sT1))
    e("s_sub_u32 %s, %s, %s" % (sr(sT1), sr(sT1), sr(sJob)))
    for j in range(4):
        ch = T1 if (j & 1) == 0 else T4
        e("v_add_u32 v%d, %d, v%d" % (T2, 8 * j, T0))
        e("v_lshlrev_b32 v%d, 11, v%d" % (T3, T2))
        e("v_lshl_add_u32 v%d, v%d, 4, v%d" % (T3, ch, T3))
        e("v_subrev_u32 %s, %d, v%d" % (vr(vXdN[j]), 1024 * j, T3))
        e("v_lshlrev_b32 v%d, %s, v%d" % (T3, sr(sT1), T2))
        e("v_lshl_add_u32 v%d, v%d, 4, v%d" % (T3, ch, T3))
        e("v_subrev_u32 %s, %d, v%d" % (vr(vXd[j]), 1024 * j, T3))
    e("v_lshrrev_b32 v%d, 5, v0" % T0)
    e("s_lshl_b32 %s, %s, 3" % (sr(sT0), sr(sWave)))
    e("v_bfe_u32 v%d, v0, 2, 3" % T1)
    e("v_and_b32 v%d, 3, v0" % T4)
    e("v_lshlrev_b32 v%d, 4, v%d" % (T4, T4))
    for j in range(4):
        e("v_add_u32 v%d, %d, v%d" % (T2, 2 * j, T0))
        e("v_and_b32 v%d, 3, v%d" % (T3, T2))
        e("v_xor_b32 v%d, v%d, v%d" % (T3, T3, T1))
        e("v_add_u32 v%d, %s, v%d" % (T2, sr(sT0), T2))
        e("v_lshlrev_b32 v%d, 13, v%d" % (T2, T2))
        e("v_lshl_add_u32 v%d, v%d, 6, v%d" % (T2, T3, T2))
        e("v_add_u32 v%d, v%d, v%d" % (T2, T2, T4))
        e("v_subrev_u32 %s, %d, v%d" % (vr(vWd[j]), 1024 * j, T2))
    e("s_lshl_b32 %s, %s, 12" % (sr(sWm0a), sr(sWave)))
    e("s_mov_b32 %s, %s" % (sr(sWm0b), sr(sWm0a)))
    e("s_waitcnt lgkmcnt(0)")
    e("s_mov_b32 %s, %s" % (sr(SRD_WS), sr(S_WS)))
    e("s_mov_b32 %s, %s" % (sr(SRD_WS + 1), sr(S_WS + 1)))
    e("s_mov_b32 %s, %s" % (sr(SRD_DBG), sr(S_DBG)))
    e("s_mov_b32 %s, %s" % (sr(SRD_DBG + 1), sr(S_DBG + 1)))
    if OPT.get('ts'):
        e("s_lshl_b32 %s, s2, 11" % sr(sTs))
        e("s_add_u32 %s, %s, %d" % (sr(sTs), sr(sTs), WS_STAMP))
    stamp_ts(a)
    e("s_cmp_eq_u32 %s, 0" % sr(sJob))
    e("s_cselect_b32 %s, %s, %s" % (sr(SRD_X), sr(S_X), sr(S_CKV)))
    e("s_cselect_b32 %s, %s, %s" % (sr(SRD_X + 1), sr(S_X + 1), sr(S_CKV + 1)))
    e("s_cselect_b32 %s, %s, %s" % (sr(SRD_W), sr(S_WQ), sr(S_WUK)))
    e("s_cselect_b32 %s, %s, %s" % (sr(SRD_W + 1), sr(S_WQ + 1), sr(S_WUK + 1)))
    e("s_cselect_b32 %s, 8, 4" % sr(sIter))
    e("s_lshr_b32 %s, %d, %s" % (sr(SRD_X + 2), 2048 * 1024 * 2, sr(sJob)))
    e("s_lshr_b32 %s, %d, %s" % (sr(SRD_W + 2), 1024 * 4096 * 2, sr(sJob)))
    e("s_lshl_b32 %s, %s, 19" % (sr(sXk), sr(sTm)))
    e("s_lshr_b32 %s, %s, %s" % (sr(sXk), sr(sXk), sr(sJob)))
    e("s_lshr_b32 %s, 65536, %s" % (sr(sXrow32), sr(sJob)))
    e("s_lshl_b32 %s, %s, 9" % (sr(sWk), sr(sTn8)))
    e("s_mov_b32 %s, %d" % (sr(sWstep), 32 * 8192))
    e("s_mov_b32 %s, %s" % (sr(SRD_P), sr(S_X)))
    e("s_mov_b32 %s, %s" % (sr(SRD_P + 1), sr(S_X + 1)))
    e("s_mov_b32 %s, %d" % (sr(SRD_P + 2), 2048 * 1024 * 2))
    e("s_lshl_b32 %s, s2, 3" % sr(sT0))
    e("s_lshl_b32 %s, %s, 1" % (sr(sT1), sr(sWave)))
    e("s_add_u32 %s, %s, %s" % (sr(sT0), sr(sT0), sr(sT1)))
    e("s_lshl_b32 %s, %s, 11" % (sr(sT1), sr(sT0)))
    e("v_lshlrev_b32 v27, 5, v0")
    e("buffer_load_dwordx4 v[32:35], v27, %s, %s offen" % (sr(SRD_P, 4), sr(sT1)))
    e("buffer_load_dwordx4 v[36:39], v27, %s, %s offen offset:16" % (sr(SRD_P, 4), sr(sT1)))
    e("buffer_load_dwordx4 v[40:43], v27, %s, %s offen offset:2048" % (sr(SRD_P, 4), sr(sT1)))
    e("buffer_load_dwordx4 v[44:47], v27, %s, %s offen offset:2064" % (sr(SRD_P, 4), sr(sT1)))
    e("s_mov_b32 %s, %s" % (sr(SRD_P), sr(S_GW)))
    e("s_mov_b32 %s, %s" % (sr(SRD_P + 1), sr(S_GW + 1)))
    e("s_mov_b32 %s, 2048" % sr(SRD_P + 2))
    e("buffer_load_dwordx4 v[48:51], v27, %s, 0 offen" % sr(SRD_P, 4))
    e("buffer_load_dwordx4 v[52:55], v27, %s, 0 offen offset:16" % sr(SRD_P, 4))
    e("s_lshl_b32 %s, %s, 2" % (sr(sGoff), sr(sT0)))
    e("s_add_u32 %s, %s, %d" % (sr(sGoff), sr(sGoff), WS_G))
    for x in flat_dma(dmaW(0)) + flat_dma(dmaX(0)) + flat_dma(dmaX(1)) + flat_dma(dmaW(1)) + \
            flat_dma(dmaX(0)) + flat_dma(dmaW(2)) + flat_dma(dmaX(1)):
        e(x)
    e("v_and_b32 v%d, 31, v0" % T0)
    e("v_lshrrev_b32 v%d, 5, v0" % T1)
    e("v_bfe_u32 v%d, v0, 1, 3" % T4)
    e("v_lshlrev_b32 v%d, 7, v%d" % (T2, T0))
    e("v_add_u32 v%d, %s, v%d" % (T2, sr(sXbeg), T2))
    for s in range(4):
        e("v_add_u32 v%d, %d, v%d" % (T3, 2 * s, T1))
        e("v_xor_b32 v%d, v%d, v%d" % (T3, T3, T4))
        e("v_lshl_add_u32 %s, v%d, 4, v%d" % (vr(vXr[s]), T3, T2))
    e("v_bfe_u32 v%d, v0, 2, 2" % T0)
    e("v_bfe_u32 v%d, v0, 4, 1" % T4)
    e("v_and_b32 v%d, 3, v0" % T2)
    e("v_lshl_add_u32 v%d, v%d, 3, v%d" % (T3, T1, T0))
    e("v_lshlrev_b32 v%d, 3, v%d" % (T2, T2))
    e("v_mul_u32_u24 %s, 224, v%d" % (vr(vWr7), T3))
    e("v_mul_u32_u24 v%d, 7296, v%d" % (T1, T4))
    e("v_add3_u32 %s, %s, v%d, v%d" % (vr(vWr7), vr(vWr7), T1, T2))
    e("v_lshlrev_b32 v%d, 9, v%d" % (T3, T3))
    e("v_lshl_add_u32 v%d, v%d, 5, v%d" % (T3, T4, T3))
    e("v_add_u32 v%d, v%d, v%d" % (T3, T3, T2))
    for q in range(4):
        e("v_xor_b32 v%d, %d, v%d" % (T2, q, T0))
        e("v_lshl_add_u32 %s, v%d, 6, v%d" % (vr(vWr8[q]), T2, T3))
    e("s_and_b32 %s, %s, 1" % (sr(sT0), sr(sWave)))
    e("s_lshl_b32 %s, %s, 8" % (sr(sT1), sr(sT0)))
    e("v_add_u32 v%d, %s, v0" % (T0, sr(sT1)))
    for j in range(4):
        e("v_add_u32 v%d, %d, v%d" % (T1, 64 * j, T0))
        e("v_mul_u32_u24 v%d, 4682, v%d" % (T2, T1))
        e("v_lshrrev_b32 v%d, 16, v%d" % (T2, T2))
        e("v_mul_u32_u24 v%d, 14, v%d" % (T3, T2))
        e("v_sub_u32 v%d, v%d, v%d" % (T3, T1, T3))
        e("v_mul_u32_u24 v%d, 7168, v%d" % (T2, T2))
        e("v_lshl_add_u32 v%d, v%d, 4, v%d" % (T2, T3, T2))
        e("v_subrev_u32 %s, %d, v%d" % (vr(vWdN[j]), 1024 * j, T2))
    e("s_lshl_b32 %s, %s, 30" % (sr(sT1), sr(sT0)))
    e("v_or_b32 %s, %s, %s" % (vr(vWdN[3]), sr(sT1), vr(vWdN[3])))
    e("s_lshr_b32 %s, %s, 1" % (sr(sT1), sr(sWave)))
    e("s_mul_i32 %s, %s, 7296" % (sr(sT2), sr(sT1)))
    e("s_lshl_b32 %s, %s, 12" % (sr(sT3), sr(sT0)))
    e("s_add_u32 %s, %s, %s" % (sr(sGm0a), sr(sT2), sr(sT3)))
    e("s_cmp_eq_u32 %s, 0" % sr(sT0))
    e("s_cselect_b32 %s, %s, %d" % (sr(sGm0b), sr(sGm0a), 14464 - 3072))

    def set_next_gu():
        e("s_mov_b32 %s, %s" % (sr(sNXlo), sr(S_X)))
        e("s_mov_b32 %s, %s" % (sr(sNXhi), sr(S_X + 1)))
        e("s_mov_b32 %s, %d" % (sr(sNXn), 2048 * 1024 * 2))
        e("s_lshl_b32 %s, %s, 19" % (sr(sNXk), sr(sTm)))
        e("s_mov_b32 %s, 65536" % sr(sNXrow32))
        e("s_cmp_lt_u32 %s, 2" % sr(sWave))
        e("s_cselect_b32 %s, %s, %s" % (sr(sNWlo), sr(S_WG), sr(S_WU)))
        e("s_cselect_b32 %s, %s, %s" % (sr(sNWhi), sr(S_WG + 1), sr(S_WU + 1)))
        e("s_mov_b32 %s, %d" % (sr(sNWn), 1024 * 3584 * 2))
        e("s_mul_i32 %s, %s, 224" % (sr(sNWk), sr(sTn7)))
        e("s_mov_b32 %s, %d" % (sr(sNWstep), 32 * 7168))
        e("s_mov_b32 %s, %s" % (sr(sNm0a), sr(sGm0a)))
        e("s_mov_b32 %s, %s" % (sr(sNm0b), sr(sGm0b)))

    def set_next_v():
        e("s_mov_b32 %s, %s" % (sr(sNXlo), sr(S_CKV)))
        e("s_mov_b32 %s, %s" % (sr(sNXhi), sr(S_CKV + 1)))
        e("s_mov_b32 %s, %d" % (sr(sNXn), 2048 * 512 * 2))
        e("s_lshl_b32 %s, %s, 18" % (sr(sNXk), sr(sTm)))
        e("s_mov_b32 %s, 32768" % sr(sNXrow32))
        e("s_mov_b32 %s, %s" % (sr(sNWlo), sr(S_WUV)))
        e("s_mov_b32 %s, %s" % (sr(sNWhi), sr(S_WUV + 1)))
        e("s_mov_b32 %s, %d" % (sr(sNWn), 512 * 4096 * 2))
        e("s_lshl_b32 %s, %s, 9" % (sr(sNWk), sr(sTn8)))
        e("s_mov_b32 %s, %d" % (sr(sNWstep), 32 * 8192))
        e("s_mov_b32 %s, %s" % (sr(sNm0a), sr(sWm0a)))
        e("s_mov_b32 %s, %s" % (sr(sNm0b), sr(sWm0b)))

    e("s_cmp_eq_u32 %s, 0" % sr(sJob))
    e("s_cbranch_scc0 %s_nB" % name)
    set_next_gu()
    e("s_branch %s_nC" % name)
    a.label(name + "_nB")
    set_next_v()
    a.label(name + "_nC")
    e("s_lshl_b32 %s, %s, 14" % (sr(sT0), sr(sWave)))
    e("v_lshlrev_b32 %s, 4, v0" % vr(vSt))
    e("v_add_u32 %s, %s, %s" % (vr(vSt), sr(sT0), vr(vSt)))
    pf = OPT.get('pf', [[[2, 4], [4, 0], [0, 0], [7, 0], [8, 0]], [[7, 3], [8, 3], [5, 0], [5, 4], [9, 0], [9, 3]]])
    pf_lists(a, pf[0])
    e("s_lshl_b32 %s, s2, 2" % sr(sPfOff))
    e("s_add_u32 %s, %s, %s" % (sr(sPfOff), sr(sPfOff), sr(sWave)))
    e("s_lshl_b32 %s, %s, 12" % (sr(sPfOff), sr(sPfOff)))
    e("v_lshlrev_b32 %s, 6, v0" % vr(vPf))
    e("s_mov_b32 %s, 0" % sr(sPfB))
    e("s_mov_b32 %s, 0" % sr(sT3))

    def vsw_k(a, which):
        if which == 'W':
            l = a.newlabel("vsw")
            a.e("s_cmp_lg_u32 %s, 0" % sr(sJob))
            a.e("s_cbranch_scc1 %s" % l)
            for j in range(4):
                a.e("v_mov_b32 %s, %s" % (vr(vWd[j]), vr(vWdN[j])))
            a.label(l)

    def vsw_v(a, which):
        for j in range(4):
            if which == 'W':
                a.e("v_mov_b32 %s, %s" % (vr(vWd[j]), vr(vWdN[j])))
            else:
                a.e("v_mov_b32 %s, %s" % (vr(vXd[j]), vr(vXdN[j])))

    def vsw_g(a, which):
        if which == 'X':
            poll_check(a, 24, SRD_DBG, "0", 64, sT0)
            a.e("s_lshl_b32 %s, %s, 10" % (sr(sT0), sr(sTm)))
            a.e("s_lshl_b32 %s, %s, 8" % (sr(sT1), sr(sWave)))
            a.e("s_add_u32 %s, %s, %s" % (sr(sT0), sr(sT0), sr(sT1)))
            a.e("s_add_u32 %s, %s, %d" % (sr(sT0), sr(sT0), WS_G))
            a.e("v_and_b32 v24, 31, v0")
            a.e("v_lshlrev_b32 v24, 2, v24")
            a.e("buffer_load_dword %s, v24, %s, %s offen sc1" % (vr(vG1[0]), sr(SRD_WS, 4), sr(sT0)))
            a.e("buffer_load_dword %s, v24, %s, %s offen offset:128 sc1" % (vr(vG1[1]), sr(SRD_WS, 4), sr(sT0)))

    def hook_g(a):
        l1_ = a.newlabel("hk")
        l2_ = a.newlabel("hk")
        a.e("s_cmp_lg_u32 %s, 7" % sr(sIter))
        a.e("s_cbranch_scc1 %s" % l1_)
        flag_store(a, "byte", 24, "1", SRD_DBG, "s2")
        a.label(l1_)
        a.e("s_cmp_lg_u32 %s, 2" % sr(sIter))
        a.e("s_cbranch_scc1 %s" % l2_)
        a.e(poll_issue(24, SRD_DBG, "0"))
        a.label(l2_)

    e("s_waitcnt vmcnt(28)")
    e("v_mov_b32 v30, 0")
    e("v_mov_b32 v31, 0")
    for i in range(8):
        e("v_dot2_f32_bf16 v30, v%d, v%d, v30" % (32 + i, 48 + i))
        e("v_dot2_f32_bf16 v31, v%d, v%d, v31" % (40 + i, 48 + i))
    e("s_nop 2")
    for mode in ("row_shr:1", "row_shr:2", "row_shr:4", "row_shr:8", "row_bcast:15 row_mask:0xa", "row_bcast:31 row_mask:0xc"):
        rm = "" if "row_mask" in mode else " row_mask:0xf"
        e("v_add_f32_dpp v30, v30, v30 %s%s bank_mask:0xf" % (mode, rm))
        e("v_add_f32_dpp v31, v31, v31 %s%s bank_mask:0xf" % (mode, rm))
        e("s_nop 0")
    e("v_mul_f32 v30, %s, v30" % f32(-1.4426950408889634))
    e("v_mul_f32 v31, %s, v31" % f32(-1.4426950408889634))
    e("v_exp_f32 v30, v30")
    e("v_exp_f32 v31, v31")
    e("s_nop 0")
    e("v_add_f32 v30, 1.0, v30")
    e("v_add_f32 v31, 1.0, v31")
    e("v_rcp_f32 v30, v30")
    e("v_rcp_f32 v31, v31")
    e("s_mov_b32 exec_lo, 0")
    e("s_brev_b32 exec_hi, 1")
    e("buffer_store_dwordx2 v[30:31], off, %s, %s%s" % (sr(SRD_WS, 4), sr(sGoff), SC))
    e("s_and_b32 %s, s2, 7" % sr(sT0))
    e("s_lshr_b32 %s, s2, 3" % sr(sT1))
    e("s_lshl_b32 %s, %s, 2" % (sr(sT2), sr(sT0)))
    e("s_lshr_b32 %s, %s, 3" % (sr(sT3), sr(sT1)))
    e("s_add_u32 %s, %s, %s" % (sr(sT2), sr(sT2), sr(sT3)))
    e("s_lshl_b32 %s, %s, 2" % (sr(sT2), sr(sT2)))
    e("s_and_b32 %s, %s, 7" % (sr(sT3), sr(sT1)))
    e("s_sub_u32 %s, 15, %s" % (sr(sOb), sr(sT3)))
    e("s_cmp_eq_u32 %s, 1" % sr(sWave))
    e("s_cselect_b32 %s, %s, %s" % (sr(sT3), sr(sT3), sr(sOb)))
    e("s_lshl_b32 %s, %s, 7" % (sr(sT3), sr(sT3)))
    e("s_add_u32 %s, %s, %s" % (sr(sT2), sr(sT2), sr(sT3)))
    e("s_add_u32 %s, %s, %d" % (sr(sT2), sr(sT2), WS_F3))
    e("s_and_b32 %s, s2, 127" % sr(sT3))
    e("s_lshl_b32 %s, %s, 7" % (sr(sT3), sr(sT3)))
    e("s_add_u32 %s, %s, %d" % (sr(sT3), sr(sT3), WS_FP))
    e("s_cmp_eq_u32 %s, 3" % sr(sWave))
    e("s_cselect_b32 %s, %s, %s" % (sr(sT2), sr(sT3), sr(sT2)))
    e("s_add_u32 %s, s2, %d" % (sr(sT3), WS_F2))
    e("v_mov_b32 v30, 0")
    e("s_cmp_eq_u32 %s, 0" % sr(sWave))
    e("s_cbranch_scc1 %s_z0" % name)
    e("buffer_store_dword v30, off, %s, %s sc1" % (sr(SRD_WS, 4), sr(sT2)))
    e("s_branch %s_z1" % name)
    a.label(name + "_z0")
    e("buffer_store_byte v30, off, %s, %s sc1" % (sr(SRD_WS, 4), sr(sT3)))
    a.label(name + "_z1")
    e("s_mov_b64 exec, -1")
    e("s_mov_b32 %s, 0" % sr(sT3))
    interval(a, 'K', 0, 'A', kindA='none')
    interval(a, 'K', 0, 'B', zeroB=True)
    e("s_branch %s_k_entry" % name)
    loop(a, 'K', name + "_k", vsw_k)
    e("s_cmp_lg_u32 %s, 0" % sr(sJob))
    e("s_cbranch_scc1 %s_k2v" % name)
    interval(a, 'G', 0, 'A', kindA='K')
    qs = 1.4426950408889634 / (128.0 ** 0.5)
    e("s_mov_b32 %s, %s" % (sr(sCA), f32(qs)))
    e("s_mov_b32 %s, %s" % (sr(sCA + 1), f32(qs)))
    e("s_lshl_b32 %s, %s, 20" % (sr(sOb), sr(sTn8)))
    e("s_lshl_b32 %s, %s, 16" % (sr(sT0), sr(sTm)))
    e("s_add_u32 %s, %s, %s" % (sr(sOb), sr(sOb), sr(sT0)))
    epilogue_kqv(a, 'K', scale=sCA)
    e("s_branch %s_gu_start" % name)
    a.label(name + "_k2v")
    interval(a, 'V', 0, 'A', kindA='K')
    e("s_lshl_b32 %s, %s, 20" % (sr(sOb), sr(sTn8)))
    e("s_lshl_b32 %s, %s, 16" % (sr(sT0), sr(sTm)))
    e("s_add_u32 %s, %s, %s" % (sr(sOb), sr(sOb), sr(sT0)))
    e("s_add_u32 %s, %s, %d" % (sr(sOb), sr(sOb), WS_K))
    epilogue_kqv(a, 'K')
    set_next_gu()
    e("s_mov_b32 %s, 4" % sr(sIter))
    interval(a, 'V', 0, 'B', zeroB=True)
    e("s_branch %s_v_entry" % name)
    loop(a, 'V', name + "_v", vsw_v)
    interval(a, 'G', 0, 'A', kindA='V')
    e("s_add_u32 %s, %s, %d" % (sr(sOb), sr(sOb), WS_V - WS_K))
    epilogue_kqv(a, 'V')
    a.label(name + "_gu_start")
    e("s_mov_b32 %s, 0" % sr(sNXn))
    e("s_mov_b32 %s, 0" % sr(sNWn))
    pf_lists(a, pf[1])
    e("s_mov_b32 %s, 8" % sr(sIter))
    interval(a, 'G', 0, 'B', zeroB=True)
    e("s_branch %s_g_entry" % name)
    loop(a, 'G', name + "_g", vsw_g, hook_g)
    stamp_ts(a)
    e("s_waitcnt vmcnt(0) lgkmcnt(0)")
    e("s_barrier")
    for m in mfmas('G', 1):
        e(m)
    att_prologue(a)
    e("s_mul_i32 %s, %s, %d" % (sr(sOb), sr(sTm), 8 * 480 * 1024))
    e("s_mul_i32 %s, %s, 7168" % (sr(sT0), sr(sTn7)))
    e("s_add_u32 %s, %s, %s" % (sr(sOb), sr(sOb), sr(sT0)))
    e("s_add_u32 %s, %s, %d" % (sr(sOb), sr(sOb), WS_A3 + 256 * 1024))
    e("s_mul_i32 %s, %s, %d" % (sr(sT0), sr(sWave), 2 * 480 * 1024))
    e("v_lshlrev_b32 %s, 4, v0" % vr(vSt))
    e("v_add_u32 %s, %s, %s" % (vr(vSt), sr(sT0), vr(vSt)))
    epilogue_gu(a)
    stamp_ts(a)


NSLOT = 5
aHead, aPair, aQb, aN, aT, aThr, aLoop, aRd, aWr, aWrEnd = range(16, 26)
aDT, aDNT, aDK, aDV, aKb, aVb, aNTB, aT0, aT1, aT2 = range(26, 36)
aBlk, aMaskB, aTHR, aWrBeg, aNEG, aSig, aPl = range(36, 43)
aCmp = 56

vLane16, vDma, vRd, vDl, vNegm, vL, vLs, vG = 1, 2, 3, 4, 5, 6, 7, 8
vTmp = [10, 11, 12, 13]
vPoll2 = 14
vE = [16, 17, 18, 19, 20, 21, 22, 23]
vC = 32
vS = [48, 64]
vP = [80, 88]
vO = 96
rQ, rQ2, rK, rV = 0, 32, 64, 96


def qk_mfmas(par):
    out = []
    for ks in range(8):
        c = vr(vC, 16) if ks == 0 else vr(vS[par], 16)
        out.append("v_mfma_f32_32x32x16_bf16 %s, %s, %s, %s" % (vr(vS[par], 16), ar(rK + 4 * ks, 4), ar(rQ + 4 * ks, 4), c))
    return out


def pv_mfmas(par):
    out = []
    for g in range(2):
        for db in range(4):
            o = vr(vO + 16 * db, 16)
            out.append("v_mfma_f32_32x32x16_bf16 %s, %s, %s, %s" % (o, ar(rV + 4 * (g * 4 + db), 4), vr(vP[par] + 4 * g, 4), o))
    return out


def k_reads(sb):
    return ["ds_read_b128 %s, %s offset:%d" % (ar(rK + 4 * ks, 4), vr(vRd), sb * 8192 + ks * 1024) for ks in range(8)]


def v_reads(sb):
    return ["ds_read_b128 %s, %s offset:%d" % (ar(rV + 4 * j, 4), vr(vRd), 16384 + sb * 8192 + j * 1024) for j in range(8)]


def sm_items(par):
    it = []
    S, P = vS[par], vP[par]
    pend = []
    for r in range(16):
        e = vE[r % 8]
        it.append((8, "v_exp_f32 %s, %s" % (vr(e), vr(S + r))))
        it.extend(pend)
        pend = []
        if r == 1:
            pend.append((4, "v_add_f32 %s, %s, %s" % (vr(vLs), vr(vE[0]), vr(vE[1]))))
        elif r > 1:
            pend.append((4, "v_add_f32 %s, %s, %s" % (vr(vLs), vr(vLs), vr(e))))
        if r & 1:
            pend.append((4, "v_cvt_pk_bf16_f32 %s, %s, %s" % (vr(P + (r >> 1)), vr(vE[(r - 1) % 8]), vr(e))))
    it.extend(pend)
    it.append((4, "v_cmp_lt_f32 vcc, %s, %s" % (sr(aTHR), vr(vLs))))
    return it


def a_dma(which):
    m0 = "s_mov_b32 m0, %s" % sr(aWr) if which == 'K' else "s_add_u32 m0, %s, 16384" % sr(aWr)
    so = aDK if which == 'K' else aDV
    d = ["buffer_load_dwordx4 %s, %s, %s offen offset:%d lds" % (vr(vDma), sr(SRD_WS, 4), sr(so), j * 1024) for j in range(4)]
    return m0, d


def a_dma_advance():
    return [
        "s_add_u32 %s, %s, 32768" % (sr(aWr), sr(aWr)),
        "s_cmp_eq_u32 %s, %s" % (sr(aWr), sr(aWrEnd)),
        "s_cselect_b32 %s, %s, %s" % (sr(aWr), sr(aWrBeg), sr(aWr)),
        "s_add_u32 %s, %s, 1" % (sr(aDT), sr(aDT)),
        "s_cmp_gt_u32 %s, %s" % (sr(aDT), sr(aDNT)),
        "s_cselect_b32 %s, 0, %s" % (sr(aDT), sr(aDT)),
        "s_cselect_b32 %s, %s, %s" % (sr(aDNT), sr(aNTB), sr(aDNT)),
        "s_sub_u32 %s, %s, 1" % (sr(aT0), sr(aDNT)),
        "s_min_u32 %s, %s, %s" % (sr(aT0), sr(aT0), sr(aDT)),
        "s_lshl_b32 %s, %s, 14" % (sr(aT0), sr(aT0)),
        "s_add_u32 %s, %s, %s" % (sr(aDK), sr(aT0), sr(aKb)),
        "s_max_u32 %s, %s, 1" % (sr(aT0), sr(aDT)),
        "s_lshl_b32 %s, %s, 14" % (sr(aT0), sr(aT0)),
        "s_add_u32 %s, %s, %s" % (sr(aDV), sr(aT0), sr(aVb)),
    ]


def a_rd_advance():
    return [
        "s_add_u32 %s, %s, 32768" % (sr(aRd), sr(aRd)),
        "s_cmp_eq_u32 %s, %d" % (sr(aRd), NSLOT * 32768),
        "s_cselect_b32 %s, 0, %s" % (sr(aRd), sr(aRd)),
    ]


def stage_sched(par, qk=True, pv=True, kr=True):
    mf = (qk_mfmas(par ^ 1) if qk else [None] * 8) + (pv_mfmas(par ^ 1) if pv else [None] * 8)
    fill = {g: [] for g in range(16)}
    used = {g: 0 for g in range(16)}

    def put(g, s, c=4):
        fill[g].append(s)
        used[g] += c
    pre = {g: [] for g in range(16)}
    for j, r in enumerate(v_reads(1 if par == 0 else 0)):
        put(j, r)
    if kr:
        for j, r in enumerate(k_reads(0 if par == 0 else 1)):
            put(8 + j, r)
    if qk:
        pre[0].append("s_waitcnt lgkmcnt(4)")
        pre[4].append("s_waitcnt lgkmcnt(4)")
    if pv:
        pre[8].append("s_waitcnt lgkmcnt(4)")
        pre[12].append("s_waitcnt lgkmcnt(%d)" % (4 if kr else 0))
    for g in (4, 8, 12):
        if pre[g]:
            used[g - 1] += 4
    put(0, "v_add_f32 %s, %s, %s" % (vr(vL), vr(vL), vr(vLs)))
    if par == 0:
        m0, d = a_dma('K')
        put(8, m0)
        for j in range(4):
            put(9 + 2 * j, d[j])
        for x in a_rd_advance():
            put(6, x)
    else:
        m0, d = a_dma('V')
        put(0, m0)
        for j in range(4):
            put(1 + 2 * j, d[j])
        adv = a_dma_advance()
        for g, lo, hi in ((9, 0, 3), (11, 3, 7), (13, 7, 11), (14, 11, 14)):
            for x in adv[lo:hi]:
                put(g, x)
    g = 0
    for c, s in sm_items(par):
        while g < 15 and used[g] + c > 24:
            g += 1
        put(g, s, c)
    put(15, "s_cmp_ge_u32 %s, %s" % (sr(aT), sr(aThr)))
    return mf, fill, pre


def emit_half(a, sched, lo, hi):
    mf, fill, pre = sched
    for g in range(lo, hi):
        for s in pre[g]:
            a.e(s)
        if mf[g]:
            a.e(mf[g])
        for s in fill[g]:
            a.e(s)


def a_barrier(a):
    a.e("s_waitcnt vmcnt(16)")
    a.e("s_barrier")
    a.e("v_add_u32 %s, %s, %s" % (vr(vRd), sr(aRd), vr(vLane16)))


def maskprep(a):
    e = a.e
    e("s_lshl_b32 %s, %s, 5" % (sr(aT1), sr(aT1)))
    e("s_sub_i32 %s, %s, %s" % (sr(aT1), sr(aMaskB), sr(aT1)))
    e("v_add_u32 %s, %s, %s" % (vr(vTmp[0]), sr(aT1), vr(vDl)))
    e("v_mov_b32 %s, %s" % (vr(vTmp[1]), sr(aNEG)))
    for r in range(16):
        kc = 8 * (r >> 2) + (r & 3)
        e("v_cmp_gt_i32 %s, %d, %s" % (sr(aCmp + 2 * (r & 3), 2), kc, vr(vTmp[0])))
        if (r & 3) == 3:
            for q in range(4):
                e("v_cndmask_b32 %s, %s, %s, %s" % (vr(vC + r - 3 + q), vr(vNegm), vr(vTmp[1]), sr(aCmp + 2 * q, 2)))


def stage_end(a, par, handlers):
    ret, sp, sl = a.newlabel("aret"), a.newlabel("asp"), a.newlabel("asl")
    a.e("s_cbranch_scc1 %s" % sp)
    a.e("s_cbranch_vccnz %s" % sl)
    a.label(ret)
    a.e("s_add_u32 %s, %s, 1" % (sr(aT), sr(aT)))
    handlers.append((par, sp, sl, ret))


def emit_handler(a, par, sp, sl, ret):
    e = a.e
    S, Sn, P = vS[par], vS[par ^ 1], vP[par]
    mask, common = a.newlabel("hmask"), a.newlabel("hcommon")
    sig = a.newlabel("hsig")
    a.label(sp)
    e("s_cmp_eq_u32 %s, -1" % sr(aT))
    e("s_cbranch_scc1 %s" % sig)
    e("s_cbranch_vccz %s" % mask)
    e("s_branch %s" % sl)
    a.label(sig)
    b1 = a.newlabel("hb1")
    e("s_cmp_lg_u32 %s, 0" % sr(aBlk))
    e("s_cbranch_scc1 %s" % b1)
    flag_store(a, "byte", 24, "1", SRD_WS, sr(aSig))
    e("s_branch %s" % sl)
    a.label(b1)
    flag_store(a, "dword", 24, "0x%x" % ALL1, SRD_WS, sr(aSig))
    a.label(sl)
    t0, t1 = vTmp[0], vTmp[1]
    e("v_max3_f32 %s, %s, %s, %s" % (vr(t0), vr(S), vr(S + 1), vr(S + 2)))
    for r in range(3, 15, 2):
        e("v_max3_f32 %s, %s, %s, %s" % (vr(t0), vr(t0), vr(S + r), vr(S + r + 1)))
    e("v_max_f32 %s, %s, %s" % (vr(t0), vr(t0), vr(S + 15)))
    e("v_mov_b32 %s, %s" % (vr(t1), vr(t0)))
    e("s_nop 1")
    e("v_permlane32_swap_b32 %s, %s" % (vr(t0), vr(t1)))
    e("s_nop 1")
    e("v_max_f32 %s, %s, %s" % (vr(t0), vr(t0), vr(t1)))
    e("s_cmp_eq_u32 %s, -1" % sr(aT))
    e("s_cbranch_scc1 %s" % common)
    e("v_max_f32 %s, 0, %s" % (vr(t0), vr(t0)))
    e("v_exp_f32 %s, -%s" % (vr(t1), vr(t0)))
    e("s_nop 0")
    e("v_mul_f32 %s, %s, %s" % (vr(vL), vr(vL), vr(t1)))
    for i in range(64):
        e("v_mul_f32 %s, %s, %s" % (vr(vO + i), vr(vO + i), vr(t1)))
    a.label(common)
    e("v_sub_f32 %s, %s, %s" % (vr(vNegm), vr(vNegm), vr(t0)))
    for r in range(16):
        e("v_sub_f32 %s, %s, %s" % (vr(Sn + r), vr(Sn + r), vr(t0)))
    for r in range(16):
        e("v_sub_f32 %s, %s, %s" % (vr(S + r), vr(S + r), vr(t0)))
    for r in range(16):
        e("v_exp_f32 %s, %s" % (vr(S + r), vr(S + r)))
    e("v_add_f32 %s, %s, %s" % (vr(vLs), vr(S), vr(S + 1)))
    for r in range(2, 16):
        e("v_add_f32 %s, %s, %s" % (vr(vLs), vr(vLs), vr(S + r)))
    for r in range(8):
        e("v_cvt_pk_bf16_f32 %s, %s, %s" % (vr(P + r), vr(S + 2 * r), vr(S + 2 * r + 1)))
    a.label(mask)
    e("s_add_u32 %s, %s, 3" % (sr(aT1), sr(aT)))
    maskprep(a)
    e("s_branch %s" % ret)


def att_prologue(a):
    e = a.e
    e("s_and_b32 %s, s2, 7" % sr(aT0))
    e("s_lshr_b32 %s, s2, 3" % sr(aT1))
    e("s_and_b32 %s, %s, 7" % (sr(aPair), sr(aT1)))
    e("s_lshr_b32 %s, %s, 3" % (sr(aT1), sr(aT1)))
    e("s_lshl_b32 %s, %s, 2" % (sr(aHead), sr(aT0)))
    e("s_add_u32 %s, %s, %s" % (sr(aHead), sr(aHead), sr(aT1)))
    e("s_mov_b32 %s, %s" % (sr(aTHR), f32(4096.0)))
    e("s_mov_b32 %s, %s" % (sr(aNEG), f32(-1e30)))
    e("v_lshlrev_b32 %s, 4, v0" % vr(vLane16))
    e("s_lshl_b32 %s, %s, 12" % (sr(aWrBeg), sr(sWave)))
    e("v_add_u32 %s, %s, %s" % (vr(vDma), sr(aWrBeg), vr(vLane16)))
    e("s_mov_b32 %s, %s" % (sr(aWr), sr(aWrBeg)))
    e("s_add_u32 %s, %s, %d" % (sr(aWrEnd), sr(aWrBeg), NSLOT * 32768))
    e("s_mov_b32 %s, 0" % sr(aRd))
    e("v_and_b32 v24, 31, v0")
    e("v_lshrrev_b32 v25, 5, v0")
    e("v_lshlrev_b32 v25, 2, v25")
    e("v_sub_u32 %s, v24, v25" % vr(vDl))
    e("v_lshlrev_b32 v24, 2, v24")
    e("s_lshl_b32 %s, %s, 19" % (sr(aT0), sr(aHead)))
    e("s_add_u32 %s, %s, %d" % (sr(aKb), sr(aT0), WS_K))
    e("s_add_u32 %s, %s, %d" % (sr(aVb), sr(aT0), WS_V - 16384))
    e("s_sub_u32 %s, 15, %s" % (sr(aQb), sr(aPair)))
    e("s_add_u32 %s, %s, 1" % (sr(aDNT), sr(aQb)))
    e("s_lshl_b32 %s, %s, 1" % (sr(aDNT), sr(aDNT)))
    e("s_add_u32 %s, %s, 1" % (sr(aNTB), sr(aPair)))
    e("s_lshl_b32 %s, %s, 1" % (sr(aNTB), sr(aNTB)))
    e("s_mov_b32 %s, 0" % sr(aDT))
    e("s_mov_b32 %s, %s" % (sr(aDK), sr(aKb)))
    e("s_add_u32 %s, %s, 16384" % (sr(aDV), sr(aVb)))
    e("s_mov_b32 %s, 0" % sr(aBlk))
    e("s_add_u32 %s, s2, %d" % (sr(aSig), WS_F2))
    e("s_mov_b32 %s, %d" % (sr(aPl), WS_F2))

    def qload(areg, qb, vg):
        e("s_lshl_b32 %s, %s, 2" % (sr(aT1), sr(qb)))
        e("s_add_u32 %s, %s, %s" % (sr(aT1), sr(aT1), sr(sWave)))
        e("s_lshl_b32 %s, %s, 13" % (sr(aT2), sr(aT1)))
        e("s_lshl_b32 %s, %s, 19" % (sr(aT0), sr(aHead)))
        e("s_add_u32 %s, %s, %s" % (sr(aT2), sr(aT2), sr(aT0)))
        e("s_add_u32 %s, %s, 4096" % (sr(aT0), sr(aT2)))
        for ks in range(8):
            e("buffer_load_dwordx4 %s, %s, %s, %s offen offset:%d" % (
                ar(areg + 4 * ks, 4), vr(vLane16), sr(SRD_WS, 4), sr(aT2 if ks < 4 else aT0), (ks & 3) * 1024))
        e("s_lshl_b32 %s, %s, 7" % (sr(aT1), sr(aT1)))
        e("s_add_u32 %s, %s, %d" % (sr(aT1), sr(aT1), WS_G))
        e("buffer_load_dword %s, v24, %s, %s offen sc1" % (vr(vg), sr(SRD_WS, 4), sr(aT1)))
    qload(rQ, aQb, vG)
    for i in range(3):
        for w in ('K', 'V'):
            m0, d = a_dma(w)
            e(m0)
            e("s_nop 0")
            for x in d:
                e(x)
        for x in a_dma_advance():
            e(x)
    qload(rQ2, aPair, vG + 1)


def part2(a, name, out_prologue, handlers):
    e = a.e
    e("s_waitcnt vmcnt(14)")
    a.label(name + "_blk")
    e("s_add_u32 %s, %s, 1" % (sr(aN), sr(aQb)))
    e("s_lshl_b32 %s, %s, 1" % (sr(aLoop), sr(aN)))
    e("s_lshl_b32 %s, %s, 2" % (sr(aN), sr(aN)))
    e("s_sub_u32 %s, %s, 1" % (sr(aLoop), sr(aLoop)))
    e("s_max_u32 %s, %s, 7" % (sr(aThr), sr(aN)))
    e("s_sub_u32 %s, %s, 7" % (sr(aThr), sr(aThr)))
    e("s_add_u32 %s, %s, %s" % (sr(aMaskB), sr(aN), sr(sWave)))
    e("s_sub_u32 %s, %s, 4" % (sr(aMaskB), sr(aMaskB)))
    e("s_lshl_b32 %s, %s, 5" % (sr(aMaskB), sr(aMaskB)))
    e("s_mov_b32 %s, -1" % sr(aT))
    e("v_mov_b32 %s, 0" % vr(vNegm))
    e("v_mov_b32 %s, 0" % vr(vL))
    e("v_mov_b32 %s, 0" % vr(vLs))
    a_barrier(a)
    for r in k_reads(0):
        e(r)
    m0, d = a_dma('K')
    e(m0)
    e("s_mov_b32 %s, 0" % sr(aT1))
    for x in d:
        e(x)
    e("s_cmp_eq_u32 %s, 0" % sr(aBlk))
    e("s_cbranch_scc1 %s_nopl" % name)
    e(poll_issue(vPoll2, SRD_WS, sr(aPl)))
    a.label(name + "_nopl")
    maskprep(a)
    for i in range(8):
        e("v_mov_b32 %s, 0" % vr(vP[1] + i))
    e("s_waitcnt lgkmcnt(0)")
    q0, kr1 = qk_mfmas(0), k_reads(1)
    m0, d = a_dma('V')
    e(m0)
    for i in range(8):
        e(q0[i])
        e(kr1[i])
        if i < 4:
            e(d[i])
        for j in range(4):
            e("v_mov_b32 %s, 0" % vr(vO + 4 * i + j))
    for x in a_dma_advance():
        e(x)
    e("s_mov_b32 %s, 1" % sr(aT1))
    maskprep(a)
    e("s_waitcnt lgkmcnt(0)")
    q1, vr1 = qk_mfmas(1), v_reads(1)
    for i in range(8):
        e(q1[i])
        e(vr1[i])
        for j in range(4):
            e("v_mov_b32 %s, 0" % vr(vO + 32 + 4 * i + j))
    for x in a_rd_advance():
        e(x)
    e("s_waitcnt vmcnt(8)")
    ev, od = stage_sched(0), stage_sched(1)
    a.label(name + "_aloop")
    stamp_ts(a)
    a_barrier(a)
    emit_half(a, ev, 8, 16)
    stage_end(a, 0, handlers)
    emit_half(a, od, 0, 16)
    stage_end(a, 1, handlers)
    emit_half(a, ev, 0, 8)
    e("s_sub_u32 %s, %s, 1" % (sr(aLoop), sr(aLoop)))
    e("s_cmp_lg_u32 %s, 0" % sr(aLoop))
    e("s_cbranch_scc1 %s_aloop" % name)
    ev2, od2 = stage_sched(0, kr=False), stage_sched(1, qk=False, kr=False)
    a_barrier(a)
    emit_half(a, ev2, 8, 16)
    stage_end(a, 0, handlers)
    emit_half(a, od2, 0, 16)
    stage_end(a, 1, handlers)
    for r in v_reads(1):
        e(r)
    e("v_add_f32 %s, %s, %s" % (vr(vL), vr(vL), vr(vLs)))
    for x in a_rd_advance():
        e(x)
    e("v_mov_b32 %s, %s" % (vr(vTmp[0]), vr(vL)))
    e("s_nop 1")
    e("v_permlane32_swap_b32 %s, %s" % (vr(vTmp[0]), vr(vL)))
    e("s_nop 1")
    e("v_add_f32 %s, %s, %s" % (vr(vL), vr(vL), vr(vTmp[0])))
    e("v_rcp_f32 %s, %s" % (vr(vL), vr(vL)))
    pv = pv_mfmas(1)
    e("s_waitcnt lgkmcnt(4)")
    for i in range(4):
        e(pv[i])
    e("s_waitcnt lgkmcnt(0)")
    for i in range(4, 8):
        e(pv[i])
    e("v_mul_f32 %s, %s, %s" % (vr(vTmp[0]), vr(vL), vr(vG)))
    e("v_mov_b32 %s, %s" % (vr(vTmp[1]), vr(vTmp[0])))
    e("s_cmp_eq_u32 %s, 0" % sr(aBlk))
    e("s_cbranch_scc1 %s_nopro" % name)
    out_prologue(a)
    a.label(name + "_nopro")
    e("s_lshl_b32 %s, %s, 2" % (sr(aT1), sr(aQb)))
    e("s_add_u32 %s, %s, %s" % (sr(aT1), sr(aT1), sr(sWave)))
    e("s_mul_i32 %s, %s, %d" % (sr(aT1), sr(aT1), 480 * 1024))
    e("s_lshl_b32 %s, %s, 13" % (sr(aT2), sr(aHead)))
    e("s_add_u32 %s, %s, %s" % (sr(aT1), sr(aT1), sr(aT2)))
    e("s_add_u32 %s, %s, %d" % (sr(aT1), sr(aT1), WS_A3))
    e("s_add_u32 %s, %s, 4096" % (sr(aT2), sr(aT1)))
    e("s_nop 3")
    for db in range(4):
        r = vO + 16 * db
        for i in range(0, 16, 2):
            e("v_pk_mul_f32 %s, %s, %s" % (vr(r + i, 2), vr(r + i, 2), vr(vTmp[0], 2)))
        for g in range(2):
            for i in range(4):
                e("v_cvt_pk_bf16_f32 %s, %s, %s" % (vr(r + 8 * g + i), vr(r + 8 * g + 2 * i), vr(r + 8 * g + 2 * i + 1)))
            fi = db * 2 + g
            e("buffer_store_dwordx4 %s, %s, %s, %s offen offset:%d%s" % (
                vr(r + 8 * g, 4), vr(vLane16), sr(SRD_WS, 4), sr(aT1 if fi < 4 else aT2), (fi & 3) * 1024, SC))
    e("s_cmp_lg_u32 %s, 0" % sr(aBlk))
    e("s_cbranch_scc1 %s_afin" % name)
    e("s_mov_b32 %s, 1" % sr(aBlk))
    e("s_lshl_b32 %s, %s, 7" % (sr(aSig), sr(aQb)))
    e("s_lshl_b32 %s, %s, 2" % (sr(aT1), sr(aHead)))
    e("s_add_u32 %s, %s, %s" % (sr(aSig), sr(aSig), sr(aT1)))
    e("s_add_u32 %s, %s, %d" % (sr(aSig), sr(aSig), WS_F3))
    e("s_mov_b32 %s, %d" % (sr(aPl), WS_F2))
    e("s_mov_b32 %s, %s" % (sr(aQb), sr(aPair)))
    for i in range(32):
        e("v_accvgpr_mov_b32 %s, %s" % (ar(rQ + i), ar(rQ2 + i)))
    e("v_mov_b32 %s, %s" % (vr(vG), vr(vG + 1)))
    e("s_branch %s_blk" % name)
    a.label(name + "_afin")
    stamp_ts(a)


SRD_OUT = SRD_X
oTm, oTn, oRole, oXk, oWk, oIter, oM0, oT0, oT1, oT2, oTile, oSw, oXk2, oWk2, oBit, oC3 = range(68, 84)
oWO, oWD, oOUT = 84, 86, 88
vX = [16, 17, 18, 19]
vWd3 = [20, 21, 22, 23]
vWr3 = [24, 25, 26, 27]
vSigW = 28
vPoll3 = 15
vWF = 32
vTMP = 64
vACC = 128
aACC = 0
aX = 128


def acc3(nb, tb):
    if tb < 2:
        return ('v', vACC + 16 * (tb * 4 + nb))
    return ('a', aACC + 16 * ((tb - 2) * 4 + nb))


def loads3(slot):
    pre = "s_add_u32 m0, %s, %d" % (sr(oM0), slot * 4096)
    d = ["buffer_load_dwordx4 %s, %s, %s offen offset:%d lds" % (vr(vWd3[j]), sr(SRD_W, 4), sr(oWk), j * 1024) for j in range(4)]
    x = ["buffer_load_dwordx4 %s, %s, %s, %s offen" % (ar(aX + 16 * slot + 4 * tb, 4), vr(vX[tb]), sr(SRD_WS, 4), sr(oXk)) for tb in range(4)]
    post = ["s_add_u32 %s, %s, %d" % (sr(oWk), sr(oWk), 64 * 2048), "s_add_u32 %s, %s, 4096" % (sr(oXk), sr(oXk))]
    return pre, d, x, post


def wreads3(slot, fs):
    out = []
    for nb in range(4):
        for t in range(2):
            out.append("ds_read_b64_tr_b16 %s, %s offset:%d" % (vr(vWF + 16 * fs + 4 * nb + 2 * t, 2), vr(vWr3[nb]), slot * 4096 + t * 2048))
    return out


def step3(a, i, zero=False, do_load=True, do_read=True, vm=44):
    slot, fs = i % 8, i % 2
    a.e("s_waitcnt vmcnt(%d) lgkmcnt(0)" % vm)
    mf = []
    for nb in range(4):
        for tb in range(4):
            d = reg(acc3(nb, tb), 16)
            mf.append("v_mfma_f32_32x32x16_bf16 %s, %s, %s, %s" % (d, vr(vWF + 16 * fs + 4 * nb, 4), ar(aX + 16 * slot + 4 * tb, 4), "0" if zero else d))
    fill = {}
    if do_read:
        for j, r in enumerate(wreads3((i + 1) % 8, fs ^ 1)):
            fill.setdefault(j, []).append(r)
    if do_load:
        pre, d, x, post = loads3((i + 7) % 8)
        fill.setdefault(0, []).append(pre)
        for j in range(4):
            fill.setdefault(1 + 2 * j, []).append(d[j])
        for j in range(4):
            fill.setdefault(8 + 2 * j, []).append(x[j])
        fill.setdefault(15, []).extend(post)
    interleave(a, mf, fill)


def out_prologue(a):
    e = a.e
    e("s_load_dwordx2 %s, s[0:1], 40" % sr(oWO, 2))
    e("s_load_dwordx2 %s, s[0:1], 72" % sr(oWD, 2))
    e("s_load_dwordx2 %s, s[0:1], 88" % sr(oOUT, 2))
    e("s_and_b32 %s, s2, 7" % sr(oT0))
    e("s_lshr_b32 %s, s2, 3" % sr(oT1))
    e("s_and_b32 %s, %s, 3" % (sr(oTm), sr(oT0)))
    e("s_lshl_b32 %s, %s, 2" % (sr(oTm), sr(oTm)))
    e("s_and_b32 %s, %s, 3" % (sr(oT2), sr(oT1)))
    e("s_add_u32 %s, %s, %s" % (sr(oTm), sr(oTm), sr(oT2)))
    e("s_lshr_b32 %s, %s, 2" % (sr(oTn), sr(oT0)))
    e("s_lshl_b32 %s, %s, 2" % (sr(oTn), sr(oTn)))
    e("s_bfe_u32 %s, %s, 0x20002" % (sr(oT2), sr(oT1)))
    e("s_add_u32 %s, %s, %s" % (sr(oTn), sr(oTn), sr(oT2)))
    e("s_lshr_b32 %s, %s, 4" % (sr(oRole), sr(oT1)))
    e("s_lshl_b32 %s, %s, 3" % (sr(oTile), sr(oTm)))
    e("s_add_u32 %s, %s, %s" % (sr(oTile), sr(oTile), sr(oTn)))
    e("s_mov_b32 %s, %d" % (sr(SRD_OUT + 2), 2048 * 1024 * 2))
    e("s_lshl_b32 %s, %s, 15" % (sr(oM0), sr(sWave)))
    for tb in range(4):
        e("s_xor_b32 %s, %s, %d" % (sr(oT0), sr(sWave), tb))
        e("s_mul_i32 %s, %s, %d" % (sr(oT0), sr(oT0), 480 * 1024))
        e("v_add_u32 %s, %s, %s" % (vr(vX[tb]), sr(oT0), vr(vLane16)))
    e("v_lshrrev_b32 v32, 4, v0")
    e("v_bfe_u32 v33, v0, 2, 2")
    e("v_xor_b32 v34, v33, v32")
    e("v_and_b32 v35, 3, v0")
    e("v_lshlrev_b32 v36, 11, v32")
    e("v_lshl_add_u32 v36, v34, 6, v36")
    e("v_lshl_add_u32 %s, v35, 4, v36" % vr(vWd3[0]))
    for j in range(1, 4):
        e("v_add_u32 %s, %d, %s" % (vr(vWd3[j]), j * 7168, vr(vWd3[0])))
    e("v_lshrrev_b32 v32, 5, v0")
    e("v_lshl_add_u32 v32, v32, 2, v33")
    e("v_lshlrev_b32 v32, 8, v32")
    e("v_bfe_u32 v34, v0, 4, 1")
    e("v_lshl_add_u32 v32, v34, 5, v32")
    e("v_lshl_add_u32 v32, v35, 3, v32")
    e("v_add_u32 v32, %s, v32" % sr(oM0))
    for nb in range(4):
        e("v_xor_b32 v34, %d, v33" % nb)
        e("v_lshl_add_u32 %s, v34, 6, v32" % vr(vWr3[nb]))
    e("s_mul_i32 %s, %s, %d" % (sr(oXk2), sr(oTm), 4 * 480 * 1024))
    e("s_lshl_b32 %s, %s, 10" % (sr(oT0), sr(sWave)))
    e("s_add_u32 %s, %s, %s" % (sr(oXk2), sr(oXk2), sr(oT0)))
    e("s_add_u32 %s, %s, %d" % (sr(oXk2), sr(oXk2), WS_A3))
    e("s_lshl_b32 %s, %s, 15" % (sr(oWk2), sr(sWave)))
    e("s_lshl_b32 %s, %s, 8" % (sr(oT0), sr(oTn)))
    e("s_add_u32 %s, %s, %s" % (sr(oWk2), sr(oWk2), sr(oT0)))
    e("s_mul_i32 %s, %s, %d" % (sr(oT0), sr(oRole), 4 * 32 * 1024))
    e("s_add_u32 %s, %s, %s" % (sr(oXk), sr(oXk2), sr(oT0)))
    e("s_add_u32 %s, %s, %d" % (sr(oXk), sr(oXk), 256 * 1024))
    e("s_mul_i32 %s, %s, %d" % (sr(oT0), sr(oRole), 4 * 512 * 2048))
    e("s_add_u32 %s, %s, %s" % (sr(oWk), sr(oWk2), sr(oT0)))
    e("s_mul_i32 %s, %s, %d" % (sr(oT0), sr(oRole), 3 * 32 * 1024))
    e("s_add_u32 %s, %s, %s" % (sr(oXk2), sr(oXk2), sr(oT0)))
    e("s_mul_i32 %s, %s, %d" % (sr(oT0), sr(oRole), 3 * 512 * 2048))
    e("s_add_u32 %s, %s, %s" % (sr(oWk2), sr(oWk2), sr(oT0)))
    e("s_add_u32 %s, %s, 6" % (sr(oIter), sr(oRole)))
    e("s_lshl_b32 %s, %s, 1" % (sr(oSw), sr(oRole)))
    e("s_add_u32 %s, %s, 3" % (sr(oSw), sr(oSw)))
    e("s_lshl_b32 %s, %s, 7" % (sr(oC3), sr(oTm)))
    e("s_add_u32 %s, %s, %d" % (sr(oC3), sr(oC3), WS_F3))
    e("s_waitcnt vmcnt(0) lgkmcnt(0)")
    e("s_barrier")
    e("s_mov_b32 %s, %s" % (sr(SRD_W), sr(oWD)))
    e("s_mov_b32 %s, %s" % (sr(SRD_W + 1), sr(oWD + 1)))
    e("s_mov_b32 %s, %d" % (sr(SRD_W + 2), 3584 * 2048))
    e("s_mov_b32 %s, %s" % (sr(SRD_OUT), sr(oOUT)))
    e("s_mov_b32 %s, %s" % (sr(SRD_OUT + 1), sr(oOUT + 1)))
    poll_check(a, vPoll2, SRD_WS, sr(aPl), 64, oT0)
    for i in range(7):
        pre, d, x, post = loads3(i)
        e(pre)
        e("s_nop 0")
        for s in d + x + post:
            e(s)


def part3(a, name):
    e = a.e
    e("s_lshl_b32 %s, %s, 7" % (sr(aSig), sr(aQb)))
    e("s_lshl_b32 %s, %s, 2" % (sr(aT1), sr(aHead)))
    e("s_add_u32 %s, %s, %s" % (sr(aSig), sr(aSig), sr(aT1)))
    e("s_add_u32 %s, %s, %s" % (sr(aSig), sr(aSig), sr(sWave)))
    e("s_add_u32 %s, %s, %d" % (sr(aSig), sr(aSig), WS_F3))
    e("s_waitcnt vmcnt(60)")
    for r in wreads3(0, 0):
        e(r)
    step3(a, 0, zero=True, vm=52)
    e("s_branch %s_o1" % name)
    a.label(name + "_oloop")
    stamp_ts(a)
    step3(a, 0)
    a.label(name + "_o1")
    l1_, l2_ = a.newlabel("osw"), a.newlabel("opl")
    e("s_cmp_lg_u32 %s, %s" % (sr(oIter), sr(oSw)))
    e("s_cbranch_scc1 %s" % l1_)
    e("s_waitcnt vmcnt(24)")
    poll_check(a, vPoll3, SRD_WS, sr(oC3), 32, oT0)
    e("s_mov_b32 %s, %s" % (sr(SRD_W), sr(oWO)))
    e("s_mov_b32 %s, %s" % (sr(SRD_W + 1), sr(oWO + 1)))
    e("s_mov_b32 %s, %d" % (sr(SRD_W + 2), 4096 * 2048))
    e("s_mov_b32 %s, %s" % (sr(oXk), sr(oXk2)))
    e("s_mov_b32 %s, %s" % (sr(oWk), sr(oWk2)))
    a.label(l1_)
    for i in range(1, 8):
        step3(a, i)
        if i == 5:
            l3_ = a.newlabel("opi")
            e("s_sub_u32 %s, %s, 1" % (sr(oT0), sr(oIter)))
            e("s_cmp_lg_u32 %s, %s" % (sr(oT0), sr(oSw)))
            e("s_cbranch_scc1 %s" % l3_)
            e(poll_issue(vPoll3, SRD_WS, sr(oC3)))
            a.label(l3_)
    e("s_add_u32 %s, %s, 6" % (sr(oT0), sr(oRole)))
    e("s_cmp_lg_u32 %s, %s" % (sr(oIter), sr(oT0)))
    e("s_cbranch_scc1 %s" % l2_)
    flag_store(a, "byte", 14, "1", SRD_WS, sr(aSig), wave0=False)
    a.label(l2_)
    e("s_sub_u32 %s, %s, 1" % (sr(oIter), sr(oIter)))
    e("s_cmp_lg_u32 %s, 0" % sr(oIter))
    e("s_cbranch_scc1 %s_oloop" % name)
    step3(a, 0)
    for i in range(1, 8):
        step3(a, i, do_load=False, do_read=(i < 7), vm=(52 - 8 * i) if i < 7 else 0)
    stamp_ts(a)
    e("v_add_u32 v2, %s, %s" % (sr(oM0), vr(vLane16)))
    e("s_xor_b32 %s, %s, 0x10000" % (sr(oT1), sr(oM0)))
    e("v_add_u32 v3, %s, %s" % (sr(oT1), vr(vLane16)))
    e("s_xor_b32 %s, %s, 0x8000" % (sr(oT1), sr(oM0)))
    e("v_add_u32 v4, %s, %s" % (sr(oT1), vr(vLane16)))
    e("s_lshl_b32 %s, %s, 16" % (sr(oT1), sr(oTile)))
    e("s_lshl_b32 %s, %s, 14" % (sr(oT2), sr(sWave)))
    e("s_add_u32 %s, %s, %s" % (sr(oT1), sr(oT1), sr(oT2)))
    e("s_add_u32 %s, %s, %d" % (sr(oT1), sr(oT1), WS_P))
    e("s_and_b32 %s, s2, 127" % sr(oT2))
    e("s_lshl_b32 %s, %s, 7" % (sr(oT2), sr(oT2)))
    e("s_add_u32 %s, %s, %d" % (sr(oT2), sr(oT2), WS_FP))
    for q in range(32):
        e("ds_write_b128 v2, %s offset:%d" % (ar(aACC + 4 * q, 4), q * 1024))
    e("s_waitcnt lgkmcnt(0)")
    e("s_barrier")
    for half in (1, 0):
        for q in range(16):
            e("ds_read_b128 %s, v3 offset:%d" % (vr(vTMP + 4 * q, 4), (half * 16 + q) * 1024))
        for q in range(16):
            e("s_waitcnt lgkmcnt(%d)" % (15 - q))
            for i in range(0, 4, 2):
                r = vACC + half * 64 + 4 * q + i
                e("v_pk_add_f32 %s, %s, %s" % (vr(r, 2), vr(r, 2), vr(vTMP + 4 * q + i, 2)))
    e("s_barrier")
    for q in range(16):
        e("ds_write_b128 v2, %s offset:%d" % (vr(vACC + 64 + 4 * q, 4), q * 1024))
    e(poll_issue(5, SRD_WS, sr(oT2)))
    e("s_waitcnt lgkmcnt(0)")
    e("s_barrier")
    for q in range(16):
        e("ds_read_b128 %s, v4 offset:%d" % (vr(vTMP + 4 * q, 4), q * 1024))
    for q in range(16):
        e("s_waitcnt lgkmcnt(%d)" % (15 - q))
        for i in range(0, 4, 2):
            r = vACC + 4 * q + i
            e("v_pk_add_f32 %s, %s, %s" % (vr(r, 2), vr(r, 2), vr(vTMP + 4 * q + i, 2)))
    stamp_ts(a)
    e("s_cmp_lg_u32 %s, 0" % sr(oRole))
    e("s_cbranch_scc1 %s_cons" % name)
    for q in range(16):
        if q and q % 4 == 0:
            e("s_add_u32 %s, %s, 4096" % (sr(oT1), sr(oT1)))
        e("buffer_store_dwordx4 %s, %s, %s, %s offen offset:%d sc1" % (vr(vACC + 4 * q, 4), vr(vLane16), sr(SRD_WS, 4), sr(oT1), (q & 3) * 1024))
    e("s_waitcnt vmcnt(0)")
    e("s_barrier")
    flag_store(a, "dword", 5, "0x%x" % ALL1, SRD_WS, sr(oT2))
    e("s_branch %s_fin" % name)
    a.label(name + "_cons")
    e("s_waitcnt vmcnt(0)")
    poll_check(a, 5, SRD_WS, sr(oT2), 1, oT0)
    a.label(name + "_got")
    for q in range(16):
        if q and q % 4 == 0:
            e("s_add_u32 %s, %s, 4096" % (sr(oT1), sr(oT1)))
        e("buffer_load_dwordx4 %s, %s, %s, %s offen offset:%d sc1" % (vr(vTMP + 4 * q, 4), vr(vLane16), sr(SRD_WS, 4), sr(oT1), (q & 3) * 1024))
    e("v_and_b32 v2, 31, v0")
    e("v_lshlrev_b32 v2, 11, v2")
    e("v_lshrrev_b32 v3, 5, v0")
    e("v_lshl_add_u32 v2, v3, 4, v2")
    e("s_lshl_b32 %s, %s, 2" % (sr(oT0), sr(oTm)))
    e("s_add_u32 %s, %s, %s" % (sr(oT0), sr(oT0), sr(sWave)))
    e("s_lshl_b32 %s, %s, 16" % (sr(oT0), sr(oT0)))
    e("s_lshl_b32 %s, %s, 8" % (sr(oT2), sr(oTn)))
    e("s_add_u32 %s, %s, %s" % (sr(oT0), sr(oT0), sr(oT2)))
    for pq in range(8):
        e("s_waitcnt vmcnt(%d)" % (14 - pq))
        r = vACC + 8 * pq
        for i in range(0, 8, 2):
            e("v_pk_add_f32 %s, %s, %s" % (vr(r + i, 2), vr(r + i, 2), vr(vTMP + 8 * pq + i, 2)))
        for i in range(4):
            e("v_cvt_pk_bf16_f32 %s, %s, %s" % (vr(r + i), vr(r + 2 * i), vr(r + 2 * i + 1)))
        e("s_nop 1")
        e("v_permlane32_swap_b32 %s, %s" % (vr(r), vr(r + 2)))
        e("v_permlane32_swap_b32 %s, %s" % (vr(r + 1), vr(r + 3)))
        e("buffer_store_dwordx4 %s, v2, %s, %s offen offset:%d" % (vr(r, 4), sr(SRD_OUT, 4), sr(oT0), pq * 32))
    a.label(name + "_fin")
    stamp_ts(a)


NAME = "gated_mix__compressed_kv_cla__geglu_ffn__prompt_kernel"
HEADER = open('gated_mix__compressed_kv_cla__geglu_ffn__prompt.s.ref').read().split("; Override launch")[0]


def build(opt):
    OPT.clear()
    OPT.update(opt)
    a = Asm()
    kernel_header(a, NAME)
    n = "mk"
    handlers = []
    a.e("s_cmp_ge_u32 s2, 256")
    a.e("s_cbranch_scc1 mk_end")
    part1(a, n, att_prologue)
    part2(a, n, out_prologue, handlers)
    part3(a, n)
    a.label("mk_end")
    a.e("s_endpgm")
    for h in handlers:
        emit_handler(a, *h)
    if opt.get('list', 1):
        out = HEADER + "; @launch kernel=%s grid=(256,1,1) block=(256,1,1) lds=%d\n" % (NAME, LDS)
    else:
        out = HEADER + "; @launch grid=(256,1,1) block=(256,1,1) lds=%d\n" % LDS
    out += '.amdgcn_target "amdgcn-amd-amdhsa--gfx950"\n.text\n' + a.text()
    out += '.section .rodata,"a"\n.p2align 6\n' + kernel_desc(NAME, 512, 102, 256)
    return out


if __name__ == "__main__":
    open(sys.argv[1], "w").write(build(json.loads(sys.argv[2]) if len(sys.argv) > 2 else {}))
```

```python
class Asm:
    def __init__(self):
        self.lines = []
        self._lbl = 0

    def e(self, s):
        self.lines.append("  " + s)

    def c(self, s):
        self.lines.append("  ; " + s)

    def label(self, l):
        self.lines.append(l + ":")

    def raw(self, s):
        self.lines.append(s)

    def newlabel(self, base):
        self._lbl += 1
        return "%s_%d" % (base, self._lbl)

    def text(self):
        return "\n".join(self.lines) + "\n"


def vr(i, n=1):
    return "v%d" % i if n == 1 else "v[%d:%d]" % (i, i + n - 1)


def ar(i, n=1):
    return "a%d" % i if n == 1 else "a[%d:%d]" % (i, i + n - 1)


def sr(i, n=1):
    return "s%d" % i if n == 1 else "s[%d:%d]" % (i, i + n - 1)


def reg(spec, n=1, off=0):
    k, i = spec
    return (vr if k == 'v' else ar)(i + off, n)


M16HACK = [0, 0, 0]


def interleave(a, mfmas, fillers):
    for s in fillers.get(-1, []):
        a.e(s)
    for i, m in enumerate(mfmas):
        f = fillers.get(i, [])
        if M16HACK[0] and m.startswith("v_mfma_f32_32x32x16_bf16"):
            import re
            mm = re.match(r"v_mfma_f32_32x32x16_bf16 ([av])\[(\d+):\d+\], (\S+), (\S+), (\S+)", m)
            k, b, A, B, C = mm.groups()
            b = int(b)
            M16HACK[1] ^= 1
            o = 8 * (M16HACK[2] & 1)
            if C == "0":
                for q in range(2):
                    d = "%s[%d:%d]" % (k, b + (o ^ 8) + 4 * q, b + (o ^ 8) + 4 * q + 3)
                    a.e("v_mfma_f32_16x16x32_bf16 %s, %s, %s, 0" % (d, A, B))
            for q in range(2):
                d = "%s[%d:%d]" % (k, b + o + 4 * q, b + o + 4 * q + 3)
                a.e("v_mfma_f32_16x16x32_bf16 %s, %s, %s, %s" % (d, A if q == 0 else B, B if q == 0 else A, d if C != "0" else "0"))
                h = (len(f) + 1) // 2
                for s in (f[:h] if q == 0 else f[h:]):
                    a.e(s)
            continue
        a.e(m)
        for s in f:
            a.e(s)
    M16HACK[2] += 1


def kernel_header(a, name):
    a.raw(".globl %s" % name)
    a.raw(".p2align 8")
    a.raw(".type %s,@function" % name)
    a.label(name)


def kernel_desc(name, vgpr, sgpr, accum):
    return """.amdhsa_kernel %s
  .amdhsa_next_free_vgpr %d
  .amdhsa_next_free_sgpr %d
  .amdhsa_accum_offset %d
  .amdhsa_group_segment_fixed_size 0
  .amdhsa_kernarg_size 112
  .amdhsa_user_sgpr_count 2
  .amdhsa_user_sgpr_kernarg_segment_ptr 1
  .amdhsa_system_sgpr_workgroup_id_x 1
.end_amdhsa_kernel
""" % (name, vgpr, sgpr, accum)
```

```python
import sys, json, struct
from asmlib import *

WS_Q = 0
WS_K = 16 << 20
WS_V = 32 << 20
WS_A3 = 48 << 20
WS_G = 80 << 20
WS_P = 81 << 20
WS_STAMP = 128 << 20
WS_SIZE = 268435456
LDS = 163840
WS_F2 = (80 << 20) + 65536
WS_F3 = WS_F2 + 4096
WS_FP = WS_F2 + 8192
ALL1 = 0x01010101

OPT = {}


def f32(x):
    return "0x%08x" % struct.unpack("<I", struct.pack("<f", x))[0]


sPfOff = 3
sPfA, sPfB = 4, 6
sPoll = 7
SRD_DBG, SRD_P = 8, 12
SRD_X, SRD_W, SRD_WS = 44, 48, 52
sWave = 67
sTs = 101
SC = " sc1"


def stamp_ts(a):
    if not OPT.get('ts'):
        return
    l = a.newlabel("ts")
    a.e("s_cmp_lg_u32 %s, 0" % sr(sWave))
    a.e("s_cbranch_scc1 %s" % l)
    a.e("s_memtime vcc")
    a.e("s_waitcnt lgkmcnt(0)")
    a.e("s_mov_b64 exec, 1")
    a.e("v_mov_b32 v30, vcc_lo")
    a.e("v_mov_b32 v31, vcc_hi")
    a.e("s_memrealtime vcc")
    a.e("buffer_store_dwordx2 v[30:31], off, %s, %s" % (sr(SRD_WS, 4), sr(sTs)))
    a.e("s_waitcnt lgkmcnt(0)")
    a.e("v_mov_b32 v30, vcc_lo")
    a.e("v_mov_b32 v31, vcc_hi")
    a.e("buffer_store_dwordx2 v[30:31], off, %s, %s offset:8" % (sr(SRD_WS, 4), sr(sTs)))
    a.e("s_add_u32 %s, %s, 16" % (sr(sTs), sr(sTs)))
    a.e("s_mov_b64 exec, -1")
    a.label(l)


vFl4 = 29


def poll_issue(vdst, srd, soff):
    return "buffer_load_dword %s, %s, %s, %s offen sc1" % (vr(vdst), vr(vFl4), sr(srd, 4), soff)


def poll_check(a, vdst, srd, soff, lanes, tmp):
    ok = a.newlabel("pok")
    sp = a.newlabel("pspin")

    def test():
        a.e("v_cmp_ne_u32 vcc, %s, %s" % (sr(sPoll), vr(vdst)))
        if lanes == 64:
            a.e("s_nop 1")
            a.e("s_cmp_eq_u64 vcc, 0")
        elif lanes == 32:
            a.e("s_nop 1")
            a.e("s_cmp_eq_u32 vcc_lo, 0")
        else:
            a.e("s_nop 1")
            a.e("s_bitcmp0_b32 vcc_lo, 0")
    a.e("s_mov_b32 %s, 0x%x" % (sr(sPoll), ALL1))
    a.e("s_mov_b32 %s, 0x40000" % sr(tmp))
    test()
    a.e("s_cbranch_scc1 %s" % ok)
    a.label(sp)
    a.e("s_sleep 8")
    a.e(poll_issue(vdst, srd, soff))
    a.e("s_sub_u32 %s, %s, 1" % (sr(tmp), sr(tmp)))
    a.e("s_cmp_eq_u32 %s, 0" % sr(tmp))
    a.e("s_cbranch_scc1 %s" % ok)
    a.e("s_waitcnt vmcnt(0)")
    test()
    a.e("s_cbranch_scc0 %s" % sp)
    a.label(ok)


def flag_store(a, kind, vtmp, val, srd, soff, wave0=True):
    l = a.newlabel("fs")
    if wave0:
        a.e("s_cmp_lg_u32 %s, 0" % sr(sWave))
        a.e("s_cbranch_scc1 %s" % l)
    a.e("v_mov_b32 %s, %s" % (vr(vtmp), val))
    a.e("s_mov_b64 exec, 1")
    a.e("buffer_store_%s %s, off, %s, %s sc1" % (kind, vr(vtmp), sr(srd, 4), soff))
    a.e("s_mov_b64 exec, -1")
    a.label(l)


S_X, S_CKV, S_WQ, S_WUK, S_WUV, S_WO, S_BX, S_WG, S_WU, S_WD, S_GW, S_OUT, S_DBG, S_WS = [16 + 2 * i for i in range(14)]
sXk, sXk2, sWk, sWstep, sXrow32 = 56, 57, 58, 59, 60
sXdst, sXbeg, sXend = 61, 62, 63
sWm0a, sWm0b = 64, 65
sIter, sJob = 66, 68
sTm, sTn8, sTn7 = 69, 70, 71
sRslot, sDelta, sCp, sCm = 72, 73, 74, 75
sT0, sT1, sT2, sT3 = 76, 77, 78, 79
sOb = 80
sNXlo, sNXhi, sNXn, sNXk, sNXrow32 = 81, 82, 83, 84, 85
sNWlo, sNWhi, sNWn, sNWk, sNWstep, sNm0a, sNm0b = 86, 87, 88, 89, 90, 91, 92
sCA, sCC = 94, 96
sGm0a, sGm0b, sGoff = 98, 99, 100

vXr = [1, 2, 3, 4]
vWr8 = [5, 6, 7, 8]
vWr7 = 9
vXd = [10, 11, 12, 13]
vWd = [14, 15, 16, 17]
vXdN = [18, 19, 20, 21]
vWdN = [22, 23, 24, 25]
vSt = 26
vPf, vPfD = 27, 28
ACC0 = 32
XBASE = 65536


def acc(blk):
    if blk < 14:
        return ('v', ACC0 + 16 * blk)
    return ('a', 16 * (blk - 14))


def fragX(s, tb):
    return 32 + s * 40 + 4 * tb


def fragW(s, nb):
    return 32 + s * 40 + 8 + 4 * nb


def mfmas(kind, s, zero=False):
    NB = 7 if kind == 'G' else 8
    out = []
    for nb in range(NB):
        for tb in range(2):
            d = reg(acc(nb * 2 + tb), 16)
            w = ar(fragW(s, nb), 4)
            x = ar(fragX(s, tb), 4)
            A, B = (x, w) if kind == 'V' else (w, x)
            out.append("v_mfma_f32_32x32x16_bf16 %s, %s, %s, %s" % (d, A, B, "0" if zero else d))
    return out


def reads(kind, p, k):
    slot = p % 4
    s = 2 * (p & 1) + k
    out = []
    for tb in range(2):
        out.append("ds_read_b128 %s, %s offset:%d" % (ar(fragX(k, tb), 4), vr(vXr[s]), tb * 4096))
    NB = 7 if kind == 'G' else 8
    for nb in range(NB):
        for t in range(2):
            if kind == 'G':
                addr = vWr7
                off = slot * 16384 + (16 * k + 4 * t) * 224 + nb * 32
            else:
                addr = vWr8[nb & 3]
                off = slot * 16384 + (16 * k + 4 * t) * 512 + (nb >> 2) * 256
            out.append("ds_read_b64_tr_b16 %s, %s offset:%d" % (ar(fragW(k, nb) + 2 * t, 2), vr(addr), off))
    return out


def dmaW(slot):
    g = []
    for j in range(4):
        l = []
        if j == 0:
            l.append("s_add_u32 m0, %s, %d" % (sr(sWm0a), slot * 16384))
        if j == 3:
            l.append("s_add_u32 m0, %s, %d" % (sr(sWm0b), slot * 16384))
        l.append(("DMA", "buffer_load_dwordx4 %s, %s, %s offen offset:%d lds" % (vr(vWd[j]), sr(SRD_W, 4), sr(sWk), j * 1024)))
        g.append(l)
    g[3].append("s_add_u32 %s, %s, %s" % (sr(sWk), sr(sWk), sr(sWstep)))
    return g


def dmaX(half):
    g = []
    for j in range(4):
        l = []
        if j == 0:
            if half == 0:
                l.append("s_mov_b32 m0, %s" % sr(sXdst))
            else:
                l.append("s_add_u32 m0, %s, 4096" % sr(sXdst))
        l.append(("DMA", "buffer_load_dwordx4 %s, %s, %s offen offset:%d lds" % (
            vr(vXd[j]), sr(SRD_X, 4), sr(sXk if half == 0 else sXk2), j * 1024)))
        g.append(l)
    if half == 0:
        g[3].append("s_add_u32 %s, %s, %s" % (sr(sXk2), sr(sXk), sr(sXrow32)))
        g[3].append("s_add_u32 %s, %s, 128" % (sr(sXk), sr(sXk)))
    else:
        g[3].append("s_add_u32 %s, %s, 8192" % (sr(sXdst), sr(sXdst)))
        g[3].append("s_cmp_eq_u32 %s, %s" % (sr(sXdst), sr(sXend)))
        g[3].append("s_cselect_b32 %s, %s, %s" % (sr(sXdst), sr(sXbeg), sr(sXdst)))
    return g


def flat_dma(groups):
    out = []
    for l in groups:
        prev_m0 = False
        for s in l:
            if isinstance(s, tuple):
                if prev_m0:
                    out.append("s_nop 0")
                out.append(s[1])
                prev_m0 = False
            else:
                out.append(s)
                prev_m0 = " m0," in s
    return out


def group(a, kind_m, s, zero, rd, dma, extra=None, flex=None):
    m = mfmas(kind_m, s, zero) if kind_m else []
    n = len(m)
    fill = {}
    if n == 0:
        for r in rd:
            a.e(r)
        for x in flat_dma(dma):
            a.e(x)
        return
    g = 0
    i = 0
    while i < len(rd):
        fill.setdefault(g, []).extend(rd[i:i + 2])
        i += 2
        g += 1
    pos = n - OPT.get('dpos', 10)
    for l in dma:
        pre, post, seen = [], [], False
        for sx in l:
            if isinstance(sx, tuple):
                seen = True
                post.append(sx[1])
            elif not seen:
                pre.append(sx)
            else:
                post.append(sx)
        if pre:
            fill.setdefault(pos - 1, []).extend(pre)
        fill.setdefault(pos, []).extend(post)
        pos += 2
    for gi, x in (extra or []):
        if gi < 0:
            gi += n
        fill.setdefault(gi, []).append(x)
    cap = 5
    g = 0
    for x in (flex or []):
        while len(fill.setdefault(g, [])) >= cap:
            g += 1
            assert g < n - 1
        fill[g].append(x)
    interleave(a, m, fill)


SRD_ST = 40
sStA, sStB, sStD, sStC = 26, 27, 28, 29
STASH = 112


def st_moves(p):
    out = []
    for lvl in range(3):
        for c in range(8 * p, 8 * p + 8):
            out.append("v_accvgpr_mov_b32 %s, %s" % (ar(STASH + 32 * lvl + c), ar(STASH + 32 * (lvl + 1) + c)))
    return out


def st_stores(p):
    out = []
    for x in range(2):
        i = 2 * p + x
        out.append("buffer_store_dwordx4 %s, %s, %s, %s offen offset:%d%s" % (
            ar(STASH + 4 * i, 4), vr(vSt), sr(SRD_ST, 4), sr(sStA if i < 4 else sStB), (i & 3) * 1024, SC))
    return out


def st_advance():
    return ["s_add_u32 %s, %s, %s" % (sr(sStA), sr(sStA), sr(sStD)),
            "s_add_u32 %s, %s, 4096" % (sr(sStB), sr(sStA)),
            "s_xor_b32 %s, %s, %d" % (sr(sStD), sr(sStD), 8192 ^ (524288 - 8192)),
            "s_sub_u32 %s, %s, 1" % (sr(sStC), sr(sStC)),
            "s_cmp_eq_u32 %s, 0" % sr(sStC),
            "s_cselect_b32 %s, 0, %s" % (sr(SRD_ST + 2), sr(SRD_ST + 2))]


def xr_update(s):
    return "v_add_u32 %s, %s, %s" % (vr(vXr[s]), sr(sDelta), vr(vXr[s]))


def delta_update():
    return ["s_add_u32 %s, %s, 1" % (sr(sRslot), sr(sRslot)),
            "s_cmp_eq_u32 %s, 3" % sr(sRslot),
            "s_cselect_b32 %s, %s, %s" % (sr(sDelta), sr(sCm), sr(sCp)),
            "s_cselect_b32 %s, 0, %s" % (sr(sRslot), sr(sRslot))]


def pf_setup():
    lst = sPfA
    return [
        "s_and_b32 %s, %s, 15" % (sr(sT2), sr(lst)),
        "s_lshl_b32 %s, %s, 3" % (sr(sT2), sr(sT2)),
        "s_load_dwordx2 %s, s[0:1], %s" % (sr(SRD_P, 2), sr(sT2)),
        "s_bfe_u32 %s, %s, 0x40004" % (sr(sT3), sr(lst)),
        "s_cmp_eq_u32 %s, 15" % sr(sT3),
        "s_cselect_b32 %s, 0, -1" % sr(sPfB),
        "s_lshl_b32 %s, %s, 20" % (sr(sT3), sr(sT3)),
        "s_add_u32 %s, %s, %s" % (sr(sT3), sr(sT3), sr(sPfOff)),
        "s_lshr_b64 %s, %s, 8" % (sr(lst, 2), sr(lst, 2)),
        "s_or_b32 %s, %s, 0xf0000000" % (sr(lst + 1), sr(lst + 1)),
    ]


def pf_load():
    return "buffer_load_dword %s, %s, %s, %s offen" % (vr(vPfD), vr(vPf), sr(SRD_P, 4), sr(sT3))


def pf_lists(a, A):
    v = 0
    for i in range(8):
        sl, mb = A[i] if i < len(A) else (0, 15)
        v |= (sl | (mb << 4)) << (8 * i)
    a.e("s_mov_b32 %s, 0x%x" % (sr(sPfA), v & 0xffffffff))
    a.e("s_mov_b32 %s, 0x%x" % (sr(sPfA + 1), v >> 32))


def switchX(a):
    for d, s in ((SRD_X, sNXlo), (SRD_X + 1, sNXhi), (SRD_X + 2, sNXn), (sXk, sNXk), (sXrow32, sNXrow32)):
        a.e("s_mov_b32 %s, %s" % (sr(d), sr(s)))


def switchW(a):
    for d, s in ((SRD_W, sNWlo), (SRD_W + 1, sNWhi), (SRD_W + 2, sNWn), (sWk, sNWk), (sWstep, sNWstep), (sWm0a, sNm0a), (sWm0b, sNm0b)):
        a.e("s_mov_b32 %s, %s" % (sr(d), sr(s)))


def interval(a, kind, p, half='both', kindA=None, zeroB=False):
    if half in ('both', 'A'):
        a.e("s_waitcnt vmcnt(%d) lgkmcnt(0)" % (25 if kindA != 'none' else 16))
        a.e("s_barrier")
        ka = kind if kindA is None else kindA
        ex = [(10, xr_update(2 * (((p - 1) % 4) & 1) + 1))]
        if ka == 'none':
            ka = None
        if p == 1:
            for i, x in enumerate(pf_setup()):
                ex.append((9 if i < 4 else (11 if i < 8 else 12), x))
        if p == 0:
            for i, x in enumerate(st_advance()):
                ex.append((9 if i < 3 else 11, x))
        group(a, ka, 1, False, reads(kind, p, 0), dmaW((p + 3) % 4), ex, st_moves((p - 1) % 4))
    if half in ('both', 'B'):
        a.e("s_waitcnt lgkmcnt(0)")
        ex = []
        ex.append((9, "s_cmp_eq_u32 %s, %d" % (sr(sWave), p)))
        ex.append((9, "s_cselect_b32 %s, %s, 0" % (sr(SRD_P + 2), sr(sPfB))))
        if (p & 1) == 0:
            for x in delta_update():
                ex.append((-5, x))
        ex.append((-3, xr_update(2 * (p & 1))))
        st = st_stores(p)
        ex.append((-3, st[0]))
        ex.append((-2, st[1]))
        ex.append((-2, pf_load()))
        group(a, kind, 0, zeroB, reads(kind, p, 1), dmaX(p & 1), ex)


def align(a):
    if OPT.get('align', 1):
        a.raw(".p2align 6")


def loop(a, kind, name, vswitch, hook=None):
    align(a)
    a.label(name + "_top")
    interval(a, kind, 0, 'A')
    if hook:
        hook(a)
    a.e("s_cmp_lg_u32 %s, 1" % sr(sIter))
    a.e("s_cbranch_scc1 %s_nsx" % name)
    switchX(a)
    vswitch(a, 'X')
    a.label(name + "_nsx")
    interval(a, kind, 0, 'B')
    a.label(name + "_entry")
    stamp_ts(a)
    a.e("s_cmp_lg_u32 %s, 1" % sr(sIter))
    a.e("s_cbranch_scc1 %s_nsw" % name)
    switchW(a)
    vswitch(a, 'W')
    a.label(name + "_nsw")
    for p in (1, 2, 3):
        interval(a, kind, p)
    a.e("s_sub_u32 %s, %s, 1" % (sr(sIter), sr(sIter)))
    a.e("s_cmp_lg_u32 %s, 0" % sr(sIter))
    a.e("s_cbranch_scc1 %s_top" % name)


def epilogue_kqv(a, kind, scale=None):
    a.e("s_mov_b32 %s, %s" % (sr(sStA), sr(sOb)))
    a.e("s_add_u32 %s, %s, 4096" % (sr(sStB), sr(sOb)))
    a.e("s_mov_b32 %s, 8192" % sr(sStD))
    a.e("s_mov_b32 %s, 4" % sr(sStC))
    a.e("s_mov_b32 %s, %d" % (sr(SRD_ST + 2), WS_SIZE))
    for blk in range(16):
        nb, tb = blk >> 1, blk & 1
        db = nb & 3
        j = (nb >> 2) * 2 + tb
        k, r = acc(blk)
        if k == 'a':
            _, rv = acc(blk - 14)
            for i in range(16):
                a.e("v_accvgpr_read_b32 %s, %s" % (vr(rv + i), ar(r + i)))
            r = rv
        if scale is not None:
            for i in range(0, 16, 2):
                a.e("v_pk_mul_f32 %s, %s, %s" % (vr(r + i, 2), vr(r + i, 2), sr(scale, 2)))
        for i in range(8):
            a.e("v_cvt_pk_bf16_f32 %s, %s, %s" % (vr(r + i), vr(r + 2 * i), vr(r + 2 * i + 1)))
        for g in range(2):
            q = 8 * j + (g * 4 + db if kind == 'V' else db * 2 + g)
            for i in range(4):
                a.e("v_accvgpr_write_b32 %s, %s" % (ar(STASH + 4 * q + i), vr(r + 4 * g + i)))


vG1 = [20, 22]


def epilogue_gu(a):
    A = -2.0 * 1.4426950408889634 * 0.7978845608028654
    B = A * 0.044715
    a.e("s_mov_b32 %s, %s" % (sr(sCC), f32(B)))
    a.e("s_mov_b32 %s, %s" % (sr(sCC + 1), f32(B)))
    a.e("v_mov_b32 v10, %s" % f32(A))
    a.e("v_mov_b32 v11, %s" % f32(A))
    for blk in range(14):
        nb, tb = blk >> 1, blk & 1
        _, r = acc(blk)
        o = tb * 480 * 1024 + nb * 1024
        a.e("s_add_u32 %s, %s, %d" % (sr(sT0), sr(sOb), o & ~4095))
        P = [12, 14, 16, 18]
        for i in range(4):
            a.e("v_pk_mul_f32 %s, %s, %s" % (vr(P[i], 2), vr(r + 2 * i, 2), vr(r + 2 * i, 2)))
        for i in range(4):
            a.e("v_pk_fma_f32 %s, %s, %s, v[10:11]" % (vr(P[i], 2), vr(P[i], 2), sr(sCC, 2)))
        for i in range(4):
            a.e("v_pk_mul_f32 %s, %s, %s" % (vr(P[i], 2), vr(P[i], 2), vr(r + 2 * i, 2)))
        for i in range(8):
            a.e("v_exp_f32 %s, %s" % (vr(12 + i), vr(12 + i)))
        for i in range(4):
            a.e("v_pk_mul_f32 %s, %s, %s" % (vr(r + 2 * i, 2), vr(r + 2 * i, 2), vr(r + 8 + 2 * i, 2)))
        for i in range(4):
            a.e("v_pk_add_f32 %s, %s, 1.0 op_sel_hi:[1,0]" % (vr(P[i], 2), vr(P[i], 2)))
        for i in range(8):
            a.e("v_rcp_f32 %s, %s" % (vr(12 + i), vr(12 + i)))
        if blk == 0:
            a.e("s_waitcnt vmcnt(%d)" % ATT_PRO_LOADS)
            for t2 in range(2):
                a.e("v_sub_f32 %s, 1.0, %s" % (vr(vG1[t2]), vr(vG1[t2])))
                a.e("v_mov_b32 %s, %s" % (vr(vG1[t2] + 1), vr(vG1[t2])))
        for i in range(4):
            a.e("v_pk_mul_f32 %s, %s, %s" % (vr(r + 2 * i, 2), vr(r + 2 * i, 2), vr(vG1[tb], 2)))
        for i in range(4):
            a.e("v_pk_mul_f32 %s, %s, %s" % (vr(r + 2 * i, 2), vr(r + 2 * i, 2), vr(P[i], 2)))
        for i in range(4):
            a.e("v_cvt_pk_bf16_f32 %s, %s, %s" % (vr(r + 8 + i), vr(r + 2 * i), vr(r + 2 * i + 1)))
        a.e("buffer_store_dwordx4 %s, %s, %s, %s offen offset:%d%s" % (vr(r + 8, 4), vr(vSt), sr(SRD_WS, 4), sr(sT0), o & 4095, SC))


def part1(a, name, att_prologue):
    e = a.e
    e("s_load_dwordx16 s[16:31], s[0:1], 0")
    e("s_load_dwordx8 s[32:39], s[0:1], 64")
    e("s_load_dwordx4 s[40:43], s[0:1], 96")
    e("v_lshrrev_b32 v27, 6, v0")
    e("v_and_b32 v0, 63, v0")
    e("v_readfirstlane_b32 %s, v27" % sr(sWave))
    e("v_lshlrev_b32 %s, 2, v0" % vr(vFl4))
    e("s_and_b32 %s, s2, 7" % sr(sT0))
    e("s_lshr_b32 %s, s2, 3" % sr(sT1))
    e("s_and_b32 %s, %s, 1" % (sr(sT2), sr(sT0)))
    e("s_lshl_b32 %s, %s, 2" % (sr(sT2), sr(sT2)))
    e("s_and_b32 %s, %s, 3" % (sr(sT3), sr(sT1)))
    e("s_add_u32 %s, %s, %s" % (sr(sTm), sr(sT2), sr(sT3)))
    e("s_lshr_b32 %s, %s, 1" % (sr(sT0), sr(sT0)))
    e("s_lshr_b32 %s, %s, 2" % (sr(sT2), sr(sT1)))
    e("s_lshl_b32 %s, %s, 3" % (sr(sT3), sr(sT0)))
    e("s_add_u32 %s, %s, %s" % (sr(sTn7), sr(sT3), sr(sT2)))
    e("s_and_b32 %s, %s, 3" % (sr(sT2), sr(sT2)))
    e("s_lshl_b32 %s, %s, 2" % (sr(sT3), sr(sT0)))
    e("s_add_u32 %s, %s, %s" % (sr(sTn8), sr(sT3), sr(sT2)))
    e("s_lshr_b32 %s, %s, 4" % (sr(sJob), sr(sT1)))
    for s in (SRD_X, SRD_W, SRD_WS, SRD_DBG, SRD_P):
        e("s_mov_b32 %s, 0x20000" % sr(s + 3))
    e("s_mov_b32 %s, %d" % (sr(SRD_WS + 2), WS_SIZE))
    e("s_mov_b32 %s, 256" % sr(SRD_DBG + 2))
    e("s_mov_b32 %s, 8192" % sr(sCp))
    e("s_mov_b32 %s, -16384" % sr(sCm))
    e("s_mov_b32 %s, 0" % sr(sRslot))
    e("s_mul_i32 %s, %s, 24576" % (sr(sXbeg), sr(sWave)))
    e("s_add_u32 %s, %s, %d" % (sr(sXbeg), sr(sXbeg), XBASE))
    e("s_add_u32 %s, %s, 24576" % (sr(sXend), sr(sXbeg)))
    e("s_mov_b32 %s, %s" % (sr(sXdst), sr(sXbeg)))
    T0, T1, T2, T3, T4 = 27, 28, 30, 31, 26
    e("v_lshrrev_b32 v%d, 3, v0" % T0)
    e("s_lshl_b32 %s, %s, 6" % (sr(sT0), sr(sWave)))
    e("v_add_u32 v%d, %s, v%d" % (T0, sr(sT0), T0))
    e("v_and_b32 v%d, 7, v0" % T1)
    e("v_lshrrev_b32 v%d, 4, v0" % T4)
    e("v_xor_b32 v%d, v%d, v%d" % (T1, T1, T4))
    e("v_xor_b32 v%d, 4, v%d" % (T4, T1))
    e("s_movk_i32 %s, 11" % sr(sT1))
    e("s_sub_u32 %s, %s, %s" % (sr(sT1), sr(sT1), sr(sJob)))
    for j in range(4):
        ch = T1 if (j & 1) == 0 else T4
        e("v_add_u32 v%d, %d, v%d" % (T2, 8 * j, T0))
        e("v_lshlrev_b32 v%d, 11, v%d" % (T3, T2))
        e("v_lshl_add_u32 v%d, v%d, 4, v%d" % (T3, ch, T3))
        e("v_subrev_u32 %s, %d, v%d" % (vr(vXdN[j]), 1024 * j, T3))
        e("v_lshlrev_b32 v%d, %s, v%d" % (T3, sr(sT1), T2))
        e("v_lshl_add_u32 v%d, v%d, 4, v%d" % (T3, ch, T3))
        e("v_subrev_u32 %s, %d, v%d" % (vr(vXd[j]), 1024 * j, T3))
    e("v_lshrrev_b32 v%d, 5, v0" % T0)
    e("s_lshl_b32 %s, %s, 3" % (sr(sT0), sr(sWave)))
    e("v_bfe_u32 v%d, v0, 2, 3" % T1)
    e("v_and_b32 v%d, 3, v0" % T4)
    e("v_lshlrev_b32 v%d, 4, v%d" % (T4, T4))
    for j in range(4):
        e("v_add_u32 v%d, %d, v%d" % (T2, 2 * j, T0))
        e("v_and_b32 v%d, 3, v%d" % (T3, T2))
        e("v_xor_b32 v%d, v%d, v%d" % (T3, T3, T1))
        e("v_add_u32 v%d, %s, v%d" % (T2, sr(sT0), T2))
        e("v_lshlrev_b32 v%d, 13, v%d" % (T2, T2))
        e("v_lshl_add_u32 v%d, v%d, 6, v%d" % (T2, T3, T2))
        e("v_add_u32 v%d, v%d, v%d" % (T2, T2, T4))
        e("v_subrev_u32 %s, %d, v%d" % (vr(vWd[j]), 1024 * j, T2))
    e("s_lshl_b32 %s, %s, 12" % (sr(sWm0a), sr(sWave)))
    e("s_mov_b32 %s, %s" % (sr(sWm0b), sr(sWm0a)))
    e("s_waitcnt lgkmcnt(0)")
    e("s_mov_b32 %s, %s" % (sr(SRD_WS), sr(S_WS)))
    e("s_mov_b32 %s, %s" % (sr(SRD_WS + 1), sr(S_WS + 1)))
    e("s_mov_b32 %s, %s" % (sr(SRD_DBG), sr(S_DBG)))
    e("s_mov_b32 %s, %s" % (sr(SRD_DBG + 1), sr(S_DBG + 1)))
    e("s_mov_b32 %s, %s" % (sr(SRD_ST), sr(SRD_WS)))
    e("s_mov_b32 %s, %s" % (sr(SRD_ST + 1), sr(SRD_WS + 1)))
    e("s_mov_b32 %s, 0" % sr(SRD_ST + 2))
    e("s_mov_b32 %s, 0x20000" % sr(SRD_ST + 3))
    e("s_mov_b32 %s, 0" % sr(sStA))
    e("s_mov_b32 %s, 0" % sr(sStB))
    e("s_mov_b32 %s, 0" % sr(sStD))
    e("s_mov_b32 %s, 0" % sr(sStC))
    if OPT.get('ts'):
        e("s_lshl_b32 %s, s2, 11" % sr(sTs))
        e("s_add_u32 %s, %s, %d" % (sr(sTs), sr(sTs), WS_STAMP))
    stamp_ts(a)
    e("s_cmp_eq_u32 %s, 0" % sr(sJob))
    e("s_cselect_b32 %s, %s, %s" % (sr(SRD_X), sr(S_X), sr(S_CKV)))
    e("s_cselect_b32 %s, %s, %s" % (sr(SRD_X + 1), sr(S_X + 1), sr(S_CKV + 1)))
    e("s_cselect_b32 %s, %s, %s" % (sr(SRD_W), sr(S_WQ), sr(S_WUK)))
    e("s_cselect_b32 %s, %s, %s" % (sr(SRD_W + 1), sr(S_WQ + 1), sr(S_WUK + 1)))
    e("s_cselect_b32 %s, 8, 4" % sr(sIter))
    e("s_lshr_b32 %s, %d, %s" % (sr(SRD_X + 2), 2048 * 1024 * 2, sr(sJob)))
    e("s_lshr_b32 %s, %d, %s" % (sr(SRD_W + 2), 1024 * 4096 * 2, sr(sJob)))
    e("s_lshl_b32 %s, %s, 19" % (sr(sXk), sr(sTm)))
    e("s_lshr_b32 %s, %s, %s" % (sr(sXk), sr(sXk), sr(sJob)))
    e("s_lshr_b32 %s, 65536, %s" % (sr(sXrow32), sr(sJob)))
    e("s_lshl_b32 %s, %s, 9" % (sr(sWk), sr(sTn8)))
    e("s_mov_b32 %s, %d" % (sr(sWstep), 32 * 8192))
    e("s_mov_b32 %s, %s" % (sr(SRD_P), sr(S_X)))
    e("s_mov_b32 %s, %s" % (sr(SRD_P + 1), sr(S_X + 1)))
    e("s_mov_b32 %s, %d" % (sr(SRD_P + 2), 2048 * 1024 * 2))
    e("s_lshl_b32 %s, s2, 3" % sr(sT0))
    e("s_lshl_b32 %s, %s, 1" % (sr(sT1), sr(sWave)))
    e("s_add_u32 %s, %s, %s" % (sr(sT0), sr(sT0), sr(sT1)))
    e("s_lshl_b32 %s, %s, 11" % (sr(sT1), sr(sT0)))
    e("v_lshlrev_b32 v27, 5, v0")
    e("buffer_load_dwordx4 v[32:35], v27, %s, %s offen" % (sr(SRD_P, 4), sr(sT1)))
    e("buffer_load_dwordx4 v[36:39], v27, %s, %s offen offset:16" % (sr(SRD_P, 4), sr(sT1)))
    e("buffer_load_dwordx4 v[40:43], v27, %s, %s offen offset:2048" % (sr(SRD_P, 4), sr(sT1)))
    e("buffer_load_dwordx4 v[44:47], v27, %s, %s offen offset:2064" % (sr(SRD_P, 4), sr(sT1)))
    e("s_mov_b32 %s, %s" % (sr(SRD_P), sr(S_GW)))
    e("s_mov_b32 %s, %s" % (sr(SRD_P + 1), sr(S_GW + 1)))
    e("s_mov_b32 %s, 2048" % sr(SRD_P + 2))
    e("buffer_load_dwordx4 v[48:51], v27, %s, 0 offen" % sr(SRD_P, 4))
    e("buffer_load_dwordx4 v[52:55], v27, %s, 0 offen offset:16" % sr(SRD_P, 4))
    e("s_lshl_b32 %s, %s, 2" % (sr(sGoff), sr(sT0)))
    e("s_add_u32 %s, %s, %d" % (sr(sGoff), sr(sGoff), WS_G))
    for x in flat_dma(dmaW(0)) + flat_dma(dmaX(0)) + flat_dma(dmaX(1)) + flat_dma(dmaW(1)) + \
            flat_dma(dmaX(0)) + flat_dma(dmaW(2)) + flat_dma(dmaX(1)):
        e(x)
    e("v_and_b32 v%d, 31, v0" % T0)
    e("v_lshrrev_b32 v%d, 5, v0" % T1)
    e("v_bfe_u32 v%d, v0, 1, 3" % T4)
    e("v_lshlrev_b32 v%d, 7, v%d" % (T2, T0))
    e("v_add_u32 v%d, %s, v%d" % (T2, sr(sXbeg), T2))
    for s in range(4):
        e("v_add_u32 v%d, %d, v%d" % (T3, 2 * s, T1))
        e("v_xor_b32 v%d, v%d, v%d" % (T3, T3, T4))
        e("v_lshl_add_u32 %s, v%d, 4, v%d" % (vr(vXr[s]), T3, T2))
    e("v_bfe_u32 v%d, v0, 2, 2" % T0)
    e("v_bfe_u32 v%d, v0, 4, 1" % T4)
    e("v_and_b32 v%d, 3, v0" % T2)
    e("v_lshl_add_u32 v%d, v%d, 3, v%d" % (T3, T1, T0))
    e("v_lshlrev_b32 v%d, 3, v%d" % (T2, T2))
    e("v_mul_u32_u24 %s, 224, v%d" % (vr(vWr7), T3))
    e("v_mul_u32_u24 v%d, 7296, v%d" % (T1, T4))
    e("v_add3_u32 %s, %s, v%d, v%d" % (vr(vWr7), vr(vWr7), T1, T2))
    e("v_lshlrev_b32 v%d, 9, v%d" % (T3, T3))
    e("v_lshl_add_u32 v%d, v%d, 5, v%d" % (T3, T4, T3))
    e("v_add_u32 v%d, v%d, v%d" % (T3, T3, T2))
    for q in range(4):
        e("v_xor_b32 v%d, %d, v%d" % (T2, q, T0))
        e("v_lshl_add_u32 %s, v%d, 6, v%d" % (vr(vWr8[q]), T2, T3))
    e("s_and_b32 %s, %s, 1" % (sr(sT0), sr(sWave)))
    e("s_lshl_b32 %s, %s, 8" % (sr(sT1), sr(sT0)))
    e("v_add_u32 v%d, %s, v0" % (T0, sr(sT1)))
    for j in range(4):
        e("v_add_u32 v%d, %d, v%d" % (T1, 64 * j, T0))
        e("v_mul_u32_u24 v%d, 4682, v%d" % (T2, T1))
        e("v_lshrrev_b32 v%d, 16, v%d" % (T2, T2))
        e("v_mul_u32_u24 v%d, 14, v%d" % (T3, T2))
        e("v_sub_u32 v%d, v%d, v%d" % (T3, T1, T3))
        e("v_mul_u32_u24 v%d, 7168, v%d" % (T2, T2))
        e("v_lshl_add_u32 v%d, v%d, 4, v%d" % (T2, T3, T2))
        e("v_subrev_u32 %s, %d, v%d" % (vr(vWdN[j]), 1024 * j, T2))
    e("s_lshl_b32 %s, %s, 30" % (sr(sT1), sr(sT0)))
    e("v_or_b32 %s, %s, %s" % (vr(vWdN[3]), sr(sT1), vr(vWdN[3])))
    e("s_lshr_b32 %s, %s, 1" % (sr(sT1), sr(sWave)))
    e("s_mul_i32 %s, %s, 7296" % (sr(sT2), sr(sT1)))
    e("s_lshl_b32 %s, %s, 12" % (sr(sT3), sr(sT0)))
    e("s_add_u32 %s, %s, %s" % (sr(sGm0a), sr(sT2), sr(sT3)))
    e("s_cmp_eq_u32 %s, 0" % sr(sT0))
    e("s_cselect_b32 %s, %s, %d" % (sr(sGm0b), sr(sGm0a), 14464 - 3072))

    def set_next_gu():
        e("s_mov_b32 %s, %s" % (sr(sNXlo), sr(S_X)))
        e("s_mov_b32 %s, %s" % (sr(sNXhi), sr(S_X + 1)))
        e("s_mov_b32 %s, %d" % (sr(sNXn), 2048 * 1024 * 2))
        e("s_lshl_b32 %s, %s, 19" % (sr(sNXk), sr(sTm)))
        e("s_mov_b32 %s, 65536" % sr(sNXrow32))
        e("s_cmp_lt_u32 %s, 2" % sr(sWave))
        e("s_cselect_b32 %s, %s, %s" % (sr(sNWlo), sr(S_WG), sr(S_WU)))
        e("s_cselect_b32 %s, %s, %s" % (sr(sNWhi), sr(S_WG + 1), sr(S_WU + 1)))
        e("s_mov_b32 %s, %d" % (sr(sNWn), 1024 * 3584 * 2))
        e("s_mul_i32 %s, %s, 224" % (sr(sNWk), sr(sTn7)))
        e("s_mov_b32 %s, %d" % (sr(sNWstep), 32 * 7168))
        e("s_mov_b32 %s, %s" % (sr(sNm0a), sr(sGm0a)))
        e("s_mov_b32 %s, %s" % (sr(sNm0b), sr(sGm0b)))

    def set_next_v():
        e("s_mov_b32 %s, %s" % (sr(sNXlo), sr(S_CKV)))
        e("s_mov_b32 %s, %s" % (sr(sNXhi), sr(S_CKV + 1)))
        e("s_mov_b32 %s, %d" % (sr(sNXn), 2048 * 512 * 2))
        e("s_lshl_b32 %s, %s, 18" % (sr(sNXk), sr(sTm)))
        e("s_mov_b32 %s, 32768" % sr(sNXrow32))
        e("s_mov_b32 %s, %s" % (sr(sNWlo), sr(S_WUV)))
        e("s_mov_b32 %s, %s" % (sr(sNWhi), sr(S_WUV + 1)))
        e("s_mov_b32 %s, %d" % (sr(sNWn), 512 * 4096 * 2))
        e("s_lshl_b32 %s, %s, 9" % (sr(sNWk), sr(sTn8)))
        e("s_mov_b32 %s, %d" % (sr(sNWstep), 32 * 8192))
        e("s_mov_b32 %s, %s" % (sr(sNm0a), sr(sWm0a)))
        e("s_mov_b32 %s, %s" % (sr(sNm0b), sr(sWm0b)))

    e("s_cmp_eq_u32 %s, 0" % sr(sJob))
    e("s_cbranch_scc0 %s_nB" % name)
    set_next_gu()
    e("s_branch %s_nC" % name)
    a.label(name + "_nB")
    set_next_v()
    a.label(name + "_nC")
    e("s_lshl_b32 %s, %s, 14" % (sr(sT0), sr(sWave)))
    e("v_lshlrev_b32 %s, 4, v0" % vr(vSt))
    e("v_add_u32 %s, %s, %s" % (vr(vSt), sr(sT0), vr(vSt)))
    pf = OPT.get('pf', [[[2, 4], [4, 0], [7, 0], [8, 0], [7, 3], [8, 3]],
                        [] if OPT.get('apf', 1) else [[0, 15], [0, 15], [0, 15], [9, 0], [9, 3], [5, 0], [5, 4]]])
    pf_lists(a, pf[0])
    e("s_lshl_b32 %s, s2, 2" % sr(sPfOff))
    e("s_add_u32 %s, %s, %s" % (sr(sPfOff), sr(sPfOff), sr(sWave)))
    e("s_lshl_b32 %s, %s, 12" % (sr(sPfOff), sr(sPfOff)))
    e("v_lshlrev_b32 %s, 6, v0" % vr(vPf))
    e("s_mov_b32 %s, 0" % sr(sPfB))
    e("s_mov_b32 %s, 0" % sr(sT3))

    def vsw_k(a, which):
        if which == 'W':
            l = a.newlabel("vsw")
            a.e("s_cmp_lg_u32 %s, 0" % sr(sJob))
            a.e("s_cbranch_scc1 %s" % l)
            for j in range(4):
                a.e("v_mov_b32 %s, %s" % (vr(vWd[j]), vr(vWdN[j])))
            a.label(l)

    def vsw_v(a, which):
        for j in range(4):
            if which == 'W':
                a.e("v_mov_b32 %s, %s" % (vr(vWd[j]), vr(vWdN[j])))
            else:
                a.e("v_mov_b32 %s, %s" % (vr(vXd[j]), vr(vXdN[j])))

    def vsw_g(a, which):
        if which == 'X':
            a.e(poll_issue(24, SRD_DBG, "0"))

    def hook_g(a):
        l1_ = a.newlabel("hk")
        a.e("s_cmp_lg_u32 %s, 3" % sr(sIter))
        a.e("s_cbranch_scc1 %s" % l1_)
        flag_store(a, "byte", 24, "1", SRD_DBG, "s2")
        a.label(l1_)

    e("s_waitcnt vmcnt(28)")
    e("v_mov_b32 v30, 0")
    e("v_mov_b32 v31, 0")
    for i in range(8):
        e("v_dot2_f32_bf16 v30, v%d, v%d, v30" % (32 + i, 48 + i))
        e("v_dot2_f32_bf16 v31, v%d, v%d, v31" % (40 + i, 48 + i))
    e("s_nop 2")
    for mode in ("row_shr:1", "row_shr:2", "row_shr:4", "row_shr:8", "row_bcast:15 row_mask:0xa", "row_bcast:31 row_mask:0xc"):
        rm = "" if "row_mask" in mode else " row_mask:0xf"
        e("v_add_f32_dpp v30, v30, v30 %s%s bank_mask:0xf" % (mode, rm))
        e("v_add_f32_dpp v31, v31, v31 %s%s bank_mask:0xf" % (mode, rm))
        e("s_nop 0")
    e("v_mul_f32 v30, %s, v30" % f32(-1.4426950408889634))
    e("v_mul_f32 v31, %s, v31" % f32(-1.4426950408889634))
    e("v_exp_f32 v30, v30")
    e("v_exp_f32 v31, v31")
    e("s_nop 0")
    e("v_add_f32 v30, 1.0, v30")
    e("v_add_f32 v31, 1.0, v31")
    e("v_rcp_f32 v30, v30")
    e("v_rcp_f32 v31, v31")
    e("s_mov_b32 exec_lo, 0")
    e("s_brev_b32 exec_hi, 1")
    e("buffer_store_dwordx2 v[30:31], off, %s, %s%s" % (sr(SRD_WS, 4), sr(sGoff), SC))
    e("s_and_b32 %s, s2, 7" % sr(sT0))
    e("s_lshr_b32 %s, s2, 3" % sr(sT1))
    e("s_lshl_b32 %s, %s, 2" % (sr(sT2), sr(sT0)))
    e("s_lshr_b32 %s, %s, 3" % (sr(sT3), sr(sT1)))
    e("s_add_u32 %s, %s, %s" % (sr(sT2), sr(sT2), sr(sT3)))
    e("s_lshl_b32 %s, %s, 2" % (sr(sT2), sr(sT2)))
    e("s_and_b32 %s, %s, 7" % (sr(sT3), sr(sT1)))
    e("s_sub_u32 %s, 15, %s" % (sr(sOb), sr(sT3)))
    e("s_cmp_eq_u32 %s, 1" % sr(sWave))
    e("s_cselect_b32 %s, %s, %s" % (sr(sT3), sr(sT3), sr(sOb)))
    e("s_lshl_b32 %s, %s, 7" % (sr(sT3), sr(sT3)))
    e("s_add_u32 %s, %s, %s" % (sr(sT2), sr(sT2), sr(sT3)))
    e("s_add_u32 %s, %s, %d" % (sr(sT2), sr(sT2), WS_F3))
    e("s_and_b32 %s, s2, 127" % sr(sT3))
    e("s_lshl_b32 %s, %s, 7" % (sr(sT3), sr(sT3)))
    e("s_add_u32 %s, %s, %d" % (sr(sT3), sr(sT3), WS_FP))
    e("s_cmp_eq_u32 %s, 3" % sr(sWave))
    e("s_cselect_b32 %s, %s, %s" % (sr(sT2), sr(sT3), sr(sT2)))
    e("s_add_u32 %s, s2, %d" % (sr(sT3), WS_F2))
    e("v_mov_b32 v30, 0")
    e("s_cmp_eq_u32 %s, 0" % sr(sWave))
    e("s_cbranch_scc1 %s_z0" % name)
    e("buffer_store_dword v30, off, %s, %s sc1" % (sr(SRD_WS, 4), sr(sT2)))
    e("s_branch %s_z1" % name)
    a.label(name + "_z0")
    e("buffer_store_byte v30, off, %s, %s sc1" % (sr(SRD_WS, 4), sr(sT3)))
    a.label(name + "_z1")
    e("s_mov_b64 exec, -1")
    e("s_mov_b32 %s, 0" % sr(sT3))
    e("s_mov_b32 %s, 0" % sr(SRD_P + 2))
    e(pf_load())
    interval(a, 'K', 0, 'A', kindA='none')
    interval(a, 'K', 0, 'B', zeroB=True)
    e("s_branch %s_k_entry" % name)
    loop(a, 'K', name + "_k", vsw_k)
    e("s_cmp_lg_u32 %s, 0" % sr(sJob))
    e("s_cbranch_scc1 %s_k2v" % name)
    interval(a, 'G', 0, 'A', kindA='K')
    qs = 1.4426950408889634 / (128.0 ** 0.5)
    e("s_mov_b32 %s, %s" % (sr(sCA), f32(qs)))
    e("s_mov_b32 %s, %s" % (sr(sCA + 1), f32(qs)))
    e("s_lshl_b32 %s, %s, 20" % (sr(sOb), sr(sTn8)))
    e("s_lshl_b32 %s, %s, 16" % (sr(sT0), sr(sTm)))
    e("s_add_u32 %s, %s, %s" % (sr(sOb), sr(sOb), sr(sT0)))
    epilogue_kqv(a, 'K', scale=sCA)
    e("s_branch %s_gu_start" % name)
    a.label(name + "_k2v")
    interval(a, 'V', 0, 'A', kindA='K')
    e("s_lshl_b32 %s, %s, 20" % (sr(sOb), sr(sTn8)))
    e("s_lshl_b32 %s, %s, 16" % (sr(sT0), sr(sTm)))
    e("s_add_u32 %s, %s, %s" % (sr(sOb), sr(sOb), sr(sT0)))
    e("s_add_u32 %s, %s, %d" % (sr(sOb), sr(sOb), WS_K))
    epilogue_kqv(a, 'K')
    set_next_gu()
    e("s_mov_b32 %s, 4" % sr(sIter))
    interval(a, 'V', 0, 'B', zeroB=True)
    e("s_branch %s_v_entry" % name)
    loop(a, 'V', name + "_v", vsw_v)
    interval(a, 'G', 0, 'A', kindA='V')
    e("s_add_u32 %s, %s, %d" % (sr(sOb), sr(sOb), WS_V - WS_K))
    epilogue_kqv(a, 'V')
    a.label(name + "_gu_start")
    e("s_mov_b32 %s, 0" % sr(sNXn))
    e("s_mov_b32 %s, 0" % sr(sNWn))
    pf_lists(a, pf[1])
    e("s_mov_b32 %s, 8" % sr(sIter))
    interval(a, 'G', 0, 'B', zeroB=True)
    e("s_branch %s_g_entry" % name)
    loop(a, 'G', name + "_g", vsw_g, hook_g)
    stamp_ts(a)
    e("s_waitcnt vmcnt(0) lgkmcnt(0)")
    e("s_barrier")
    for m in mfmas('G', 1):
        e(m)
    poll_check(a, 24, SRD_DBG, "0", 64, sT0)
    e("s_lshl_b32 %s, %s, 10" % (sr(sT0), sr(sTm)))
    e("s_lshl_b32 %s, %s, 8" % (sr(sT1), sr(sWave)))
    e("s_add_u32 %s, %s, %s" % (sr(sT0), sr(sT0), sr(sT1)))
    e("s_add_u32 %s, %s, %d" % (sr(sT0), sr(sT0), WS_G))
    e("v_and_b32 v24, 31, v0")
    e("v_lshlrev_b32 v24, 2, v24")
    e("buffer_load_dword %s, v24, %s, %s offen sc1" % (vr(vG1[0]), sr(SRD_WS, 4), sr(sT0)))
    e("buffer_load_dword %s, v24, %s, %s offen offset:128 sc1" % (vr(vG1[1]), sr(SRD_WS, 4), sr(sT0)))
    att_prologue(a)
    e("s_mul_i32 %s, %s, %d" % (sr(sOb), sr(sTm), 8 * 480 * 1024))
    e("s_mul_i32 %s, %s, 7168" % (sr(sT0), sr(sTn7)))
    e("s_add_u32 %s, %s, %s" % (sr(sOb), sr(sOb), sr(sT0)))
    e("s_add_u32 %s, %s, %d" % (sr(sOb), sr(sOb), WS_A3 + 256 * 1024))
    e("s_mul_i32 %s, %s, %d" % (sr(sT0), sr(sWave), 2 * 480 * 1024))
    e("v_lshlrev_b32 %s, 4, v0" % vr(vSt))
    e("v_add_u32 %s, %s, %s" % (vr(vSt), sr(sT0), vr(vSt)))
    epilogue_gu(a)
    stamp_ts(a)


NSLOT = 5
aHead, aPair, aT, aLoop, aRd, aWr, aWrEnd, aWrBeg = range(16, 24)
aDK, aDV, aKmax, aVmax, aT0, aT1, aT2, aTHR, aNEG, aPl, aLoopS = range(24, 35)
aQb = [35, 36]
aThr = [37, 38]
aMaskB = [39, 40]
aFB = 42
aCmp = 56

vLane16, vDma, vRd, vDl = 1, 2, 3, 4
vNegm, vL, vLs, vG = [5, 6], [7, 24], [26, 27], [8, 9]
vTmp = [10, 11, 12, 13]
vPoll2 = 14
vAPf, vAPfD = 15, 28
vE = [16, 17, 18, 19, 20, 21, 22, 23]
vC = [32, 160]
vS = [[48, 64], [176, 192]]
vP = [[80, 88], [208, 216]]
vZ = 224
vO = 96
rQ = [0, 32]
rK, rV, rOB = 64, 96, 128


def oreg(X, db, n=16, off=0):
    return vr(vO + 16 * db + off, n) if X == 0 else ar(rOB + 16 * db + off, n)


def a_pf(which):
    if not OPT.get('apf', 1):
        return []
    srd = SRD_P if which == 0 else SRD_X
    out = ["buffer_load_dword %s, %s, %s, 0 offen" % (vr(vAPfD), vr(vAPf), sr(srd, 4))]
    if which == 1:
        out.append("v_add_u32 %s, %d, %s" % (vr(vAPf), 1024 * OPT.get('apl', 8) * 64, vr(vAPf)))
    return out


def qk_mfmas(par, streams, czero=()):
    out = []
    for ks in range(8):
        for X in streams:
            c = vr(vS[X][par], 16)
            if ks == 0:
                c = "0" if X in czero else vr(vC[X], 16)
            out.append("v_mfma_f32_32x32x16_bf16 %s, %s, %s, %s" % (vr(vS[X][par], 16), ar(rK + 4 * ks, 4), ar(rQ[X] + 4 * ks, 4), c))
    return out


def pv_mfmas(par, streams):
    out = []
    for g in range(2):
        for db in range(4):
            for X in streams:
                o = oreg(X, db)
                out.append("v_mfma_f32_32x32x16_bf16 %s, %s, %s, %s" % (o, ar(rV + 4 * (g * 4 + db), 4), vr(vP[X][par] + 4 * g, 4), o))
    return out


def k_reads(sb):
    return ["ds_read_b128 %s, %s offset:%d" % (ar(rK + 4 * ks, 4), vr(vRd), sb * 8192 + ks * 1024) for ks in range(8)]


def v_reads(sb):
    return ["ds_read_b128 %s, %s offset:%d" % (ar(rV + 4 * j, 4), vr(vRd), 16384 + sb * 8192 + j * 1024) for j in range(8)]


def sm_items(X, par):
    it = [(4, "v_add_f32 %s, %s, %s" % (vr(vL[X]), vr(vL[X]), vr(vLs[X])))]
    S, P, Ls = vS[X][par], vP[X][par], vLs[X]
    pend = []
    for r in range(16):
        e = vE[r % 8]
        it.append((8, "v_exp_f32 %s, %s" % (vr(e), vr(S + r))))
        it.extend(pend)
        pend = []
        if r == 1:
            pend.append((4, "v_add_f32 %s, %s, %s" % (vr(Ls), vr(vE[0]), vr(vE[1]))))
        elif r > 1:
            pend.append((4, "v_add_f32 %s, %s, %s" % (vr(Ls), vr(Ls), vr(e))))
        if r & 1:
            pend.append((4, "v_cvt_pk_bf16_f32 %s, %s, %s" % (vr(P + (r >> 1)), vr(vE[(r - 1) % 8]), vr(e))))
    it.extend(pend)
    it.append((4, "v_cmp_lt_f32 %s, %s, %s" % ("vcc" if X == 0 else sr(aFB, 2), sr(aTHR), vr(Ls))))
    return it


def a_dma(which):
    m0 = "s_mov_b32 m0, %s" % sr(aWr) if which == 'K' else "s_add_u32 m0, %s, 16384" % sr(aWr)
    so = aDK if which == 'K' else aDV
    d = ["buffer_load_dwordx4 %s, %s, %s offen offset:%d lds" % (vr(vDma), sr(SRD_WS, 4), sr(so), j * 1024) for j in range(4)]
    return m0, d


def a_dma_advance():
    return [
        "s_add_u32 %s, %s, 32768" % (sr(aWr), sr(aWr)),
        "s_cmp_eq_u32 %s, %s" % (sr(aWr), sr(aWrEnd)),
        "s_cselect_b32 %s, %s, %s" % (sr(aWr), sr(aWrBeg), sr(aWr)),
        "s_add_u32 %s, %s, 16384" % (sr(aDK), sr(aDK)),
        "s_min_u32 %s, %s, %s" % (sr(aDK), sr(aDK), sr(aKmax)),
        "s_add_u32 %s, %s, 16384" % (sr(aDV), sr(aDV)),
        "s_min_u32 %s, %s, %s" % (sr(aDV), sr(aDV), sr(aVmax)),
    ]


def a_rd_advance():
    return [
        "s_add_u32 %s, %s, 32768" % (sr(aRd), sr(aRd)),
        "s_cmp_eq_u32 %s, %d" % (sr(aRd), NSLOT * 32768),
        "s_cselect_b32 %s, 0, %s" % (sr(aRd), sr(aRd)),
    ]


class Sched:
    def __init__(self, par, qk, pv, sm, kr=True, thr=None):
        self.par, self.sm = par, sm
        m1 = qk_mfmas(par ^ 1, qk) if qk else [None] * 8
        m2 = pv_mfmas(par ^ 1, pv)
        n1, n2 = len(m1), len(m2)
        self.n1, self.n = n1, n1 + n2
        self.mf = m1 + m2
        n = self.n
        fill = {g: [] for g in range(n)}
        used = {g: 0 for g in range(n)}
        pre = {g: [] for g in range(n)}

        def put(g, s, c=4):
            fill[g].append(s)
            used[g] += c
        s1, s2 = n1 // 8, n2 // 8
        for j, r in enumerate(v_reads(1 if par == 0 else 0)):
            put(j * s1, r)
        if kr:
            for j, r in enumerate(k_reads(0 if par == 0 else 1)):
                put(n1 + j * s2, r)
        if qk:
            pre[0].append("s_waitcnt lgkmcnt(4)")
            pre[n1 // 2].append("s_waitcnt lgkmcnt(4)")
            used[n1 // 2 - 1] += 4
        pre[n1].append("s_waitcnt lgkmcnt(4)")
        used[n1 - 1] += 4
        pre[n1 + n2 // 2].append("s_waitcnt lgkmcnt(%d)" % (4 if kr else 0))
        used[n1 + n2 // 2 - 1] += 4
        if par == 0:
            m0, d = a_dma('K')
            put(n1, m0)
            for j in range(4):
                put(n1 + (1 + 2 * j) * s2 - (s2 - 1), d[j])
            for x in a_rd_advance():
                put(n1 - 2, x)
            for x in a_pf(1):
                put(2 * s1, x)
        else:
            m0, d = a_dma('V')
            put(0, m0)
            for j in range(4):
                put((1 + 2 * j) * s1 - (s1 - 1), d[j])
            adv = a_dma_advance()
            for g, lo, hi in ((1, 0, 3), (3, 3, 5), (5, 5, 7)):
                for x in adv[lo:hi]:
                    put(n1 + g * s2, x)
            for x in a_pf(0):
                put(n1 + 2 * s2, x)
        g = 0
        cap = OPT.get('cap', 24)
        items = []
        for X in reversed(sm):
            items += sm_items(X, par)
        tot = sum(c for c, _ in items) + sum(used.values())
        if len(sm) == 2 or n > 16:
            cap = max(16, min(cap, 4 * (-(-tot // (4 * (n - 2)))) + 4))
        for c, s_ in items:
            while g < n - 1 and used[g] + c > cap:
                g += 1
            put(g, s_, c)
        if 1 in sm:
            put(n - 1, "s_or_b64 vcc, vcc, %s" % sr(aFB, 2))
        self.thr = thr
        if thr is not None:
            put(n - 1, "s_cmp_ge_i32 %s, %s" % (sr(aT), sr(aThr[thr])))
        self.fill, self.pre = fill, pre

    def emit(self, a, half):
        lo, hi = {'h1': (0, self.n1), 'h2': (self.n1, self.n), 'all': (0, self.n)}[half]
        for g in range(lo, hi):
            for s_ in self.pre[g]:
                a.e(s_)
            if self.mf[g]:
                a.e(self.mf[g])
            for s_ in self.fill[g]:
                a.e(s_)


def a_barrier(a):
    a.e("s_waitcnt vmcnt(%d)" % (22 if OPT.get('apf', 1) else 16))
    a.e("s_barrier")
    a.e("v_add_u32 %s, %s, %s" % (vr(vRd), sr(aRd), vr(vLane16)))


def maskprep_items(X):
    it = []
    it.append("s_lshl_b32 %s, %s, 5" % (sr(aT2), sr(aT1)))
    it.append("s_sub_i32 %s, %s, %s" % (sr(aT2), sr(aMaskB[X]), sr(aT2)))
    it.append("v_add_u32 %s, %s, %s" % (vr(vTmp[2]), sr(aT2), vr(vDl)))
    it.append("v_mov_b32 %s, %s" % (vr(vTmp[3]), sr(aNEG)))
    for r in range(16):
        kc = 8 * (r >> 2) + (r & 3)
        it.append("v_cmp_gt_i32 %s, %d, %s" % (sr(aCmp + 2 * (r & 3), 2), kc, vr(vTmp[2])))
        if (r & 3) == 3:
            for q in range(4):
                it.append("v_cndmask_b32 %s, %s, %s, %s" % (vr(vC[X] + r - 3 + q), vr(vNegm[X]), vr(vTmp[3]), sr(aCmp + 2 * q, 2)))
    return it


def rowmax_items(S, t0, t1):
    it = ["v_max3_f32 %s, %s, %s, %s" % (vr(t0), vr(S), vr(S + 1), vr(S + 2))]
    for r in range(3, 15, 2):
        it.append("v_max3_f32 %s, %s, %s, %s" % (vr(t0), vr(t0), vr(S + r), vr(S + r + 1)))
    it.append("v_max_f32 %s, %s, %s" % (vr(t0), vr(t0), vr(S + 15)))
    it.append("v_mov_b32 %s, %s" % (vr(t1), vr(t0)))
    it.append("s_nop 1")
    it.append("v_permlane32_swap_b32 %s, %s" % (vr(t0), vr(t1)))
    it.append("s_nop 1")
    it.append("v_max_f32 %s, %s, %s" % (vr(t0), vr(t0), vr(t1)))
    return it


def resm_items(X, par, t0):
    S, P, Ls = vS[X][par], vP[X][par], vLs[X]
    it = []
    for r in range(16):
        it.append("v_sub_f32 %s, %s, %s" % (vr(S + r), vr(S + r), vr(t0)))
    for r in range(16):
        it.append("v_exp_f32 %s, %s" % (vr(S + r), vr(S + r)))
    it.append("v_add_f32 %s, %s, %s" % (vr(Ls), vr(S), vr(S + 1)))
    for r in range(2, 16):
        it.append("v_add_f32 %s, %s, %s" % (vr(Ls), vr(Ls), vr(S + r)))
    for r in range(8):
        it.append("v_cvt_pk_bf16_f32 %s, %s, %s" % (vr(P + r), vr(S + 2 * r), vr(S + 2 * r + 1)))
    return it


def stage_end(a, sc, masks, handlers):
    ret, sp, sl = a.newlabel("aret"), a.newlabel("asp"), a.newlabel("asl")
    if sc.thr is not None:
        a.e("s_cbranch_scc1 %s" % sp)
    a.e("s_cbranch_vccnz %s" % sl)
    a.label(ret)
    a.e("s_add_u32 %s, %s, 1" % (sr(aT), sr(aT)))
    handlers.append((sc.par, sc.sm, masks, sp if sc.thr is not None else None, sl, ret))


def emit_handler(a, par, sm, masks, sp, sl, ret):
    e = a.e
    mask = a.newlabel("hmask")
    if sp:
        a.label(sp)
        e("s_cbranch_vccz %s" % mask)
    a.label(sl)
    t0, t1 = vTmp[0], vTmp[1]
    for X in sm:
        for x in rowmax_items(vS[X][par], t0, t1):
            e(x)
        e("v_max_f32 %s, 0, %s" % (vr(t0), vr(t0)))
        e("v_exp_f32 %s, -%s" % (vr(t1), vr(t0)))
        e("v_sub_f32 %s, %s, %s" % (vr(vNegm[X]), vr(vNegm[X]), vr(t0)))
        e("v_mul_f32 %s, %s, %s" % (vr(vL[X]), vr(vL[X]), vr(t1)))
        for i in range(64):
            if X == 0:
                e("v_mul_f32 %s, %s, %s" % (vr(vO + i), vr(vO + i), vr(t1)))
            else:
                e("v_accvgpr_read_b32 %s, %s" % (vr(vTmp[2]), ar(rOB + i)))
                e("v_mul_f32 %s, %s, %s" % (vr(vTmp[2]), vr(vTmp[2]), vr(t1)))
                e("v_accvgpr_write_b32 %s, %s" % (ar(rOB + i), vr(vTmp[2])))
        Sn = vS[X][par ^ 1]
        for r in range(16):
            e("v_sub_f32 %s, %s, %s" % (vr(Sn + r), vr(Sn + r), vr(t0)))
        for x in resm_items(X, par, t0):
            e(x)
    a.label(mask)
    e("s_add_u32 %s, %s, 2" % (sr(aT1), sr(aT)))
    for X in masks:
        for x in maskprep_items(X):
            e(x)
    e("s_branch %s" % ret)


def att_prologue(a):
    e = a.e
    e("s_and_b32 %s, s2, 7" % sr(aT0))
    e("s_lshr_b32 %s, s2, 3" % sr(aT1))
    e("s_and_b32 %s, %s, 7" % (sr(aQb[1]), sr(aT1)))
    e("s_lshr_b32 %s, %s, 3" % (sr(aT1), sr(aT1)))
    e("s_lshl_b32 %s, %s, 2" % (sr(aHead), sr(aT0)))
    e("s_add_u32 %s, %s, %s" % (sr(aHead), sr(aHead), sr(aT1)))
    e("s_sub_u32 %s, 15, %s" % (sr(aQb[0]), sr(aQb[1])))
    e("v_lshlrev_b32 %s, 4, v0" % vr(vLane16))
    e("s_lshl_b32 %s, %s, 12" % (sr(aWrBeg), sr(sWave)))
    e("v_add_u32 %s, %s, %s" % (vr(vDma), sr(aWrBeg), vr(vLane16)))
    e("s_mov_b32 %s, %s" % (sr(aWr), sr(aWrBeg)))
    e("s_add_u32 %s, %s, %d" % (sr(aWrEnd), sr(aWrBeg), NSLOT * 32768))
    e("s_lshl_b32 %s, %s, 19" % (sr(aT0), sr(aHead)))
    e("s_add_u32 %s, %s, %d" % (sr(aDK), sr(aT0), WS_K))
    e("s_add_u32 %s, %s, %d" % (sr(aDV), sr(aT0), WS_V - 16384))
    e("s_lshl_b32 %s, %s, 15" % (sr(aT1), sr(aQb[0])))
    e("s_add_u32 %s, %s, 16384" % (sr(aT1), sr(aT1)))
    e("s_add_u32 %s, %s, %s" % (sr(aKmax), sr(aDK), sr(aT1)))
    e("s_add_u32 %s, %s, %d" % (sr(aVmax), sr(aKmax), WS_V - WS_K))
    e("v_and_b32 v24, 31, v0")
    e("v_lshrrev_b32 v25, 5, v0")
    e("v_lshlrev_b32 v25, 2, v25")
    e("v_sub_u32 %s, v24, v25" % vr(vDl))
    e("v_lshlrev_b32 v24, 2, v24")

    def qload(X):
        e("s_lshl_b32 %s, %s, 2" % (sr(aT1), sr(aQb[X])))
        e("s_add_u32 %s, %s, %s" % (sr(aT1), sr(aT1), sr(sWave)))
        e("s_lshl_b32 %s, %s, 13" % (sr(aT2), sr(aT1)))
        e("s_lshl_b32 %s, %s, 19" % (sr(aT0), sr(aHead)))
        e("s_add_u32 %s, %s, %s" % (sr(aT2), sr(aT2), sr(aT0)))
        e("s_add_u32 %s, %s, 4096" % (sr(aT0), sr(aT2)))
        for ks in range(8):
            e("buffer_load_dwordx4 %s, %s, %s, %s offen offset:%d" % (
                ar(rQ[X] + 4 * ks, 4), vr(vLane16), sr(SRD_WS, 4), sr(aT2 if ks < 4 else aT0), (ks & 3) * 1024))
        e("s_lshl_b32 %s, %s, 7" % (sr(aT1), sr(aT1)))
        e("s_add_u32 %s, %s, %d" % (sr(aT1), sr(aT1), WS_G))
        e("buffer_load_dword %s, v24, %s, %s offen sc1" % (vr(vG[X]), sr(SRD_WS, 4), sr(aT1)))
    for i in range(3):
        for w in ('K', 'V'):
            if i == 0 and w == 'V':
                continue
            m0, d = a_dma(w)
            e(m0)
            e("s_nop 0")
            for x in d:
                e(x)
        for x in a_dma_advance():
            e(x)
        if i == 0:
            qload(0)
            qload(1)
    e("s_mov_b32 %s, %s" % (sr(aTHR), f32(4096.0)))
    e("s_mov_b32 %s, %s" % (sr(aNEG), f32(-1e30)))
    e("s_mov_b32 %s, 0" % sr(aRd))
    e("s_mov_b32 %s, %d" % (sr(aPl), WS_F2))
    for X in range(2):
        e("s_lshl_b32 %s, %s, 2" % (sr(aT0), sr(aQb[X])))
        e("s_sub_i32 %s, %s, 2" % (sr(aThr[X]), sr(aT0)))
        e("s_add_u32 %s, %s, %s" % (sr(aMaskB[X]), sr(aT0), sr(sWave)))
        e("s_lshl_b32 %s, %s, 5" % (sr(aMaskB[X]), sr(aMaskB[X])))
    e("s_lshl_b32 %s, %s, 1" % (sr(aLoop), sr(aQb[1])))
    e("s_add_u32 %s, %s, 1" % (sr(aLoop), sr(aLoop)))
    e("s_sub_u32 %s, %s, %s" % (sr(aLoopS), sr(aQb[0]), sr(aQb[1])))
    e("s_lshl_b32 %s, %s, 1" % (sr(aLoopS), sr(aLoopS)))
    e("s_sub_u32 %s, %s, 1" % (sr(aLoopS), sr(aLoopS)))


ATT_PRO_LOADS = 20 + 18


def mix(a, mf, fixed, stream, cap=6):
    i = 0
    for g, m in enumerate(mf):
        a.e(m)
        k = 0
        for x in fixed.get(g, []):
            a.e(x)
            k += 1
        while i < len(stream) and k < cap:
            mg = 0
            x = stream[i]
            if isinstance(x, tuple):
                mg, x = x
            if mg > g:
                break
            a.e(x)
            k += 2 if x.startswith("v_exp") else 1
            i += 1
    while i < len(stream):
        x = stream[i]
        a.e(x[1] if isinstance(x, tuple) else x)
        i += 1


def att_epilogue(a, X):
    e = a.e
    t0, t1 = vTmp[0], vTmp[1]
    e("v_mov_b32 %s, %s" % (vr(t0), vr(vL[X])))
    e("s_lshl_b32 %s, %s, 2" % (sr(aT1), sr(aQb[X])))
    e("s_add_u32 %s, %s, %s" % (sr(aT1), sr(aT1), sr(sWave)))
    e("v_permlane32_swap_b32 %s, %s" % (vr(t0), vr(vL[X])))
    e("s_mul_i32 %s, %s, %d" % (sr(aT1), sr(aT1), 480 * 1024))
    e("s_lshl_b32 %s, %s, 13" % (sr(aT2), sr(aHead)))
    e("v_add_f32 %s, %s, %s" % (vr(t0), vr(vL[X]), vr(t0)))
    e("v_rcp_f32 %s, %s" % (vr(t0), vr(t0)))
    e("s_add_u32 %s, %s, %s" % (sr(aT1), sr(aT1), sr(aT2)))
    e("s_add_u32 %s, %s, %d" % (sr(aT1), sr(aT1), WS_A3))
    e("v_mul_f32 %s, %s, %s" % (vr(t0), vr(t0), vr(vG[X])))
    e("s_add_u32 %s, %s, 4096" % (sr(aT2), sr(aT1)))
    e("v_mov_b32 %s, %s" % (vr(t1), vr(t0)))
    for db in range(4):
        if X == 0:
            r = vO + 16 * db
        else:
            r = vYB + 16 * db
            for i in range(16):
                e("v_accvgpr_read_b32 %s, %s" % (vr(r + i), ar(rOB + 16 * db + i)))
        for i in range(0, 16, 2):
            e("v_pk_mul_f32 %s, %s, %s" % (vr(r + i, 2), vr(r + i, 2), vr(t0, 2)))
        for g in range(2):
            for i in range(4):
                e("v_cvt_pk_bf16_f32 %s, %s, %s" % (vr(r + 8 * g + i), vr(r + 8 * g + 2 * i), vr(r + 8 * g + 2 * i + 1)))
            fi = db * 2 + g
            e("buffer_store_dwordx4 %s, %s, %s, %s offen offset:%d%s" % (
                vr(r + 8 * g, 4), vr(vLane16), sr(SRD_WS, 4), sr(aT1 if fi < 4 else aT2), (fi & 3) * 1024, SC))


vYB = 160


def part2(a, name, out_prologue, handlers):
    e = a.e
    L = OPT.get('apl', 8)
    npf = 2 if OPT.get('apf', 1) else 0
    e("s_load_dwordx2 %s, s[0:1], 40" % sr(SRD_P, 2))
    e("s_load_dwordx2 %s, s[0:1], 72" % sr(SRD_X, 2))
    e("s_mov_b32 %s, %d" % (sr(SRD_P + 2), 4096 * 2048))
    e("s_mov_b32 %s, %d" % (sr(SRD_X + 2), 3584 * 2048))
    e("s_lshl_b32 %s, s2, 2" % sr(aT0))
    e("s_add_u32 %s, %s, %s" % (sr(aT0), sr(aT0), sr(sWave)))
    e("s_mul_i32 %s, %s, %d" % (sr(aT0), sr(aT0), L * 64))
    e("v_lshlrev_b32 %s, 6, v0" % vr(vAPf))
    e("v_add_u32 %s, %s, %s" % (vr(vAPf), sr(aT0), vr(vAPf)))
    e("v_cmp_gt_u32 vcc, %d, v0" % L)
    e("v_mov_b32 %s, 0x70000000" % vr(vAPfD))
    e("v_mov_b32 %s, 0" % vr(vNegm[1]))
    e("v_cndmask_b32 %s, %s, %s, vcc" % (vr(vAPf), vr(vAPfD), vr(vAPf)))
    e("s_waitcnt vmcnt(14) lgkmcnt(0)")
    e("s_barrier")
    e("v_mov_b32 %s, %s" % (vr(vRd), vr(vLane16)))
    for r in k_reads(0):
        e(r)
    m0, d = a_dma('K')
    e(m0)
    e("s_mov_b32 %s, 0" % sr(aT1))
    for x in d:
        e(x)
    for x in maskprep_items(1):
        e(x)
    for i in range(4):
        e("v_mov_b32 %s, 0" % vr(vZ + i))
    for X in range(2):
        e("v_mov_b32 %s, 0" % vr(vL[X]))
    e("s_waitcnt lgkmcnt(0)")
    q0 = qk_mfmas(0, (0, 1), czero=(0,))
    zo = ["v_mfma_f32_32x32x16_bf16 %s, %s, %s, 0" % (oreg(X, db), ar(rQ[0], 4), vr(vZ, 4)) for X in range(2) for db in range(4)]
    kr1 = k_reads(1)
    m0, d = a_dma('V')
    fx = {}
    fx[0] = [m0]
    for i in range(8):
        fx.setdefault(2 * i + 1, []).append(kr1[i])
    for j in range(4):
        fx.setdefault(2 + 2 * j, []).append(d[j])
    st = [(10, x) for x in a_dma_advance()] + [(10, x) for x in a_pf(0) + a_pf(1)]
    st += [(10, "s_mov_b32 %s, 1" % sr(aT1))] + [(10, x) for x in maskprep_items(1)]
    mix(a, q0 + zo[:4], fx, st)
    e("s_waitcnt lgkmcnt(0)")
    q1 = qk_mfmas(1, (0, 1), czero=(0,))
    st = []
    for X in range(2):
        st += rowmax_items(vS[X][0], vNegm[X], vTmp[1])
        st += resm_items(X, 0, vNegm[X])
    st += a_rd_advance()
    mix(a, zo[4:] + q1, {}, st)
    e("s_waitcnt vmcnt(%d)" % (8 + npf))
    e("s_barrier")
    e("v_add_u32 %s, %s, %s" % (vr(vRd), sr(aRd), vr(vLane16)))
    e("s_add_u32 %s, s2, %d" % (sr(aT0), WS_F2))
    flag_store(a, "byte", vTmp[0], "1", SRD_WS, sr(aT0))
    for r in k_reads(0):
        e(r)
    m0, d = a_dma('K')
    e(m0)
    e("s_mov_b32 %s, 2" % sr(aT1))
    for x in d:
        e(x)
    for X in range(2):
        for r in range(16):
            e("v_sub_f32 %s, %s, %s" % (vr(vS[X][1] + r), vr(vS[X][1] + r), vr(vNegm[X])))
        e("v_sub_f32 %s, 0, %s" % (vr(vNegm[X]), vr(vNegm[X])))
    for r in range(16):
        e("v_mov_b32 %s, %s" % (vr(vC[0] + r), vr(vNegm[0])))
    for x in maskprep_items(1):
        e(x)
    e("s_mov_b32 %s, 1" % sr(aT))
    e("s_branch %s_dentry" % name)
    B2 = (0, 1)
    A1 = (0,)
    De, Do = Sched(0, B2, B2, B2, thr=1), Sched(1, B2, B2, B2, thr=1)
    align(a)
    a.label(name + "_dloop")
    stamp_ts(a)
    a_barrier(a)
    De.emit(a, 'h2')
    stage_end(a, De, B2, handlers)
    a.label(name + "_dentry")
    Do.emit(a, 'all')
    stage_end(a, Do, B2, handlers)
    De.emit(a, 'h1')
    e("s_sub_u32 %s, %s, 1" % (sr(aLoop), sr(aLoop)))
    e("s_cmp_lg_u32 %s, 0" % sr(aLoop))
    e("s_cbranch_scc1 %s_dloop" % name)
    M1, M2 = Sched(1, A1, B2, B2, thr=0), Sched(0, A1, B2, A1, thr=0)
    stamp_ts(a)
    a_barrier(a)
    De.emit(a, 'h2')
    stage_end(a, De, A1, handlers)
    M1.emit(a, 'all')
    stage_end(a, M1, A1, handlers)
    M2.emit(a, 'h1')
    a_barrier(a)
    M2.emit(a, 'h2')
    stage_end(a, M2, A1, handlers)
    e("v_add_f32 %s, %s, %s" % (vr(vL[1]), vr(vL[1]), vr(vLs[1])))
    att_epilogue(a, 1)
    e("s_branch %s_sentry" % name)
    Se, So = Sched(0, A1, A1, A1, thr=0), Sched(1, A1, A1, A1, thr=0)
    align(a)
    a.label(name + "_aloop")
    stamp_ts(a)
    a_barrier(a)
    Se.emit(a, 'h2')
    stage_end(a, Se, A1, handlers)
    a.label(name + "_sentry")
    So.emit(a, 'all')
    stage_end(a, So, A1, handlers)
    Se.emit(a, 'h1')
    e("s_sub_u32 %s, %s, 1" % (sr(aLoopS), sr(aLoopS)))
    e("s_cmp_lg_u32 %s, 0" % sr(aLoopS))
    e("s_cbranch_scc1 %s_aloop" % name)
    stamp_ts(a)
    Te, To = Sched(0, A1, A1, A1, kr=False), Sched(1, (), A1, A1, kr=False)
    a_barrier(a)
    e(poll_issue(vPoll2, SRD_WS, sr(aPl)))
    Te.emit(a, 'h2')
    stage_end(a, Te, (), handlers)
    To.emit(a, 'all')
    stage_end(a, To, (), handlers)
    for r in v_reads(1):
        e(r)
    e("v_add_f32 %s, %s, %s" % (vr(vL[0]), vr(vL[0]), vr(vLs[0])))
    pv = pv_mfmas(1, A1)
    e("s_waitcnt lgkmcnt(4)")
    for i in range(4):
        e(pv[i])
    e("s_waitcnt lgkmcnt(0)")
    for i in range(4, 8):
        e(pv[i])
    out_prologue(a)
    a.label(name + "_nopro")
    att_epilogue(a, 0)
    stamp_ts(a)


SRD_OUT = SRD_X
oTm, oTn, oRole, oXk, oWk, oIter, oM0, oT0, oT1, oT2, oTile, oSw, oXk2, oWk2, oBit, oC3 = range(68, 84)
oWO, oWD, oOUT = 84, 86, 88
vX = [16, 17, 18, 19]
vWd3 = [20, 21, 22, 23]
vWr3 = [24, 25, 26, 27]
vSigW = 28
vPoll3 = 13
vWF = 32
vTMP = 64
vACC = 128
aACC = 0
aX = 128


def acc3(nb, tb):
    if tb < 2:
        return ('v', vACC + 16 * (tb * 4 + nb))
    return ('a', aACC + 16 * ((tb - 2) * 4 + nb))


def loads3(slot):
    pre = "s_add_u32 m0, %s, %d" % (sr(oM0), slot * 4096)
    d = ["buffer_load_dwordx4 %s, %s, %s offen offset:%d lds" % (vr(vWd3[j]), sr(SRD_W, 4), sr(oWk), j * 1024) for j in range(4)]
    x = ["buffer_load_dwordx4 %s, %s, %s, %s offen" % (ar(aX + 16 * slot + 4 * tb, 4), vr(vX[tb]), sr(SRD_WS, 4), sr(oXk)) for tb in range(4)]
    post = ["s_add_u32 %s, %s, %d" % (sr(oWk), sr(oWk), 64 * 2048), "s_add_u32 %s, %s, 4096" % (sr(oXk), sr(oXk))]
    return pre, d, x, post


def wreads3(slot, fs):
    out = []
    for nb in range(4):
        for t in range(2):
            out.append("ds_read_b64_tr_b16 %s, %s offset:%d" % (vr(vWF + 16 * fs + 4 * nb + 2 * t, 2), vr(vWr3[nb]), slot * 4096 + t * 2048))
    return out


def step3(a, i, zero=False, do_load=True, do_read=True, vm=44):
    slot, fs = i % 8, i % 2
    a.e("s_waitcnt vmcnt(%d) lgkmcnt(0)" % vm)
    mf = []
    for nb in range(4):
        for tb in range(4):
            d = reg(acc3(nb, tb), 16)
            mf.append("v_mfma_f32_32x32x16_bf16 %s, %s, %s, %s" % (d, vr(vWF + 16 * fs + 4 * nb, 4), ar(aX + 16 * slot + 4 * tb, 4), "0" if zero else d))
    fill = {}
    if do_read:
        for j, r in enumerate(wreads3((i + 1) % 8, fs ^ 1)):
            fill.setdefault(j, []).append(r)
    if do_load:
        pre, d, x, post = loads3((i + 7) % 8)
        fill.setdefault(0, []).append(pre)
        for j in range(4):
            fill.setdefault(1 + 2 * j, []).append(d[j])
        for j in range(4):
            fill.setdefault(8 + 2 * j, []).append(x[j])
        fill.setdefault(15, []).extend(post)
    interleave(a, mf, fill)


def out_prologue(a):
    e = a.e
    e("s_load_dwordx2 %s, s[0:1], 40" % sr(oWO, 2))
    e("s_load_dwordx2 %s, s[0:1], 72" % sr(oWD, 2))
    e("s_load_dwordx2 %s, s[0:1], 88" % sr(oOUT, 2))
    e("s_and_b32 %s, s2, 7" % sr(oT0))
    e("s_lshr_b32 %s, s2, 3" % sr(oT1))
    if OPT.get('omap', 0) == 0:
        e("s_and_b32 %s, %s, 3" % (sr(oTm), sr(oT0)))
        e("s_lshl_b32 %s, %s, 2" % (sr(oTm), sr(oTm)))
        e("s_and_b32 %s, %s, 3" % (sr(oT2), sr(oT1)))
        e("s_add_u32 %s, %s, %s" % (sr(oTm), sr(oTm), sr(oT2)))
        e("s_lshr_b32 %s, %s, 2" % (sr(oTn), sr(oT0)))
        e("s_lshl_b32 %s, %s, 2" % (sr(oTn), sr(oTn)))
        e("s_bfe_u32 %s, %s, 0x20002" % (sr(oT2), sr(oT1)))
        e("s_add_u32 %s, %s, %s" % (sr(oTn), sr(oTn), sr(oT2)))
        e("s_lshr_b32 %s, %s, 4" % (sr(oRole), sr(oT1)))
    else:
        e("s_and_b32 %s, %s, 1" % (sr(oTm), sr(oT0)))
        e("s_lshl_b32 %s, %s, 3" % (sr(oTm), sr(oTm)))
        e("s_and_b32 %s, %s, 7" % (sr(oT2), sr(oT1)))
        e("s_add_u32 %s, %s, %s" % (sr(oTm), sr(oTm), sr(oT2)))
        e("s_bfe_u32 %s, %s, 0x10001" % (sr(oTn), sr(oT0)))
        e("s_lshl_b32 %s, %s, 2" % (sr(oTn), sr(oTn)))
        e("s_lshr_b32 %s, %s, 3" % (sr(oT2), sr(oT1)))
        e("s_add_u32 %s, %s, %s" % (sr(oTn), sr(oTn), sr(oT2)))
        e("s_lshr_b32 %s, %s, 2" % (sr(oRole), sr(oT0)))
    e("s_lshl_b32 %s, %s, 3" % (sr(oTile), sr(oTm)))
    e("s_add_u32 %s, %s, %s" % (sr(oTile), sr(oTile), sr(oTn)))
    e("s_mov_b32 %s, %d" % (sr(SRD_OUT + 2), 2048 * 1024 * 2))
    e("s_lshl_b32 %s, %s, 15" % (sr(oM0), sr(sWave)))
    for tb in range(4):
        e("s_xor_b32 %s, %s, %d" % (sr(oT0), sr(sWave), tb))
        e("s_mul_i32 %s, %s, %d" % (sr(oT0), sr(oT0), 480 * 1024))
        e("v_add_u32 %s, %s, %s" % (vr(vX[tb]), sr(oT0), vr(vLane16)))
    e("v_lshrrev_b32 v32, 4, v0")
    e("v_bfe_u32 v33, v0, 2, 2")
    e("v_xor_b32 v34, v33, v32")
    e("v_and_b32 v35, 3, v0")
    e("v_lshlrev_b32 v36, 11, v32")
    e("v_lshl_add_u32 v36, v34, 6, v36")
    e("v_lshl_add_u32 %s, v35, 4, v36" % vr(vWd3[0]))
    for j in range(1, 4):
        e("v_add_u32 %s, %d, %s" % (vr(vWd3[j]), j * 7168, vr(vWd3[0])))
    e("v_lshrrev_b32 v32, 5, v0")
    e("v_lshl_add_u32 v32, v32, 2, v33")
    e("v_lshlrev_b32 v32, 8, v32")
    e("v_bfe_u32 v34, v0, 4, 1")
    e("v_lshl_add_u32 v32, v34, 5, v32")
    e("v_lshl_add_u32 v32, v35, 3, v32")
    e("v_add_u32 v32, %s, v32" % sr(oM0))
    for nb in range(4):
        e("v_xor_b32 v34, %d, v33" % nb)
        e("v_lshl_add_u32 %s, v34, 6, v32" % vr(vWr3[nb]))
    e("s_mul_i32 %s, %s, %d" % (sr(oXk2), sr(oTm), 4 * 480 * 1024))
    e("s_lshl_b32 %s, %s, 10" % (sr(oT0), sr(sWave)))
    e("s_add_u32 %s, %s, %s" % (sr(oXk2), sr(oXk2), sr(oT0)))
    e("s_add_u32 %s, %s, %d" % (sr(oXk2), sr(oXk2), WS_A3))
    e("s_lshl_b32 %s, %s, 15" % (sr(oWk2), sr(sWave)))
    e("s_lshl_b32 %s, %s, 8" % (sr(oT0), sr(oTn)))
    e("s_add_u32 %s, %s, %s" % (sr(oWk2), sr(oWk2), sr(oT0)))
    e("s_mul_i32 %s, %s, %d" % (sr(oT0), sr(oRole), 4 * 32 * 1024))
    e("s_add_u32 %s, %s, %s" % (sr(oXk), sr(oXk2), sr(oT0)))
    e("s_add_u32 %s, %s, %d" % (sr(oXk), sr(oXk), 256 * 1024))
    e("s_mul_i32 %s, %s, %d" % (sr(oT0), sr(oRole), 4 * 512 * 2048))
    e("s_add_u32 %s, %s, %s" % (sr(oWk), sr(oWk2), sr(oT0)))
    e("s_mul_i32 %s, %s, %d" % (sr(oT0), sr(oRole), 3 * 32 * 1024))
    e("s_add_u32 %s, %s, %s" % (sr(oXk2), sr(oXk2), sr(oT0)))
    e("s_mul_i32 %s, %s, %d" % (sr(oT0), sr(oRole), 3 * 512 * 2048))
    e("s_add_u32 %s, %s, %s" % (sr(oWk2), sr(oWk2), sr(oT0)))
    e("s_add_u32 %s, %s, 6" % (sr(oIter), sr(oRole)))
    e("s_lshl_b32 %s, %s, 1" % (sr(oSw), sr(oRole)))
    e("s_add_u32 %s, %s, 3" % (sr(oSw), sr(oSw)))
    e("s_lshl_b32 %s, %s, 7" % (sr(oC3), sr(oTm)))
    e("s_add_u32 %s, %s, %d" % (sr(oC3), sr(oC3), WS_F3))
    e("s_waitcnt vmcnt(0) lgkmcnt(0)")
    e("s_barrier")
    e("s_mov_b32 %s, %s" % (sr(SRD_W), sr(oWD)))
    e("s_mov_b32 %s, %s" % (sr(SRD_W + 1), sr(oWD + 1)))
    e("s_mov_b32 %s, %d" % (sr(SRD_W + 2), 3584 * 2048))
    e("s_mov_b32 %s, %s" % (sr(SRD_OUT), sr(oOUT)))
    e("s_mov_b32 %s, %s" % (sr(SRD_OUT + 1), sr(oOUT + 1)))
    poll_check(a, vPoll2, SRD_WS, sr(aPl), 64, oT0)
    for i in range(7):
        pre, d, x, post = loads3(i)
        e(pre)
        e("s_nop 0")
        for s in d + x + post:
            e(s)


def part3(a, name):
    e = a.e
    for X in range(2):
        e("s_lshl_b32 %s, %s, 7" % (sr(aThr[X]), sr(aQb[X])))
        e("s_lshl_b32 %s, %s, 2" % (sr(aT1), sr(aHead)))
        e("s_add_u32 %s, %s, %s" % (sr(aThr[X]), sr(aThr[X]), sr(aT1)))
        e("s_add_u32 %s, %s, %s" % (sr(aThr[X]), sr(aThr[X]), sr(sWave)))
        e("s_add_u32 %s, %s, %d" % (sr(aThr[X]), sr(aThr[X]), WS_F3))
    flag_store(a, "byte", 14, "1", SRD_WS, sr(aThr[1]), wave0=False)
    e("s_waitcnt vmcnt(61)")
    for r in wreads3(0, 0):
        e(r)
    step3(a, 0, zero=True, vm=53)
    e("s_branch %s_o1" % name)
    align(a)
    a.label(name + "_oloop")
    stamp_ts(a)
    step3(a, 0)
    a.label(name + "_o1")
    l1_, l2_ = a.newlabel("osw"), a.newlabel("opl")
    e("s_cmp_lg_u32 %s, %s" % (sr(oIter), sr(oSw)))
    e("s_cbranch_scc1 %s" % l1_)
    e("s_waitcnt vmcnt(24)")
    poll_check(a, vPoll3, SRD_WS, sr(oC3), 32, oT0)
    e("s_mov_b32 %s, %s" % (sr(SRD_W), sr(oWO)))
    e("s_mov_b32 %s, %s" % (sr(SRD_W + 1), sr(oWO + 1)))
    e("s_mov_b32 %s, %d" % (sr(SRD_W + 2), 4096 * 2048))
    e("s_mov_b32 %s, %s" % (sr(oXk), sr(oXk2)))
    e("s_mov_b32 %s, %s" % (sr(oWk), sr(oWk2)))
    a.label(l1_)
    for i in range(1, 8):
        step3(a, i)
        if i == 5:
            l3_ = a.newlabel("opi")
            e("s_sub_u32 %s, %s, 1" % (sr(oT0), sr(oIter)))
            e("s_cmp_lg_u32 %s, %s" % (sr(oT0), sr(oSw)))
            e("s_cbranch_scc1 %s" % l3_)
            e(poll_issue(vPoll3, SRD_WS, sr(oC3)))
            a.label(l3_)
    e("s_add_u32 %s, %s, 6" % (sr(oT0), sr(oRole)))
    e("s_cmp_lg_u32 %s, %s" % (sr(oIter), sr(oT0)))
    e("s_cbranch_scc1 %s" % l2_)
    flag_store(a, "byte", 14, "1", SRD_WS, sr(aThr[0]), wave0=False)
    a.label(l2_)
    e("s_sub_u32 %s, %s, 1" % (sr(oIter), sr(oIter)))
    e("s_cmp_lg_u32 %s, 0" % sr(oIter))
    e("s_cbranch_scc1 %s_oloop" % name)
    step3(a, 0)
    for i in range(1, 8):
        step3(a, i, do_load=False, do_read=(i < 7), vm=(52 - 8 * i) if i < 7 else 0)
    stamp_ts(a)
    e("v_add_u32 v2, %s, %s" % (sr(oM0), vr(vLane16)))
    e("s_xor_b32 %s, %s, 0x10000" % (sr(oT1), sr(oM0)))
    e("v_add_u32 v3, %s, %s" % (sr(oT1), vr(vLane16)))
    e("s_xor_b32 %s, %s, 0x8000" % (sr(oT1), sr(oM0)))
    e("v_add_u32 v4, %s, %s" % (sr(oT1), vr(vLane16)))
    e("s_lshl_b32 %s, %s, 16" % (sr(oT1), sr(oTile)))
    e("s_lshl_b32 %s, %s, 14" % (sr(oT2), sr(sWave)))
    e("s_add_u32 %s, %s, %s" % (sr(oT1), sr(oT1), sr(oT2)))
    e("s_add_u32 %s, %s, %d" % (sr(oT1), sr(oT1), WS_P))
    e("s_lshl_b32 %s, %s, 7" % (sr(oT2), sr(oTile)))
    e("s_add_u32 %s, %s, %d" % (sr(oT2), sr(oT2), WS_FP))
    for q in range(32):
        e("ds_write_b128 v2, %s offset:%d" % (ar(aACC + 4 * q, 4), q * 1024))
    e("s_waitcnt lgkmcnt(0)")
    e("s_barrier")
    for half in (1, 0):
        for q in range(16):
            e("ds_read_b128 %s, v3 offset:%d" % (vr(vTMP + 4 * q, 4), (half * 16 + q) * 1024))
        for q in range(16):
            e("s_waitcnt lgkmcnt(%d)" % (15 - q))
            for i in range(0, 4, 2):
                r = vACC + half * 64 + 4 * q + i
                e("v_pk_add_f32 %s, %s, %s" % (vr(r, 2), vr(r, 2), vr(vTMP + 4 * q + i, 2)))
    e("s_barrier")
    for q in range(16):
        e("ds_write_b128 v2, %s offset:%d" % (vr(vACC + 64 + 4 * q, 4), q * 1024))
    e(poll_issue(5, SRD_WS, sr(oT2)))
    e("s_waitcnt lgkmcnt(0)")
    e("s_barrier")
    for q in range(16):
        e("ds_read_b128 %s, v4 offset:%d" % (vr(vTMP + 4 * q, 4), q * 1024))
    for q in range(16):
        e("s_waitcnt lgkmcnt(%d)" % (15 - q))
        for i in range(0, 4, 2):
            r = vACC + 4 * q + i
            e("v_pk_add_f32 %s, %s, %s" % (vr(r, 2), vr(r, 2), vr(vTMP + 4 * q + i, 2)))
    stamp_ts(a)
    e("s_cmp_lg_u32 %s, 0" % sr(oRole))
    e("s_cbranch_scc1 %s_cons" % name)
    for q in range(16):
        if q and q % 4 == 0:
            e("s_add_u32 %s, %s, 4096" % (sr(oT1), sr(oT1)))
        e("buffer_store_dwordx4 %s, %s, %s, %s offen offset:%d sc1" % (vr(vACC + 4 * q, 4), vr(vLane16), sr(SRD_WS, 4), sr(oT1), (q & 3) * 1024))
    e("s_waitcnt vmcnt(0)")
    e("s_barrier")
    flag_store(a, "dword", 5, "0x%x" % ALL1, SRD_WS, sr(oT2))
    e("s_branch %s_fin" % name)
    a.label(name + "_cons")
    e("s_waitcnt vmcnt(0)")
    poll_check(a, 5, SRD_WS, sr(oT2), 1, oT0)
    a.label(name + "_got")
    for q in range(16):
        if q and q % 4 == 0:
            e("s_add_u32 %s, %s, 4096" % (sr(oT1), sr(oT1)))
        e("buffer_load_dwordx4 %s, %s, %s, %s offen offset:%d sc1" % (vr(vTMP + 4 * q, 4), vr(vLane16), sr(SRD_WS, 4), sr(oT1), (q & 3) * 1024))
    e("v_and_b32 v2, 31, v0")
    e("v_lshlrev_b32 v2, 11, v2")
    e("v_lshrrev_b32 v3, 5, v0")
    e("v_lshl_add_u32 v2, v3, 4, v2")
    e("s_lshl_b32 %s, %s, 2" % (sr(oT0), sr(oTm)))
    e("s_add_u32 %s, %s, %s" % (sr(oT0), sr(oT0), sr(sWave)))
    e("s_lshl_b32 %s, %s, 16" % (sr(oT0), sr(oT0)))
    e("s_lshl_b32 %s, %s, 8" % (sr(oT2), sr(oTn)))
    e("s_add_u32 %s, %s, %s" % (sr(oT0), sr(oT0), sr(oT2)))
    for pq in range(8):
        e("s_waitcnt vmcnt(%d)" % (14 - pq))
        r = vACC + 8 * pq
        for i in range(0, 8, 2):
            e("v_pk_add_f32 %s, %s, %s" % (vr(r + i, 2), vr(r + i, 2), vr(vTMP + 8 * pq + i, 2)))
        for i in range(4):
            e("v_cvt_pk_bf16_f32 %s, %s, %s" % (vr(r + i), vr(r + 2 * i), vr(r + 2 * i + 1)))
        e("s_nop 1")
        e("v_permlane32_swap_b32 %s, %s" % (vr(r), vr(r + 2)))
        e("v_permlane32_swap_b32 %s, %s" % (vr(r + 1), vr(r + 3)))
        e("buffer_store_dwordx4 %s, v2, %s, %s offen offset:%d" % (vr(r, 4), sr(SRD_OUT, 4), sr(oT0), pq * 32))
    a.label(name + "_fin")
    stamp_ts(a)


NAME = "gated_mix__compressed_kv_cla__geglu_ffn__prompt_kernel"
HEADER = open('gated_mix__compressed_kv_cla__geglu_ffn__prompt.s.ref').read().split("; Override launch")[0]


def build(opt):
    OPT.clear()
    OPT.update(opt)
    M16HACK[0] = opt.get('m16hack', 0)
    a = Asm()
    kernel_header(a, NAME)
    n = "mk"
    handlers = []
    a.e("s_cmp_ge_u32 s2, 256")
    a.e("s_cbranch_scc1 mk_end")
    part1(a, n, att_prologue)
    part2(a, n, out_prologue, handlers)
    part3(a, n)
    a.label("mk_end")
    a.e("s_endpgm")
    for h in handlers:
        emit_handler(a, *h)
    if opt.get('list', 1):
        out = HEADER + "; @launch kernel=%s grid=(256,1,1) block=(256,1,1) lds=%d\n" % (NAME, LDS)
    else:
        out = HEADER + "; @launch grid=(256,1,1) block=(256,1,1) lds=%d\n" % LDS
    out += '.amdgcn_target "amdgcn-amd-amdhsa--gfx950"\n.text\n' + a.text()
    out += '.section .rodata,"a"\n.p2align 6\n' + kernel_desc(NAME, 512, 102, 256)
    return out


if __name__ == "__main__":
    open(sys.argv[1], "w").write(build(json.loads(sys.argv[2]) if len(sys.argv) > 2 else {}))
```

```python
import sys, json, struct
from asmlib import *

WS_Q = 0
WS_K = 16 << 20
WS_V = 32 << 20
WS_A3 = 48 << 20
WS_G = 80 << 20
WS_P = 81 << 20
WS_STAMP = 128 << 20
WS_SIZE = 268435456
LDS = 163840
WS_F2 = (80 << 20) + 65536
WS_F3 = WS_F2 + 4096
WS_FP = WS_F2 + 8192
WS_F1 = WS_F2 + 32768
ALL1 = 0x01010101

OPT = {}


def f32(x):
    return "0x%08x" % struct.unpack("<I", struct.pack("<f", x))[0]


sPfOff = 3
sPfA, sPfB = 4, 6
sPoll = 7
SRD_DBG, SRD_P = 8, 12
SRD_X, SRD_W, SRD_WS = 44, 48, 52
sWave = 67
sTs = 101
SC = " sc1"


def stamp_ts(a):
    if not OPT.get('ts'):
        return
    l = a.newlabel("ts")
    a.e("s_cmp_lg_u32 %s, 0" % sr(sWave))
    a.e("s_cbranch_scc1 %s" % l)
    a.e("s_memtime vcc")
    a.e("s_waitcnt lgkmcnt(0)")
    a.e("s_mov_b64 exec, 1")
    a.e("v_mov_b32 v30, vcc_lo")
    a.e("v_mov_b32 v31, vcc_hi")
    a.e("s_memrealtime vcc")
    a.e("buffer_store_dwordx2 v[30:31], off, %s, %s" % (sr(SRD_WS, 4), sr(sTs)))
    a.e("s_waitcnt lgkmcnt(0)")
    a.e("v_mov_b32 v30, vcc_lo")
    a.e("v_mov_b32 v31, vcc_hi")
    a.e("buffer_store_dwordx2 v[30:31], off, %s, %s offset:8" % (sr(SRD_WS, 4), sr(sTs)))
    a.e("s_add_u32 %s, %s, 16" % (sr(sTs), sr(sTs)))
    a.e("s_mov_b64 exec, -1")
    a.label(l)


vFl4 = 29


def poll_issue(vdst, srd, soff):
    return "buffer_load_dword %s, %s, %s, %s offen sc1" % (vr(vdst), vr(vFl4), sr(srd, 4), soff)


def poll_check(a, vdst, srd, soff, lanes, tmp, val=ALL1, masked=False, fail=None):
    ok = a.newlabel("pok")
    sp = a.newlabel("pspin")

    def test():
        if masked:
            a.e("v_and_b32 v30, %s, %s" % (sr(sPoll), vr(vdst)))
            a.e("v_cmp_ne_u32 vcc, %s, v30" % sr(sPoll))
        else:
            a.e("v_cmp_ne_u32 vcc, %s, %s" % (sr(sPoll), vr(vdst)))
        if lanes == 64:
            a.e("s_nop 1")
            a.e("s_cmp_eq_u64 vcc, 0")
        elif lanes == 32:
            a.e("s_nop 1")
            a.e("s_cmp_eq_u32 vcc_lo, 0")
        elif lanes == 16:
            a.e("s_nop 1")
            a.e("s_and_b32 vcc_lo, vcc_lo, 0xffff")
            a.e("s_cmp_eq_u32 vcc_lo, 0")
        else:
            a.e("s_nop 1")
            a.e("s_bitcmp0_b32 vcc_lo, 0")
    a.e("s_mov_b32 %s, 0x%x" % (sr(sPoll), val))
    a.e("s_mov_b32 %s, 0x40000" % sr(tmp))
    test()
    if fail:
        a.e("s_cbranch_scc0 %s" % fail)
        return
    a.e("s_cbranch_scc1 %s" % ok)
    a.label(sp)
    a.e("s_sleep 8")
    a.e(poll_issue(vdst, srd, soff))
    a.e("s_sub_u32 %s, %s, 1" % (sr(tmp), sr(tmp)))
    a.e("s_cmp_eq_u32 %s, 0" % sr(tmp))
    a.e("s_cbranch_scc1 %s" % ok)
    a.e("s_waitcnt vmcnt(0)")
    test()
    a.e("s_cbranch_scc0 %s" % sp)
    a.label(ok)


def flag_store(a, kind, vtmp, val, srd, soff, wave0=True):
    l = a.newlabel("fs")
    if wave0:
        a.e("s_cmp_lg_u32 %s, 0" % sr(sWave))
        a.e("s_cbranch_scc1 %s" % l)
    a.e("v_mov_b32 %s, %s" % (vr(vtmp), val))
    a.e("s_mov_b64 exec, 1")
    a.e("buffer_store_%s %s, off, %s, %s sc1" % (kind, vr(vtmp), sr(srd, 4), soff))
    a.e("s_mov_b64 exec, -1")
    a.label(l)


S_X, S_CKV, S_WQ, S_WUK, S_WUV, S_WO, S_BX, S_WG, S_WU, S_WD, S_GW, S_OUT, S_DBG, S_WS = [16 + 2 * i for i in range(14)]
sXk, sXk2, sWk, sWstep, sXrow32 = 56, 57, 58, 59, 60
sXdst, sXbeg, sXend = 61, 62, 63
sWm0a, sWm0b = 64, 65
sIter, sJob = 66, 68
sTm, sTn8, sTn7 = 69, 70, 71
sRslot, sDelta, sCp, sCm = 72, 73, 74, 75
sT0, sT1, sT2, sT3 = 76, 77, 78, 79
sOb = 80
sNXlo, sNXhi, sNXn, sNXk, sNXrow32 = 81, 82, 83, 84, 85
sNWlo, sNWhi, sNWn, sNWk, sNWstep, sNm0a, sNm0b = 86, 87, 88, 89, 90, 91, 92
sCA, sCC = 94, 96
sGm0a, sGm0b, sGoff = 98, 99, 100

vXr = [1, 2]
vXdl = [3, 4]
vWr8 = [5, 6, 7, 8]
vWr7 = 9
vXd = [10, 11, 12, 13]
vWd = [14, 15, 16, 17]
vXdN = [18, 19, 20, 21]
vWdN = [22, 23, 24, 25]
vSt = 26
vPf, vPfD = 27, 28
ACC0 = 32
XBASE = 65536


def accq(q):
    if q < 56:
        return ('v', ACC0 + 4 * q)
    return ('a', 4 * (q - 56))


def fragX(xs, tb):
    return 32 + xs * 16 + 4 * tb


def fragW(h, nbl):
    return 64 + h * 32 + 4 * nbl


def mfmas(kind, half, xs, zero=False):
    NBH = 7 if kind == 'G' else 8
    out = []
    for nbl in range(NBH):
        for tb in range(4):
            d = reg(accq((half * NBH + nbl) * 4 + tb), 4)
            w = ar(fragW(half, nbl), 4)
            x = ar(fragX(xs, tb), 4)
            A, B = (x, w) if kind == 'V' else (w, x)
            out.append("v_mfma_f32_16x16x32_bf16 %s, %s, %s, %s" % (d, A, B, "0" if zero else d))
    return out


def reads(kind, p, half):
    slot = p % 4
    pp = p & 1
    out = []
    if half == 0:
        for tb in range(4):
            addr, off = vXr[pp], tb * 2048
            out.append("ds_read_b128 %s, %s offset:%d" % (ar(fragX(pp, tb), 4), vr(addr), off))
    NBH = 7 if kind == 'G' else 8
    for nbl in range(NBH):
        for t in range(2):
            if kind == 'G':
                addr = vWr7
                off = slot * 16384 + half * 7296 + 4 * t * 224 + nbl * 32
            else:
                addr = vWr8[(nbl >> 1) & 3]
                off = slot * 16384 + t * 2048 + half * 256 + (nbl & 1) * 32
            out.append("ds_read_b64_tr_b16 %s, %s offset:%d" % (ar(fragW(half, nbl) + 2 * t, 2), vr(addr), off))
    return out


def dmaW(slot):
    g = []
    for j in range(4):
        l = []
        if j == 0:
            l.append("s_add_u32 m0, %s, %d" % (sr(sWm0a), slot * 16384))
        if j == 3:
            l.append("s_add_u32 m0, %s, %d" % (sr(sWm0b), slot * 16384))
        l.append(("DMA", "buffer_load_dwordx4 %s, %s, %s offen offset:%d lds" % (vr(vWd[j]), sr(SRD_W, 4), sr(sWk), j * 1024)))
        g.append(l)
    g[3].append("s_add_u32 %s, %s, %s" % (sr(sWk), sr(sWk), sr(sWstep)))
    return g


def dmaX(half):
    g = []
    for j in range(4):
        l = []
        if j == 0:
            if half == 0:
                l.append("s_mov_b32 m0, %s" % sr(sXdst))
            else:
                l.append("s_add_u32 m0, %s, 4096" % sr(sXdst))
        l.append(("DMA", "buffer_load_dwordx4 %s, %s, %s offen offset:%d lds" % (
            vr(vXd[j]), sr(SRD_X, 4), sr(sXk if half == 0 else sXk2), j * 1024)))
        g.append(l)
    if half == 0:
        g[3].append("s_add_u32 %s, %s, %s" % (sr(sXk2), sr(sXk), sr(sXrow32)))
        g[3].append("s_add_u32 %s, %s, 128" % (sr(sXk), sr(sXk)))
    else:
        g[3].append("s_add_u32 %s, %s, 8192" % (sr(sXdst), sr(sXdst)))
        g[3].append("s_cmp_eq_u32 %s, %s" % (sr(sXdst), sr(sXend)))
        g[3].append("s_cselect_b32 %s, %s, %s" % (sr(sXdst), sr(sXbeg), sr(sXdst)))
    return g


def flat_dma(groups):
    out = []
    for l in groups:
        prev_m0 = False
        for s in l:
            if isinstance(s, tuple):
                if prev_m0:
                    out.append("s_nop 0")
                out.append(s[1])
                prev_m0 = False
            else:
                out.append(s)
                prev_m0 = " m0," in s
    return out


def group(a, kind_m, half, xs, zero, rd, dma, extra=None, flex=None):
    m = mfmas(kind_m, half, xs, zero) if kind_m else []
    n = len(m)
    fill = {g: [] for g in range(n)}
    if n == 0:
        for r in rd:
            a.e(r)
        for x in flat_dma(dma):
            a.e(x)
        return
    for i, r in enumerate(rd):
        fill[i].append(r)
    pos = n - OPT.get('dpos', 20)
    for l in dma:
        pre, post, seen = [], [], False
        for sx in l:
            if isinstance(sx, tuple):
                seen = True
                post.append(sx[1])
            elif not seen:
                pre.append(sx)
            else:
                post.append(sx)
        if pre:
            fill[pos - 1].extend(pre)
        fill[pos].append(post[0])
        if post[1:]:
            fill[pos + 1].extend(post[1:])
        pos += 4
    for gi, xs_ in (extra or []):
        if gi < 0:
            gi += n
        fill[gi].extend(xs_)
    fl = list(flex or [])
    slots = [g for g in range(n - 1) if len(fill[g]) == 0] + [g for g in range(n - 1) if len(fill[g]) <= 1]
    slots = sorted(slots[:len(fl)])
    assert len(slots) == len(fl)
    for g, x in zip(slots, fl):
        fill[g].append(x)
    interleave(a, m, fill)


SRD_ST = 40
sStA, sStB, sStD, sStE = 26, 27, 28, 29
STASH = 128
ST_IMM = [0, 1024, 2048, 3072]


def st_moves(p):
    out = []
    for lvl in range(3):
        for c in range(8 * p, 8 * p + 8):
            out.append("v_accvgpr_mov_b32 %s, %s" % (ar(STASH + 32 * lvl + c), ar(STASH + 32 * (lvl + 1) + c)))
    return out


def st_stores(p):
    out = []
    for x in range(2):
        i = 2 * p + x
        out.append("buffer_store_dwordx4 %s, %s, %s, %s offen offset:%d%s" % (
            ar(STASH + 4 * i, 4), vr(vSt), sr(SRD_WS, 4), sr(sStA if i < 4 else sStB), ST_IMM[i & 3], SC))
    return out


def st_advance():
    return ["s_add_u32 %s, %s, %s" % (sr(sStA), sr(sStA), sr(sStD)),
            "s_add_u32 %s, %s, 4096" % (sr(sStB), sr(sStA)),
            "s_xor_b32 %s, %s, %d" % (sr(sStD), sr(sStD), 8192 ^ (524288 - 8192))]


def xr_update(s):
    return "v_add_u32 %s, %s, %s" % (vr(vXr[s]), sr(sDelta), vr(vXr[s]))


def delta_update():
    return ["s_add_u32 %s, %s, 1" % (sr(sRslot), sr(sRslot)),
            "s_cmp_eq_u32 %s, 3" % sr(sRslot),
            "s_cselect_b32 %s, %s, %s" % (sr(sDelta), sr(sCm), sr(sCp)),
            "s_cselect_b32 %s, 0, %s" % (sr(sRslot), sr(sRslot))]


def pf_setup():
    lst = sPfA
    return [
        "s_and_b32 %s, %s, 15" % (sr(sT2), sr(lst)),
        "s_lshl_b32 %s, %s, 3" % (sr(sT2), sr(sT2)),
        "s_load_dwordx2 %s, s[0:1], %s" % (sr(SRD_P, 2), sr(sT2)),
        "s_bfe_u32 %s, %s, 0x40004" % (sr(sT3), sr(lst)),
        "s_cmp_eq_u32 %s, 15" % sr(sT3),
        "s_cselect_b32 %s, 0, -1" % sr(sPfB),
        "s_lshl_b32 %s, %s, 20" % (sr(sT3), sr(sT3)),
        "s_add_u32 %s, %s, %s" % (sr(sT3), sr(sT3), sr(sPfOff)),
        "s_lshr_b64 %s, %s, 8" % (sr(lst, 2), sr(lst, 2)),
        "s_or_b32 %s, %s, 0xf0000000" % (sr(lst + 1), sr(lst + 1)),
    ]


def pf_load():
    return "buffer_load_dword %s, %s, %s, %s offen" % (vr(vPfD), vr(vPf), sr(SRD_P, 4), sr(sT3))


def pf_lists(a, A):
    v = 0
    for i in range(8):
        sl, mb = A[i] if i < len(A) else (0, 15)
        v |= (sl | (mb << 4)) << (8 * i)
    a.e("s_mov_b32 %s, 0x%x" % (sr(sPfA), v & 0xffffffff))
    a.e("s_mov_b32 %s, 0x%x" % (sr(sPfA + 1), v >> 32))


def switchX(a):
    for d, s in ((SRD_X, sNXlo), (SRD_X + 1, sNXhi), (SRD_X + 2, sNXn), (sXk, sNXk), (sXrow32, sNXrow32)):
        a.e("s_mov_b32 %s, %s" % (sr(d), sr(s)))


def switchW(a):
    for d, s in ((SRD_W, sNWlo), (SRD_W + 1, sNWhi), (SRD_W + 2, sNWn), (sWk, sNWk), (sWstep, sNWstep), (sWm0a, sNm0a), (sWm0b, sNm0b)):
        a.e("s_mov_b32 %s, %s" % (sr(d), sr(s)))


def nwait(st, pf):
    tail = (2 if st else 0) + (1 if pf else 0)
    return tail + 2 * (8 + tail)


def interval(a, kind, p, half='both', kindA=None, zero=False, st=False, pf=False, vm=None, pre=None):
    mv = st_moves((p - 1) % 4) if st and not (zero and p == 0) else []
    if half in ('both', 'A'):
        a.e("s_waitcnt vmcnt(%d) lgkmcnt(0)" % (nwait(st, pf) if vm is None else vm))
        a.e("s_barrier")
        for x in (pre or []):
            a.e(x)
        ka = kind if kindA is None else kindA
        ex = []
        if ka == 'none':
            ka = None
        if p == 1 and pf:
            ps = pf_setup()
            ex += [(-7, ps[0:2]), (-6, ps[2:4]), (-5, ps[4:6]), (-3, ps[6:8]), (-2, ps[8:10])]
        if p == 0 and st:
            sa = st_advance()
            ex += [(-7, sa[0:2]), (-6, sa[2:3])]
        if p & 1:
            du = delta_update()
            ex += [(-11, du[0:1]), (-10, du[1:4]), (-4, [xr_update(0), xr_update(1)])]
        group(a, ka, 1, (p - 1) & 1, zero, reads(kind, p, 0), dmaW((p + 3) % 4), ex, mv[:8])
    if half in ('both', 'B'):
        a.e("s_waitcnt lgkmcnt(0)")
        ex = []
        if pf:
            ex.append((-10, ["s_cmp_eq_u32 %s, %d" % (sr(sWave), p), "s_cselect_b32 %s, %s, 0" % (sr(SRD_P + 2), sr(sPfB))]))
        if st:
            ss = st_stores(p)
            ex += [(-6, [ss[0]]), (-4, [ss[1]])]
        if pf:
            ex.append((-3, [pf_load()]))
        group(a, kind, 0, p & 1, zero, reads(kind, p, 1), dmaX(p & 1), ex, mv[8:])


def align(a):
    if OPT.get('align', 1):
        a.raw(".p2align 6")


def loop(a, kind, name, vswitch, hook=None, st=False, pf=False, last=1, switch=True, hook3=None):
    align(a)
    a.label(name + "_top")
    interval(a, kind, 0, 'A', st=st, pf=pf)
    if hook:
        hook(a)
    if switch:
        a.e("s_cmp_lg_u32 %s, 1" % sr(sIter))
        a.e("s_cbranch_scc1 %s_nsx" % name)
        switchX(a)
        vswitch(a, 'X')
        a.label(name + "_nsx")
    interval(a, kind, 0, 'B', st=st, pf=pf)
    stamp_ts(a)
    if switch:
        a.e("s_cmp_lg_u32 %s, 1" % sr(sIter))
        a.e("s_cbranch_scc1 %s_nsw" % name)
        switchW(a)
        vswitch(a, 'W')
        a.label(name + "_nsw")
    interval(a, kind, 1, 'A', st=st, pf=pf)
    a.label(name + "_entry")
    interval(a, kind, 1, 'B', st=st, pf=pf)
    interval(a, kind, 2, st=st, pf=pf)
    if hook3:
        hook3(a)
    interval(a, kind, 3, st=st, pf=pf)
    a.e("s_sub_u32 %s, %s, 1" % (sr(sIter), sr(sIter)))
    a.e("s_cmp_lg_u32 %s, %d" % (sr(sIter), last - 1))
    a.e("s_cbranch_scc1 %s_top" % name)


def job_start(a, kind, name, st, pf):
    interval(a, kind, 0, 'B', zero=True, st=st, pf=pf)
    stamp_ts(a)
    interval(a, kind, 1, 'A', zero=True, st=st, pf=pf, vm=19)
    a.e("s_branch %s_entry" % name)


def epilogue_kqv(a, kind, scale=None):
    e = a.e
    e("s_mov_b32 %s, %s" % (sr(sStA), sr(sOb)))
    e("s_add_u32 %s, %s, 4096" % (sr(sStB), sr(sOb)))
    e("s_mov_b32 %s, 8192" % sr(sStD))
    e("s_mov_b32 %s, 0" % sr(SRD_P + 2))
    for i in range(4):
        e(pf_load())
    chunks = []
    if kind == 'V':
        for db in range(8):
            for tb in range(4):
                sq = 8 * ((db >> 2) * 2 + (tb >> 1)) + (tb & 1) * 4 + (db & 3)
                chunks.append((2 * db * 4 + tb, (2 * db + 1) * 4 + tb, sq))
    else:
        for nb in range(16):
            for a2 in range(2):
                sq = 8 * ((nb >> 3) * 2 + a2) + (nb & 7)
                chunks.append((nb * 4 + 2 * a2, nb * 4 + 2 * a2 + 1, sq))
    pend = []
    for q0, q1, sq in chunks:
        rs = []
        for n_, q in enumerate((q0, q1)):
            k, r = accq(q)
            if k == 'a':
                rv = ACC0 + 4 * (q - 56)
                for i in range(4):
                    e("v_accvgpr_read_b32 %s, %s" % (vr(rv + i), ar(r + i)))
                r = rv
            rs.append(r)
        if scale is not None:
            for r in rs:
                for i in (0, 2):
                    e("v_pk_mul_f32 %s, %s, %s" % (vr(r + i, 2), vr(r + i, 2), sr(scale, 2)))
        for r in rs:
            for i in range(2):
                e("v_cvt_pk_bf16_f32 %s, %s, %s" % (vr(r + i), vr(r + 2 * i), vr(r + 2 * i + 1)))
        for x in pend:
            e(x)
        pend = ["v_permlane16_swap_b32 %s, %s" % (vr(rs[0] + i), vr(rs[1] + i)) for i in range(2)]
        for n_, r in enumerate(rs):
            for i in range(2):
                pend.append("v_accvgpr_write_b32 %s, %s" % (ar(STASH + 4 * sq + 2 * n_ + i), vr(r + i)))
    e("s_nop 1")
    for x in pend:
        e(x)


vG1 = [20, 21, 22, 23]


def epilogue_gu(a):
    e = a.e
    A = -2.0 * 1.4426950408889634 * 0.7978845608028654
    B = A * 0.044715
    e("s_mov_b32 %s, %s" % (sr(sCC), f32(B)))
    e("s_mov_b32 %s, %s" % (sr(sCC + 1), f32(B)))
    e("v_mov_b32 v10, %s" % f32(A))
    e("v_mov_b32 v11, %s" % f32(A))
    first = True
    pend = []
    for fb in range(7):
        for a2 in range(2):
            wk = [(fb, 2 * a2), (fb, 2 * a2 + 1)]
            G = [accq(f_ * 4 + tb)[1] for f_, tb in wk]
            U = [accq(28 + f_ * 4 + tb)[1] for f_, tb in wk]
            prs = [(G[0], U[0], 12, wk[0][1]), (G[0] + 2, U[0] + 2, 14, wk[0][1]), (G[1], U[1], 16, wk[1][1]), (G[1] + 2, U[1] + 2, 18, wk[1][1])]
            for g, u, t, tb in prs:
                e("v_pk_mul_f32 %s, %s, %s" % (vr(t, 2), vr(g, 2), vr(g, 2)))
            for x in pend:
                e(x)
            for g, u, t, tb in prs:
                e("v_pk_fma_f32 %s, %s, %s, v[10:11]" % (vr(t, 2), vr(t, 2), sr(sCC, 2)))
            for g, u, t, tb in prs:
                e("v_pk_mul_f32 %s, %s, %s" % (vr(t, 2), vr(t, 2), vr(g, 2)))
            for i in range(8):
                e("v_exp_f32 %s, %s" % (vr(12 + i), vr(12 + i)))
            for g, u, t, tb in prs:
                e("v_pk_mul_f32 %s, %s, %s" % (vr(g, 2), vr(g, 2), vr(u, 2)))
            if first:
                first = False
                e("s_waitcnt vmcnt(%d)" % ATT_PRO_LOADS)
                for t2 in range(4):
                    e("v_sub_f32 %s, 1.0, %s" % (vr(vG1[t2]), vr(vG1[t2])))
                    e("v_max_f32 %s, %s, %s" % (vr(vG1[t2]), f32(1e-30), vr(vG1[t2])))
                    e("v_rcp_f32 %s, %s" % (vr(vG1[t2]), vr(vG1[t2])))
                e("s_nop 0")
            for g, u, t, tb in prs:
                gp = vG1[tb] & ~1
                hi = vG1[tb] & 1
                e("v_pk_fma_f32 %s, %s, %s, %s op_sel:[0,%d,%d] op_sel_hi:[1,%d,%d]" % (vr(t, 2), vr(t, 2), vr(gp, 2), vr(gp, 2), hi, hi, hi, hi))
            for i in range(8):
                e("v_rcp_f32 %s, %s" % (vr(12 + i), vr(12 + i)))
            o = a2 * 480 * 1024 + fb * 1024
            e("s_nop 0")
            for g, u, t, tb in prs:
                e("v_pk_mul_f32 %s, %s, %s" % (vr(g, 2), vr(g, 2), vr(t, 2)))
            d = U[0]
            for n_, (g, u, t, tb) in enumerate(prs):
                e("v_cvt_pk_bf16_f32 %s, %s, %s" % (vr(d + n_), vr(g), vr(g + 1)))
            pend = ["s_add_u32 %s, %s, %d" % (sr(sT0), sr(sOb), o & ~4095),
                    "v_permlane16_swap_b32 %s, %s" % (vr(d), vr(d + 2)),
                    "v_permlane16_swap_b32 %s, %s" % (vr(d + 1), vr(d + 3)),
                    "buffer_store_dwordx4 %s, %s, %s, %s offen offset:%d%s" % (vr(d, 4), vr(vSt), sr(SRD_WS, 4), sr(sT0), o & 4095, SC)]
    e("s_nop 0")
    for x in pend:
        e(x)


N_H_STORES = 14


def decode_att(a, dhead, dpair, t0, t1):
    e = a.e
    e("s_and_b32 %s, s2, 7" % sr(t0))
    e("s_lshr_b32 %s, s2, 3" % sr(t1))
    if OPT.get('amap', 1):
        e("s_lshl_b32 %s, %s, 2" % (sr(dhead), sr(t0)))
        e("s_bfe_u32 %s, %s, 0x20002" % (sr(t0), sr(t1)))
        e("s_add_u32 %s, %s, %s" % (sr(dhead), sr(dhead), sr(t0)))
        e("s_and_b32 %s, %s, 3" % (sr(dpair), sr(t1)))
        e("s_lshr_b32 %s, %s, 4" % (sr(t1), sr(t1)))
        e("s_lshl_b32 %s, %s, 2" % (sr(t1), sr(t1)))
        e("s_add_u32 %s, %s, %s" % (sr(dpair), sr(dpair), sr(t1)))
    else:
        e("s_and_b32 %s, %s, 7" % (sr(dpair), sr(t1)))
        e("s_lshr_b32 %s, %s, 3" % (sr(t1), sr(t1)))
        e("s_lshl_b32 %s, %s, 2" % (sr(dhead), sr(t0)))
        e("s_add_u32 %s, %s, %s" % (sr(dhead), sr(dhead), sr(t1)))


sF1w, sF1r = 93, 34


def part1(a, name, att_prologue):
    e = a.e
    e("s_load_dwordx16 s[16:31], s[0:1], 0")
    e("s_load_dwordx8 s[32:39], s[0:1], 64")
    e("s_load_dwordx4 s[40:43], s[0:1], 96")
    e("v_lshrrev_b32 v27, 6, v0")
    e("v_and_b32 v0, 63, v0")
    e("v_readfirstlane_b32 %s, v27" % sr(sWave))
    e("v_lshlrev_b32 %s, 2, v0" % vr(vFl4))
    e("s_and_b32 %s, s2, 7" % sr(sT0))
    e("s_lshr_b32 %s, s2, 3" % sr(sT1))
    e("s_and_b32 %s, %s, 1" % (sr(sT2), sr(sT0)))
    e("s_lshl_b32 %s, %s, 2" % (sr(sT2), sr(sT2)))
    e("s_and_b32 %s, %s, 3" % (sr(sT3), sr(sT1)))
    e("s_add_u32 %s, %s, %s" % (sr(sTm), sr(sT2), sr(sT3)))
    e("s_lshr_b32 %s, %s, 1" % (sr(sT0), sr(sT0)))
    e("s_lshr_b32 %s, %s, 2" % (sr(sT2), sr(sT1)))
    e("s_lshl_b32 %s, %s, 3" % (sr(sT3), sr(sT0)))
    e("s_add_u32 %s, %s, %s" % (sr(sTn7), sr(sT3), sr(sT2)))
    e("s_and_b32 %s, %s, 3" % (sr(sT2), sr(sT2)))
    e("s_lshl_b32 %s, %s, 2" % (sr(sT3), sr(sT0)))
    e("s_add_u32 %s, %s, %s" % (sr(sTn8), sr(sT3), sr(sT2)))
    e("s_lshr_b32 %s, %s, 4" % (sr(sJob), sr(sT1)))
    for s in (SRD_X, SRD_W, SRD_WS, SRD_DBG, SRD_P):
        e("s_mov_b32 %s, 0x20000" % sr(s + 3))
    e("s_mov_b32 %s, %d" % (sr(SRD_WS + 2), WS_SIZE))
    e("s_mov_b32 %s, 256" % sr(SRD_DBG + 2))
    e("s_mov_b32 %s, 8192" % sr(sCp))
    e("s_mov_b32 %s, -16384" % sr(sCm))
    e("s_mov_b32 %s, 0" % sr(sRslot))
    e("s_mul_i32 %s, %s, 24576" % (sr(sXbeg), sr(sWave)))
    e("s_add_u32 %s, %s, %d" % (sr(sXbeg), sr(sXbeg), XBASE))
    e("s_add_u32 %s, %s, 24576" % (sr(sXend), sr(sXbeg)))
    e("s_mov_b32 %s, %s" % (sr(sXdst), sr(sXbeg)))
    T0, T1, T2, T3, T4 = 27, 28, 30, 31, 26
    e("v_lshrrev_b32 v%d, 3, v0" % T0)
    e("s_lshl_b32 %s, %s, 6" % (sr(sT0), sr(sWave)))
    e("v_add_u32 v%d, %s, v%d" % (T0, sr(sT0), T0))
    e("v_and_b32 v%d, 7, v0" % T1)
    e("v_lshrrev_b32 v%d, 4, v0" % T4)
    e("v_xor_b32 v%d, v%d, v%d" % (T1, T1, T4))
    e("v_xor_b32 v%d, 4, v%d" % (T4, T1))
    e("s_movk_i32 %s, 11" % sr(sT1))
    e("s_sub_u32 %s, %s, %s" % (sr(sT1), sr(sT1), sr(sJob)))
    for j in range(4):
        ch = T1 if (j & 1) == 0 else T4
        e("v_add_u32 v%d, %d, v%d" % (T2, 8 * j, T0))
        e("v_lshlrev_b32 v%d, 11, v%d" % (T3, T2))
        e("v_lshl_add_u32 v%d, v%d, 4, v%d" % (T3, ch, T3))
        e("v_subrev_u32 %s, %d, v%d" % (vr(vXdN[j]), 1024 * j, T3))
        e("v_lshlrev_b32 v%d, %s, v%d" % (T3, sr(sT1), T2))
        e("v_lshl_add_u32 v%d, v%d, 4, v%d" % (T3, ch, T3))
        e("v_subrev_u32 %s, %d, v%d" % (vr(vXd[j]), 1024 * j, T3))
    e("v_lshrrev_b32 v%d, 5, v0" % T0)
    e("s_lshl_b32 %s, %s, 3" % (sr(sT0), sr(sWave)))
    e("v_bfe_u32 v%d, v0, 2, 3" % T1)
    e("v_and_b32 v%d, 3, v0" % T4)
    e("v_lshlrev_b32 v%d, 4, v%d" % (T4, T4))
    for j in range(4):
        e("v_add_u32 v%d, %d, v%d" % (T2, 2 * j, T0))
        e("v_and_b32 v%d, 3, v%d" % (T3, T2))
        e("v_xor_b32 v%d, v%d, v%d" % (T3, T3, T1))
        e("v_add_u32 v%d, %s, v%d" % (T2, sr(sT0), T2))
        e("v_lshlrev_b32 v%d, 13, v%d" % (T2, T2))
        e("v_lshl_add_u32 v%d, v%d, 6, v%d" % (T2, T3, T2))
        e("v_add_u32 v%d, v%d, v%d" % (T2, T2, T4))
        e("v_subrev_u32 %s, %d, v%d" % (vr(vWd[j]), 1024 * j, T2))
    e("s_lshl_b32 %s, %s, 12" % (sr(sWm0a), sr(sWave)))
    e("s_mov_b32 %s, %s" % (sr(sWm0b), sr(sWm0a)))
    e("s_waitcnt lgkmcnt(0)")
    e("s_mov_b32 %s, %s" % (sr(SRD_WS), sr(S_WS)))
    e("s_mov_b32 %s, %s" % (sr(SRD_WS + 1), sr(S_WS + 1)))
    e("s_mov_b32 %s, %s" % (sr(SRD_DBG), sr(S_DBG)))
    e("s_mov_b32 %s, %s" % (sr(SRD_DBG + 1), sr(S_DBG + 1)))
    if OPT.get('ts'):
        e("s_lshl_b32 %s, s2, 11" % sr(sTs))
        e("s_add_u32 %s, %s, %d" % (sr(sTs), sr(sTs), WS_STAMP))
    stamp_ts(a)
    e("s_cmp_eq_u32 %s, 0" % sr(sJob))
    e("s_cselect_b32 %s, %s, %s" % (sr(SRD_X), sr(S_X), sr(S_CKV)))
    e("s_cselect_b32 %s, %s, %s" % (sr(SRD_X + 1), sr(S_X + 1), sr(S_CKV + 1)))
    e("s_cselect_b32 %s, %s, %s" % (sr(SRD_W), sr(S_WQ), sr(S_WUK)))
    e("s_cselect_b32 %s, %s, %s" % (sr(SRD_W + 1), sr(S_WQ + 1), sr(S_WUK + 1)))
    e("s_cselect_b32 %s, 8, 4" % sr(sIter))
    e("s_lshr_b32 %s, %d, %s" % (sr(SRD_X + 2), 2048 * 1024 * 2, sr(sJob)))
    e("s_lshr_b32 %s, %d, %s" % (sr(SRD_W + 2), 1024 * 4096 * 2, sr(sJob)))
    e("s_lshl_b32 %s, %s, 19" % (sr(sXk), sr(sTm)))
    e("s_lshr_b32 %s, %s, %s" % (sr(sXk), sr(sXk), sr(sJob)))
    e("s_lshr_b32 %s, 65536, %s" % (sr(sXrow32), sr(sJob)))
    e("s_lshl_b32 %s, %s, 9" % (sr(sWk), sr(sTn8)))
    e("s_mov_b32 %s, %d" % (sr(sWstep), 32 * 8192))
    e("s_mov_b32 %s, %s" % (sr(SRD_P), sr(S_X)))
    e("s_mov_b32 %s, %s" % (sr(SRD_P + 1), sr(S_X + 1)))
    e("s_mov_b32 %s, %d" % (sr(SRD_P + 2), 2048 * 1024 * 2))
    e("s_lshl_b32 %s, s2, 3" % sr(sT0))
    e("s_lshl_b32 %s, %s, 1" % (sr(sT1), sr(sWave)))
    e("s_add_u32 %s, %s, %s" % (sr(sT0), sr(sT0), sr(sT1)))
    e("s_lshl_b32 %s, %s, 11" % (sr(sT1), sr(sT0)))
    e("v_lshlrev_b32 v27, 5, v0")
    e("buffer_load_dwordx4 v[32:35], v27, %s, %s offen" % (sr(SRD_P, 4), sr(sT1)))
    e("buffer_load_dwordx4 v[36:39], v27, %s, %s offen offset:16" % (sr(SRD_P, 4), sr(sT1)))
    e("buffer_load_dwordx4 v[40:43], v27, %s, %s offen offset:2048" % (sr(SRD_P, 4), sr(sT1)))
    e("buffer_load_dwordx4 v[44:47], v27, %s, %s offen offset:2064" % (sr(SRD_P, 4), sr(sT1)))
    e("s_mov_b32 %s, %s" % (sr(SRD_P), sr(S_GW)))
    e("s_mov_b32 %s, %s" % (sr(SRD_P + 1), sr(S_GW + 1)))
    e("s_mov_b32 %s, 2048" % sr(SRD_P + 2))
    e("buffer_load_dwordx4 v[48:51], v27, %s, 0 offen" % sr(SRD_P, 4))
    e("buffer_load_dwordx4 v[52:55], v27, %s, 0 offen offset:16" % sr(SRD_P, 4))
    e("s_lshl_b32 %s, %s, 2" % (sr(sGoff), sr(sT0)))
    e("s_add_u32 %s, %s, %d" % (sr(sGoff), sr(sGoff), WS_G))
    for x in flat_dma(dmaW(0)) + flat_dma(dmaX(0)) + flat_dma(dmaX(1)) + flat_dma(dmaW(1)) + \
            flat_dma(dmaX(0)) + flat_dma(dmaW(2)) + flat_dma(dmaX(1)):
        e(x)
    e("v_and_b32 v%d, 15, v0" % T0)
    e("v_lshrrev_b32 v%d, 4, v0" % T1)
    e("v_lshrrev_b32 v%d, 1, v%d" % (T4, T0))
    e("v_lshlrev_b32 v%d, 7, v%d" % (T2, T0))
    e("v_add_u32 v%d, %s, v%d" % (T2, sr(sXbeg), T2))
    for s_ in range(2):
        e("v_add_u32 v%d, %d, v%d" % (T3, 4 * s_, T1))
        e("v_xor_b32 v%d, v%d, v%d" % (T3, T3, T4))
        e("v_lshl_add_u32 %s, v%d, 4, v%d" % (vr(vXr[s_]), T3, T2))
    e("v_and_b32 v%d, 3, v%d" % (T2, T0))
    e("v_bfe_u32 v%d, v%d, 2, 1" % (T3, T0))
    e("v_lshl_add_u32 v%d, v%d, 3, v%d" % (T2, T3, T2))
    e("v_bfe_u32 v%d, v%d, 3, 1" % (T3, T0))
    e("v_lshl_add_u32 v%d, v%d, 2, v%d" % (T2, T3, T2))
    e("v_lshrrev_b32 v%d, 1, v%d" % (T4, T2))
    e("v_lshlrev_b32 v%d, 7, v%d" % (T2, T2))
    e("v_add_u32 v%d, %s, v%d" % (T2, sr(sXbeg), T2))
    for s_ in range(2):
        e("v_add_u32 v%d, %d, v%d" % (T3, 4 * s_, T1))
        e("v_xor_b32 v%d, v%d, v%d" % (T3, T3, T4))
        e("v_lshl_add_u32 v%d, v%d, 4, v%d" % (T3, T3, T2))
        e("v_sub_u32 %s, v%d, %s" % (vr(vXdl[s_]), T3, vr(vXr[s_])))
    e("v_bfe_u32 v%d, v0, 2, 2" % T0)
    e("v_and_b32 v%d, 3, v0" % T2)
    e("v_lshl_add_u32 v%d, v%d, 3, v%d" % (T3, T1, T0))
    e("v_lshlrev_b32 v%d, 3, v%d" % (T2, T2))
    e("v_mul_u32_u24 %s, 224, v%d" % (vr(vWr7), T3))
    e("v_add_u32 %s, %s, v%d" % (vr(vWr7), vr(vWr7), T2))
    e("v_lshl_add_u32 v%d, v%d, 9, v%d" % (T3, T3, T2))
    for q in range(4):
        e("v_xor_b32 v%d, %d, v%d" % (T2, q, T0))
        e("v_lshl_add_u32 %s, v%d, 6, v%d" % (vr(vWr8[q]), T2, T3))
    e("s_and_b32 %s, %s, 1" % (sr(sT0), sr(sWave)))
    e("s_lshl_b32 %s, %s, 8" % (sr(sT1), sr(sT0)))
    e("v_add_u32 v%d, %s, v0" % (T0, sr(sT1)))
    for j in range(4):
        e("v_add_u32 v%d, %d, v%d" % (T1, 64 * j, T0))
        e("v_mul_u32_u24 v%d, 4682, v%d" % (T2, T1))
        e("v_lshrrev_b32 v%d, 16, v%d" % (T2, T2))
        e("v_mul_u32_u24 v%d, 14, v%d" % (T3, T2))
        e("v_sub_u32 v%d, v%d, v%d" % (T3, T1, T3))
        e("v_mul_u32_u24 v%d, 7168, v%d" % (T2, T2))
        e("v_lshl_add_u32 v%d, v%d, 4, v%d" % (T2, T3, T2))
        e("v_subrev_u32 %s, %d, v%d" % (vr(vWdN[j]), 1024 * j, T2))
    e("s_lshl_b32 %s, %s, 30" % (sr(sT1), sr(sT0)))
    e("v_or_b32 %s, %s, %s" % (vr(vWdN[3]), sr(sT1), vr(vWdN[3])))
    e("s_lshr_b32 %s, %s, 1" % (sr(sT1), sr(sWave)))
    e("s_mul_i32 %s, %s, 7296" % (sr(sT2), sr(sT1)))
    e("s_lshl_b32 %s, %s, 12" % (sr(sT3), sr(sT0)))
    e("s_add_u32 %s, %s, %s" % (sr(sGm0a), sr(sT2), sr(sT3)))
    e("s_cmp_eq_u32 %s, 0" % sr(sT0))
    e("s_cselect_b32 %s, %s, %d" % (sr(sGm0b), sr(sGm0a), 14464 - 3072))

    def set_next_gu():
        e("s_mov_b32 %s, %s" % (sr(sNXlo), sr(S_X)))
        e("s_mov_b32 %s, %s" % (sr(sNXhi), sr(S_X + 1)))
        e("s_mov_b32 %s, %d" % (sr(sNXn), 2048 * 1024 * 2))
        e("s_lshl_b32 %s, %s, 19" % (sr(sNXk), sr(sTm)))
        e("s_mov_b32 %s, 65536" % sr(sNXrow32))
        e("s_cmp_lt_u32 %s, 2" % sr(sWave))
        e("s_cselect_b32 %s, %s, %s" % (sr(sNWlo), sr(S_WG), sr(S_WU)))
        e("s_cselect_b32 %s, %s, %s" % (sr(sNWhi), sr(S_WG + 1), sr(S_WU + 1)))
        e("s_mov_b32 %s, %d" % (sr(sNWn), 1024 * 3584 * 2))
        e("s_mul_i32 %s, %s, 224" % (sr(sNWk), sr(sTn7)))
        e("s_mov_b32 %s, %d" % (sr(sNWstep), 32 * 7168))
        e("s_mov_b32 %s, %s" % (sr(sNm0a), sr(sGm0a)))
        e("s_mov_b32 %s, %s" % (sr(sNm0b), sr(sGm0b)))

    def set_next_v():
        e("s_mov_b32 %s, %s" % (sr(sNXlo), sr(S_CKV)))
        e("s_mov_b32 %s, %s" % (sr(sNXhi), sr(S_CKV + 1)))
        e("s_mov_b32 %s, %d" % (sr(sNXn), 2048 * 512 * 2))
        e("s_lshl_b32 %s, %s, 18" % (sr(sNXk), sr(sTm)))
        e("s_mov_b32 %s, 32768" % sr(sNXrow32))
        e("s_mov_b32 %s, %s" % (sr(sNWlo), sr(S_WUV)))
        e("s_mov_b32 %s, %s" % (sr(sNWhi), sr(S_WUV + 1)))
        e("s_mov_b32 %s, %d" % (sr(sNWn), 512 * 4096 * 2))
        e("s_lshl_b32 %s, %s, 9" % (sr(sNWk), sr(sTn8)))
        e("s_mov_b32 %s, %d" % (sr(sNWstep), 32 * 8192))
        e("s_mov_b32 %s, %s" % (sr(sNm0a), sr(sWm0a)))
        e("s_mov_b32 %s, %s" % (sr(sNm0b), sr(sWm0b)))

    e("s_cmp_eq_u32 %s, 0" % sr(sJob))
    e("s_cbranch_scc0 %s_nB" % name)
    set_next_gu()
    e("s_branch %s_nC" % name)
    a.label(name + "_nB")
    set_next_v()
    a.label(name + "_nC")
    e("s_lshl_b32 %s, %s, 14" % (sr(sT0), sr(sWave)))
    e("v_lshlrev_b32 %s, 4, v0" % vr(vSt))
    e("v_add_u32 %s, %s, %s" % (vr(vSt), sr(sT0), vr(vSt)))
    pf = OPT.get('pf', [[[2, 4], [4, 0], [7, 0], [8, 0], [7, 3], [8, 3]],
                        [] if OPT.get('apf', 1) else [[0, 15], [0, 15], [0, 15], [9, 0], [9, 3], [5, 0], [5, 4]]])
    pf_lists(a, pf[0])
    e("s_lshl_b32 %s, s2, 2" % sr(sPfOff))
    e("s_add_u32 %s, %s, %s" % (sr(sPfOff), sr(sPfOff), sr(sWave)))
    e("s_lshl_b32 %s, %s, 12" % (sr(sPfOff), sr(sPfOff)))
    e("v_lshlrev_b32 %s, 6, v0" % vr(vPf))
    e("s_mov_b32 %s, 0" % sr(sPfB))
    e("s_mov_b32 %s, 0" % sr(sT3))

    def vsw_k(a, which):
        if which == 'W':
            l = a.newlabel("vsw")
            a.e("s_cmp_lg_u32 %s, 0" % sr(sJob))
            a.e("s_cbranch_scc1 %s" % l)
            for j in range(4):
                a.e("v_mov_b32 %s, %s" % (vr(vWd[j]), vr(vWdN[j])))
            a.label(l)

    def vsw_v(a, which):
        for j in range(4):
            if which == 'W':
                a.e("v_mov_b32 %s, %s" % (vr(vWd[j]), vr(vWdN[j])))
            else:
                a.e("v_mov_b32 %s, %s" % (vr(vXd[j]), vr(vXdN[j])))

    def vsw_g(a, which):
        pass

    def hook_k(a):
        l1_ = a.newlabel("hk")
        a.e("s_cmp_lg_u32 %s, 3" % sr(sIter))
        a.e("s_cbranch_scc1 %s" % l1_)
        flag_store(a, "byte", 30, "1", SRD_DBG, "s2")
        a.label(l1_)

    def hook_g(a):
        l1_ = a.newlabel("hk")
        a.e("s_cmp_lg_u32 %s, 3" % sr(sIter))
        a.e("s_cbranch_scc1 %s" % l1_)
        flag_store(a, "dword", 24, "0x%x" % ALL1, SRD_WS, sr(sF1w))
        a.e(poll_issue(25, SRD_DBG, "0"))
        a.label(l1_)

    def hook_g3(a):
        l1_ = a.newlabel("hk")
        a.e("s_cmp_lg_u32 %s, 1" % sr(sIter))
        a.e("s_cbranch_scc1 %s" % l1_)
        poll_check(a, 25, SRD_DBG, "0", 64, sT0)
        a.e(poll_issue(25, SRD_WS, sr(sF1r)))
        a.label(l1_)

    e("s_waitcnt vmcnt(28)")
    e("v_mov_b32 v30, 0")
    e("v_mov_b32 v31, 0")
    for i in range(8):
        e("v_dot2_f32_bf16 v30, v%d, v%d, v30" % (32 + i, 48 + i))
        e("v_dot2_f32_bf16 v31, v%d, v%d, v31" % (40 + i, 48 + i))
    e("s_nop 2")
    for mode in ("row_shr:1", "row_shr:2", "row_shr:4", "row_shr:8", "row_bcast:15 row_mask:0xa", "row_bcast:31 row_mask:0xc"):
        rm = "" if "row_mask" in mode else " row_mask:0xf"
        e("v_add_f32_dpp v30, v30, v30 %s%s bank_mask:0xf" % (mode, rm))
        e("v_add_f32_dpp v31, v31, v31 %s%s bank_mask:0xf" % (mode, rm))
        e("s_nop 0")
    e("v_mul_f32 v30, %s, v30" % f32(-1.4426950408889634))
    e("v_mul_f32 v31, %s, v31" % f32(-1.4426950408889634))
    e("v_exp_f32 v30, v30")
    e("v_exp_f32 v31, v31")
    e("s_nop 0")
    e("v_add_f32 v30, 1.0, v30")
    e("v_add_f32 v31, 1.0, v31")
    e("v_rcp_f32 v30, v30")
    e("v_rcp_f32 v31, v31")
    e("s_mov_b32 exec_lo, 0")
    e("s_brev_b32 exec_hi, 1")
    e("buffer_store_dwordx2 v[30:31], off, %s, %s%s" % (sr(SRD_WS, 4), sr(sGoff), SC))
    decode_att(a, sT2, sT3, sT0, sT1)
    e("s_lshr_b32 %s, %s, 1" % (sr(sF1r), sr(sT2)))
    e("s_lshl_b32 %s, %s, 8" % (sr(sF1r), sr(sF1r)))
    e("s_add_u32 %s, %s, %d" % (sr(sF1r), sr(sF1r), WS_F1))
    e("s_lshl_b32 %s, %s, 3" % (sr(sF1w), sr(sJob)))
    e("s_add_u32 %s, %s, %s" % (sr(sF1w), sr(sF1w), sr(sTm)))
    e("s_lshl_b32 %s, %s, 2" % (sr(sF1w), sr(sF1w)))
    e("s_lshl_b32 %s, %s, 8" % (sr(sT0), sr(sTn8)))
    e("s_add_u32 %s, %s, %s" % (sr(sF1w), sr(sF1w), sr(sT0)))
    e("s_add_u32 %s, %s, %d" % (sr(sF1w), sr(sF1w), WS_F1))
    e("s_lshl_b32 %s, %s, 2" % (sr(sT2), sr(sT2)))
    e("s_sub_u32 %s, 15, %s" % (sr(sOb), sr(sT3)))
    e("s_cmp_eq_u32 %s, 1" % sr(sWave))
    e("s_cselect_b32 %s, %s, %s" % (sr(sT3), sr(sT3), sr(sOb)))
    e("s_lshl_b32 %s, %s, 7" % (sr(sT3), sr(sT3)))
    e("s_add_u32 %s, %s, %s" % (sr(sT2), sr(sT2), sr(sT3)))
    e("s_add_u32 %s, %s, %d" % (sr(sT2), sr(sT2), WS_F3))
    e("s_and_b32 %s, s2, 127" % sr(sT3))
    e("s_lshl_b32 %s, %s, 7" % (sr(sT3), sr(sT3)))
    e("s_add_u32 %s, %s, %d" % (sr(sT3), sr(sT3), WS_FP))
    e("s_cmp_eq_u32 %s, 3" % sr(sWave))
    e("s_cselect_b32 %s, %s, %s" % (sr(sT2), sr(sT3), sr(sT2)))
    e("s_add_u32 %s, s2, %d" % (sr(sT3), WS_F2))
    e("v_mov_b32 v30, 0")
    e("s_cmp_eq_u32 %s, 0" % sr(sWave))
    e("s_cbranch_scc1 %s_z0" % name)
    e("buffer_store_dword v30, off, %s, %s sc1" % (sr(SRD_WS, 4), sr(sT2)))
    e("s_branch %s_z1" % name)
    a.label(name + "_z0")
    e("buffer_store_byte v30, off, %s, %s sc1" % (sr(SRD_WS, 4), sr(sT3)))
    e("buffer_store_dword v30, off, %s, %s sc1" % (sr(SRD_WS, 4), sr(sF1w)))
    a.label(name + "_z1")
    e("s_mov_b64 exec, -1")
    e("s_mov_b32 %s, 0" % sr(sT3))
    e("s_mov_b32 %s, 0" % sr(SRD_P + 2))
    e(pf_load())
    interval(a, 'K', 0, 'A', kindA='none', vm=16)
    job_start(a, 'K', name + "_k", False, True)
    loop(a, 'K', name + "_k", vsw_k, hook_k, pf=True)
    e("s_cmp_lg_u32 %s, 0" % sr(sJob))
    e("s_cbranch_scc1 %s_k2v" % name)
    interval(a, 'G', 0, 'A', kindA='K', vm=nwait(False, True))
    qs = 1.4426950408889634 / (128.0 ** 0.5)
    e("s_mov_b32 %s, %s" % (sr(sCA), f32(qs)))
    e("s_mov_b32 %s, %s" % (sr(sCA + 1), f32(qs)))
    e("s_lshl_b32 %s, %s, 20" % (sr(sOb), sr(sTn8)))
    e("s_lshl_b32 %s, %s, 16" % (sr(sT0), sr(sTm)))
    e("s_add_u32 %s, %s, %s" % (sr(sOb), sr(sOb), sr(sT0)))
    epilogue_kqv(a, 'K', scale=sCA)
    e("s_branch %s_gu_start" % name)
    a.label(name + "_k2v")
    interval(a, 'V', 0, 'A', kindA='K', vm=nwait(False, True),
             pre=["v_add_u32 %s, %s, %s" % (vr(vXr[i]), vr(vXr[i]), vr(vXdl[i])) for i in range(2)])
    e("s_lshl_b32 %s, %s, 20" % (sr(sOb), sr(sTn8)))
    e("s_lshl_b32 %s, %s, 16" % (sr(sT0), sr(sTm)))
    e("s_add_u32 %s, %s, %s" % (sr(sOb), sr(sOb), sr(sT0)))
    e("s_add_u32 %s, %s, %d" % (sr(sOb), sr(sOb), WS_K))
    epilogue_kqv(a, 'K')
    set_next_gu()
    e("s_mov_b32 %s, 4" % sr(sIter))
    job_start(a, 'V', name + "_v", True, True)
    loop(a, 'V', name + "_v", vsw_v, st=True, pf=True)
    interval(a, 'G', 0, 'A', kindA='V', vm=nwait(True, True),
             pre=["v_sub_u32 %s, %s, %s" % (vr(vXr[i]), vr(vXr[i]), vr(vXdl[i])) for i in range(2)])
    e("s_add_u32 %s, %s, %d" % (sr(sOb), sr(sOb), WS_V - WS_K))
    epilogue_kqv(a, 'V')
    a.label(name + "_gu_start")
    e("s_mov_b32 %s, 0" % sr(sNXn))
    e("s_mov_b32 %s, 0" % sr(sNWn))
    e("s_mov_b32 %s, 8" % sr(sIter))
    job_start(a, 'G', name + "_ga", True, False)
    loop(a, 'G', name + "_ga", None, st=True, last=5, switch=False)
    loop(a, 'G', name + "_gb", vsw_g, hook_g, hook3=hook_g3)
    stamp_ts(a)
    e("s_waitcnt vmcnt(0) lgkmcnt(0)")
    e("s_barrier")
    for m in mfmas('G', 1, 1):
        e(m)
    e("s_lshl_b32 %s, %s, 10" % (sr(sT0), sr(sTm)))
    e("s_lshl_b32 %s, %s, 8" % (sr(sT1), sr(sWave)))
    e("s_add_u32 %s, %s, %s" % (sr(sT0), sr(sT0), sr(sT1)))
    e("s_add_u32 %s, %s, %d" % (sr(sT0), sr(sT0), WS_G))
    e("v_and_b32 v31, 15, v0")
    e("v_lshlrev_b32 v31, 2, v31")
    for tb in range(4):
        e("buffer_load_dword %s, v31, %s, %s offen offset:%d sc1" % (vr(vG1[tb]), sr(SRD_WS, 4), sr(sT0), tb * 64))
    e("s_mul_i32 %s, %s, %d" % (sr(sOb), sr(sTm), 8 * 480 * 1024))
    e("s_mul_i32 %s, %s, 7168" % (sr(sT0), sr(sTn7)))
    e("s_add_u32 %s, %s, %s" % (sr(sOb), sr(sOb), sr(sT0)))
    e("s_add_u32 %s, %s, %d" % (sr(sOb), sr(sOb), WS_A3 + 256 * 1024))
    e("s_mul_i32 %s, %s, %d" % (sr(sT0), sr(sWave), 2 * 480 * 1024))
    e("v_lshlrev_b32 %s, 4, v0" % vr(vSt))
    e("v_add_u32 %s, %s, %s" % (vr(vSt), sr(sT0), vr(vSt)))
    e("s_mov_b32 %s, 1" % sr(sJob))
    e("s_mov_b32 %s, %s" % (sr(sT3), sr(sF1r)))
    poll_check(a, 25, SRD_WS, sr(sT3), 16, sT0, fail=name + "_late")
    att_prologue(a)
    e("s_mov_b32 %s, 0" % sr(sJob))
    e("s_branch %s_epi" % name)
    a.label(name + "_late")
    e("s_waitcnt vmcnt(0)")
    a.label(name + "_epi")
    epilogue_gu(a)
    e("s_cmp_eq_u32 %s, 0" % sr(sJob))
    e("s_cbranch_scc1 %s_att" % name)
    e(poll_issue(25, SRD_WS, sr(sT3)))
    e("s_waitcnt vmcnt(0)")
    poll_check(a, 25, SRD_WS, sr(sT3), 16, sT0)
    att_prologue(a)
    e("s_waitcnt vmcnt(0)")
    a.label(name + "_att")
    stamp_ts(a)


NSLOT = 5
aHead, aPair, aT, aLoop, aRd, aWr, aWrEnd, aWrBeg = range(16, 24)
aDK, aDV, aKmax, aVmax, aT0, aT1, aT2, aTHR, aNEG, aPl, aLoopS = range(24, 35)
aQb = [35, 36]
aThr = [37, 38]
aMaskB = [39, 40]
aFB = 42
aCmp = 56

vLane16, vDma, vRd, vDl = 1, 2, 3, 4
vNegm, vL, vLs, vG = [5, 6], [7, 24], [26, 27], [8, 9]
vTmp = [10, 11, 12, 13]
vPoll2 = 14
vAPf, vAPfD = 15, 28
vE = [16, 17, 18, 19, 20, 21, 22, 23]
vC = [32, 160]
vS = [[48, 64], [176, 192]]
vP = [[80, 88], [208, 216]]
vZ = 224
vO = 96
rQ = [0, 32]
rK, rV, rOB = 64, 96, 128


def oreg(X, db, n=16, off=0):
    return vr(vO + 16 * db + off, n) if X == 0 else ar(rOB + 16 * db + off, n)


def a_pf(which):
    if not OPT.get('apf', 1):
        return []
    srd = SRD_P if which == 0 else SRD_X
    out = ["buffer_load_dword %s, %s, %s, 0 offen" % (vr(vAPfD), vr(vAPf), sr(srd, 4))]
    if which == 1:
        out.append("v_add_u32 %s, %d, %s" % (vr(vAPf), 1024 * OPT.get('apl', 8) * 64, vr(vAPf)))
    return out


def qk_mfmas(par, streams, czero=()):
    out = []
    for ks in range(8):
        for X in streams:
            c = vr(vS[X][par], 16)
            if ks == 0:
                c = "0" if X in czero else vr(vC[X], 16)
            out.append("v_mfma_f32_32x32x16_bf16 %s, %s, %s, %s" % (vr(vS[X][par], 16), ar(rK + 4 * ks, 4), ar(rQ[X] + 4 * ks, 4), c))
    return out


def pv_mfmas(par, streams):
    out = []
    for g in range(2):
        for db in range(4):
            for X in streams:
                o = oreg(X, db)
                out.append("v_mfma_f32_32x32x16_bf16 %s, %s, %s, %s" % (o, ar(rV + 4 * (g * 4 + db), 4), vr(vP[X][par] + 4 * g, 4), o))
    return out


def k_reads(sb):
    return ["ds_read_b128 %s, %s offset:%d" % (ar(rK + 4 * ks, 4), vr(vRd), sb * 8192 + ks * 1024) for ks in range(8)]


def v_reads(sb):
    return ["ds_read_b128 %s, %s offset:%d" % (ar(rV + 4 * j, 4), vr(vRd), 16384 + sb * 8192 + j * 1024) for j in range(8)]


def sm_items(X, par):
    it = [(4, "v_add_f32 %s, %s, %s" % (vr(vL[X]), vr(vL[X]), vr(vLs[X])))]
    S, P, Ls = vS[X][par], vP[X][par], vLs[X]
    pend = []
    for r in range(16):
        e = vE[r % 8]
        it.append((8, "v_exp_f32 %s, %s" % (vr(e), vr(S + r))))
        it.extend(pend)
        pend = []
        if r == 1:
            pend.append((4, "v_add_f32 %s, %s, %s" % (vr(Ls), vr(vE[0]), vr(vE[1]))))
        elif r > 1:
            pend.append((4, "v_add_f32 %s, %s, %s" % (vr(Ls), vr(Ls), vr(e))))
        if r & 1:
            pend.append((4, "v_cvt_pk_bf16_f32 %s, %s, %s" % (vr(P + (r >> 1)), vr(vE[(r - 1) % 8]), vr(e))))
    it.extend(pend)
    it.append((4, "v_cmp_lt_f32 %s, %s, %s" % ("vcc" if X == 0 else sr(aFB, 2), sr(aTHR), vr(Ls))))
    return it


def a_dma(which):
    m0 = "s_mov_b32 m0, %s" % sr(aWr) if which == 'K' else "s_add_u32 m0, %s, 16384" % sr(aWr)
    so = aDK if which == 'K' else aDV
    d = ["buffer_load_dwordx4 %s, %s, %s offen offset:%d lds" % (vr(vDma), sr(SRD_WS, 4), sr(so), j * 1024) for j in range(4)]
    return m0, d


def a_dma_advance():
    return [
        "s_add_u32 %s, %s, 32768" % (sr(aWr), sr(aWr)),
        "s_cmp_eq_u32 %s, %s" % (sr(aWr), sr(aWrEnd)),
        "s_cselect_b32 %s, %s, %s" % (sr(aWr), sr(aWrBeg), sr(aWr)),
        "s_add_u32 %s, %s, 16384" % (sr(aDK), sr(aDK)),
        "s_min_u32 %s, %s, %s" % (sr(aDK), sr(aDK), sr(aKmax)),
        "s_add_u32 %s, %s, 16384" % (sr(aDV), sr(aDV)),
        "s_min_u32 %s, %s, %s" % (sr(aDV), sr(aDV), sr(aVmax)),
    ]


def a_rd_advance():
    return [
        "s_add_u32 %s, %s, 32768" % (sr(aRd), sr(aRd)),
        "s_cmp_eq_u32 %s, %d" % (sr(aRd), NSLOT * 32768),
        "s_cselect_b32 %s, 0, %s" % (sr(aRd), sr(aRd)),
    ]


class Sched:
    def __init__(self, par, qk, pv, sm, kr=True, thr=None):
        self.par, self.sm = par, sm
        m1 = qk_mfmas(par ^ 1, qk) if qk else [None] * 8
        m2 = pv_mfmas(par ^ 1, pv)
        n1, n2 = len(m1), len(m2)
        self.n1, self.n = n1, n1 + n2
        self.mf = m1 + m2
        n = self.n
        fill = {g: [] for g in range(n)}
        used = {g: 0 for g in range(n)}
        pre = {g: [] for g in range(n)}

        def put(g, s, c=4):
            fill[g].append(s)
            used[g] += c
        s1, s2 = n1 // 8, n2 // 8
        for j, r in enumerate(v_reads(1 if par == 0 else 0)):
            put(j * s1, r)
        if kr:
            for j, r in enumerate(k_reads(0 if par == 0 else 1)):
                put(n1 + j * s2, r)
        if qk:
            pre[0].append("s_waitcnt lgkmcnt(4)")
            pre[n1 // 2].append("s_waitcnt lgkmcnt(4)")
            used[n1 // 2 - 1] += 4
        pre[n1].append("s_waitcnt lgkmcnt(4)")
        used[n1 - 1] += 4
        pre[n1 + n2 // 2].append("s_waitcnt lgkmcnt(%d)" % (4 if kr else 0))
        used[n1 + n2 // 2 - 1] += 4
        if par == 0:
            m0, d = a_dma('K')
            put(n1, m0)
            for j in range(4):
                put(n1 + (1 + 2 * j) * s2 - (s2 - 1), d[j])
            for x in a_rd_advance():
                put(n1 - 2, x)
            for x in a_pf(1):
                put(2 * s1, x)
        else:
            m0, d = a_dma('V')
            put(0, m0)
            for j in range(4):
                put((1 + 2 * j) * s1 - (s1 - 1), d[j])
            adv = a_dma_advance()
            for g, lo, hi in ((1, 0, 3), (3, 3, 5), (5, 5, 7)):
                for x in adv[lo:hi]:
                    put(n1 + g * s2, x)
            for x in a_pf(0):
                put(n1 + 2 * s2, x)
        g = 0
        cap = OPT.get('cap', 24)
        items = []
        for X in reversed(sm):
            items += sm_items(X, par)
        tot = sum(c for c, _ in items) + sum(used.values())
        if len(sm) == 2 or n > 16:
            cap = max(16, min(cap, 4 * (-(-tot // (4 * (n - 2)))) + 4))
        for c, s_ in items:
            while g < n - 1 and used[g] + c > cap:
                g += 1
            put(g, s_, c)
        if 1 in sm:
            put(n - 1, "s_or_b64 vcc, vcc, %s" % sr(aFB, 2))
        self.thr = thr
        if thr is not None:
            put(n - 1, "s_cmp_ge_i32 %s, %s" % (sr(aT), sr(aThr[thr])))
        self.fill, self.pre = fill, pre

    def emit(self, a, half):
        lo, hi = {'h1': (0, self.n1), 'h2': (self.n1, self.n), 'all': (0, self.n)}[half]
        for g in range(lo, hi):
            for s_ in self.pre[g]:
                a.e(s_)
            if self.mf[g]:
                a.e(self.mf[g])
            for s_ in self.fill[g]:
                a.e(s_)


def a_barrier(a):
    a.e("s_waitcnt vmcnt(%d)" % (22 if OPT.get('apf', 1) else 16))
    a.e("s_barrier")
    a.e("v_add_u32 %s, %s, %s" % (vr(vRd), sr(aRd), vr(vLane16)))


def maskprep_items(X):
    it = []
    it.append("s_lshl_b32 %s, %s, 5" % (sr(aT2), sr(aT1)))
    it.append("s_sub_i32 %s, %s, %s" % (sr(aT2), sr(aMaskB[X]), sr(aT2)))
    it.append("v_add_u32 %s, %s, %s" % (vr(vTmp[2]), sr(aT2), vr(vDl)))
    it.append("v_mov_b32 %s, %s" % (vr(vTmp[3]), sr(aNEG)))
    for r in range(16):
        kc = 8 * (r >> 2) + (r & 3)
        it.append("v_cmp_gt_i32 %s, %d, %s" % (sr(aCmp + 2 * (r & 3), 2), kc, vr(vTmp[2])))
        if (r & 3) == 3:
            for q in range(4):
                it.append("v_cndmask_b32 %s, %s, %s, %s" % (vr(vC[X] + r - 3 + q), vr(vNegm[X]), vr(vTmp[3]), sr(aCmp + 2 * q, 2)))
    return it


def rowmax_items(S, t0, t1):
    it = ["v_max3_f32 %s, %s, %s, %s" % (vr(t0), vr(S), vr(S + 1), vr(S + 2))]
    for r in range(3, 15, 2):
        it.append("v_max3_f32 %s, %s, %s, %s" % (vr(t0), vr(t0), vr(S + r), vr(S + r + 1)))
    it.append("v_max_f32 %s, %s, %s" % (vr(t0), vr(t0), vr(S + 15)))
    it.append("v_mov_b32 %s, %s" % (vr(t1), vr(t0)))
    it.append("s_nop 1")
    it.append("v_permlane32_swap_b32 %s, %s" % (vr(t0), vr(t1)))
    it.append("s_nop 1")
    it.append("v_max_f32 %s, %s, %s" % (vr(t0), vr(t0), vr(t1)))
    return it


def resm_items(X, par, t0):
    S, P, Ls = vS[X][par], vP[X][par], vLs[X]
    it = []
    for r in range(16):
        it.append("v_sub_f32 %s, %s, %s" % (vr(S + r), vr(S + r), vr(t0)))
    for r in range(16):
        it.append("v_exp_f32 %s, %s" % (vr(S + r), vr(S + r)))
    it.append("v_add_f32 %s, %s, %s" % (vr(Ls), vr(S), vr(S + 1)))
    for r in range(2, 16):
        it.append("v_add_f32 %s, %s, %s" % (vr(Ls), vr(Ls), vr(S + r)))
    for r in range(8):
        it.append("v_cvt_pk_bf16_f32 %s, %s, %s" % (vr(P + r), vr(S + 2 * r), vr(S + 2 * r + 1)))
    return it


def stage_end(a, sc, masks, handlers):
    ret, sp, sl = a.newlabel("aret"), a.newlabel("asp"), a.newlabel("asl")
    if sc.thr is not None:
        a.e("s_cbranch_scc1 %s" % sp)
    a.e("s_cbranch_vccnz %s" % sl)
    a.label(ret)
    a.e("s_add_u32 %s, %s, 1" % (sr(aT), sr(aT)))
    handlers.append((sc.par, sc.sm, masks, sp if sc.thr is not None else None, sl, ret))


def emit_handler(a, par, sm, masks, sp, sl, ret):
    e = a.e
    mask = a.newlabel("hmask")
    if sp:
        a.label(sp)
        e("s_cbranch_vccz %s" % mask)
    a.label(sl)
    t0, t1 = vTmp[0], vTmp[1]
    for X in sm:
        for x in rowmax_items(vS[X][par], t0, t1):
            e(x)
        e("v_max_f32 %s, 0, %s" % (vr(t0), vr(t0)))
        e("v_exp_f32 %s, -%s" % (vr(t1), vr(t0)))
        e("v_sub_f32 %s, %s, %s" % (vr(vNegm[X]), vr(vNegm[X]), vr(t0)))
        e("v_mul_f32 %s, %s, %s" % (vr(vL[X]), vr(vL[X]), vr(t1)))
        for i in range(64):
            if X == 0:
                e("v_mul_f32 %s, %s, %s" % (vr(vO + i), vr(vO + i), vr(t1)))
            else:
                e("v_accvgpr_read_b32 %s, %s" % (vr(vTmp[2]), ar(rOB + i)))
                e("v_mul_f32 %s, %s, %s" % (vr(vTmp[2]), vr(vTmp[2]), vr(t1)))
                e("v_accvgpr_write_b32 %s, %s" % (ar(rOB + i), vr(vTmp[2])))
        Sn = vS[X][par ^ 1]
        for r in range(16):
            e("v_sub_f32 %s, %s, %s" % (vr(Sn + r), vr(Sn + r), vr(t0)))
        for x in resm_items(X, par, t0):
            e(x)
    a.label(mask)
    e("s_add_u32 %s, %s, 2" % (sr(aT1), sr(aT)))
    for X in masks:
        for x in maskprep_items(X):
            e(x)
    e("s_branch %s" % ret)


def att_prologue(a):
    e = a.e
    decode_att(a, aHead, aQb[1], aT0, aT1)
    e("s_sub_u32 %s, 15, %s" % (sr(aQb[0]), sr(aQb[1])))
    e("v_lshlrev_b32 %s, 4, v0" % vr(vLane16))
    e("s_lshl_b32 %s, %s, 12" % (sr(aWrBeg), sr(sWave)))
    e("v_add_u32 %s, %s, %s" % (vr(vDma), sr(aWrBeg), vr(vLane16)))
    e("s_mov_b32 %s, %s" % (sr(aWr), sr(aWrBeg)))
    e("s_add_u32 %s, %s, %d" % (sr(aWrEnd), sr(aWrBeg), NSLOT * 32768))
    e("s_lshl_b32 %s, %s, 19" % (sr(aT0), sr(aHead)))
    e("s_add_u32 %s, %s, %d" % (sr(aDK), sr(aT0), WS_K))
    e("s_add_u32 %s, %s, %d" % (sr(aDV), sr(aT0), WS_V - 16384))
    e("s_lshl_b32 %s, %s, 15" % (sr(aT1), sr(aQb[0])))
    e("s_add_u32 %s, %s, 16384" % (sr(aT1), sr(aT1)))
    e("s_add_u32 %s, %s, %s" % (sr(aKmax), sr(aDK), sr(aT1)))
    e("s_add_u32 %s, %s, %d" % (sr(aVmax), sr(aKmax), WS_V - WS_K))
    e("v_and_b32 v24, 31, v0")
    e("v_lshrrev_b32 v25, 5, v0")
    e("v_lshlrev_b32 v25, 2, v25")
    e("v_sub_u32 %s, v24, v25" % vr(vDl))
    e("v_lshlrev_b32 v24, 2, v24")

    def qload(X):
        e("s_lshl_b32 %s, %s, 2" % (sr(aT1), sr(aQb[X])))
        e("s_add_u32 %s, %s, %s" % (sr(aT1), sr(aT1), sr(sWave)))
        e("s_lshl_b32 %s, %s, 13" % (sr(aT2), sr(aT1)))
        e("s_lshl_b32 %s, %s, 19" % (sr(aT0), sr(aHead)))
        e("s_add_u32 %s, %s, %s" % (sr(aT2), sr(aT2), sr(aT0)))
        e("s_add_u32 %s, %s, 4096" % (sr(aT0), sr(aT2)))
        for ks in range(8):
            e("buffer_load_dwordx4 %s, %s, %s, %s offen offset:%d" % (
                ar(rQ[X] + 4 * ks, 4), vr(vLane16), sr(SRD_WS, 4), sr(aT2 if ks < 4 else aT0), (ks & 3) * 1024))
        e("s_lshl_b32 %s, %s, 7" % (sr(aT1), sr(aT1)))
        e("s_add_u32 %s, %s, %d" % (sr(aT1), sr(aT1), WS_G))
        e("buffer_load_dword %s, v24, %s, %s offen sc1" % (vr(vG[X]), sr(SRD_WS, 4), sr(aT1)))
    for i in range(3):
        for w in ('K', 'V'):
            if i == 0 and w == 'V':
                continue
            m0, d = a_dma(w)
            e(m0)
            e("s_nop 0")
            for x in d:
                e(x)
        for x in a_dma_advance():
            e(x)
        if i == 0:
            qload(0)
            qload(1)
    e("s_mov_b32 %s, %s" % (sr(aTHR), f32(4096.0)))
    e("s_mov_b32 %s, %s" % (sr(aNEG), f32(-1e30)))
    e("s_mov_b32 %s, 0" % sr(aRd))
    e("s_mov_b32 %s, %d" % (sr(aPl), WS_F2))
    for X in range(2):
        e("s_lshl_b32 %s, %s, 2" % (sr(aT0), sr(aQb[X])))
        e("s_sub_i32 %s, %s, 2" % (sr(aThr[X]), sr(aT0)))
        e("s_add_u32 %s, %s, %s" % (sr(aMaskB[X]), sr(aT0), sr(sWave)))
        e("s_lshl_b32 %s, %s, 5" % (sr(aMaskB[X]), sr(aMaskB[X])))
    e("s_lshl_b32 %s, %s, 1" % (sr(aLoop), sr(aQb[1])))
    e("s_add_u32 %s, %s, 1" % (sr(aLoop), sr(aLoop)))
    e("s_sub_u32 %s, %s, %s" % (sr(aLoopS), sr(aQb[0]), sr(aQb[1])))
    e("s_lshl_b32 %s, %s, 1" % (sr(aLoopS), sr(aLoopS)))
    e("s_sub_u32 %s, %s, 1" % (sr(aLoopS), sr(aLoopS)))


ATT_PRO_LOADS = 20 + 18


def mix(a, mf, fixed, stream, cap=6):
    i = 0
    for g, m in enumerate(mf):
        a.e(m)
        k = 0
        for x in fixed.get(g, []):
            a.e(x)
            k += 1
        while i < len(stream) and k < cap:
            mg = 0
            x = stream[i]
            if isinstance(x, tuple):
                mg, x = x
            if mg > g:
                break
            a.e(x)
            k += 2 if x.startswith("v_exp") else 1
            i += 1
    while i < len(stream):
        x = stream[i]
        a.e(x[1] if isinstance(x, tuple) else x)
        i += 1


def att_epilogue(a, X):
    e = a.e
    t0, t1 = vTmp[0], vTmp[1]
    e("v_mov_b32 %s, %s" % (vr(t0), vr(vL[X])))
    e("s_lshl_b32 %s, %s, 2" % (sr(aT1), sr(aQb[X])))
    e("s_add_u32 %s, %s, %s" % (sr(aT1), sr(aT1), sr(sWave)))
    e("v_permlane32_swap_b32 %s, %s" % (vr(t0), vr(vL[X])))
    e("s_mul_i32 %s, %s, %d" % (sr(aT1), sr(aT1), 480 * 1024))
    e("s_lshl_b32 %s, %s, 13" % (sr(aT2), sr(aHead)))
    e("v_add_f32 %s, %s, %s" % (vr(t0), vr(vL[X]), vr(t0)))
    e("v_rcp_f32 %s, %s" % (vr(t0), vr(t0)))
    e("s_add_u32 %s, %s, %s" % (sr(aT1), sr(aT1), sr(aT2)))
    e("s_add_u32 %s, %s, %d" % (sr(aT1), sr(aT1), WS_A3))
    e("v_mul_f32 %s, %s, %s" % (vr(t0), vr(t0), vr(vG[X])))
    e("s_add_u32 %s, %s, 4096" % (sr(aT2), sr(aT1)))
    e("v_mov_b32 %s, %s" % (vr(t1), vr(t0)))
    for db in range(4):
        if X == 0:
            r = vO + 16 * db
        else:
            r = vYB + 16 * db
            for i in range(16):
                e("v_accvgpr_read_b32 %s, %s" % (vr(r + i), ar(rOB + 16 * db + i)))
        for i in range(0, 16, 2):
            e("v_pk_mul_f32 %s, %s, %s" % (vr(r + i, 2), vr(r + i, 2), vr(t0, 2)))
        for g in range(2):
            for i in range(4):
                e("v_cvt_pk_bf16_f32 %s, %s, %s" % (vr(r + 8 * g + i), vr(r + 8 * g + 2 * i), vr(r + 8 * g + 2 * i + 1)))
            fi = db * 2 + g
            e("buffer_store_dwordx4 %s, %s, %s, %s offen offset:%d%s" % (
                vr(r + 8 * g, 4), vr(vLane16), sr(SRD_WS, 4), sr(aT1 if fi < 4 else aT2), (fi & 3) * 1024, SC))


vYB = 160


def part2(a, name, out_prologue, handlers):
    e = a.e
    L = OPT.get('apl', 8)
    npf = 2 if OPT.get('apf', 1) else 0
    e("s_load_dwordx2 %s, s[0:1], 40" % sr(SRD_P, 2))
    e("s_load_dwordx2 %s, s[0:1], 72" % sr(SRD_X, 2))
    e("s_mov_b32 %s, %d" % (sr(SRD_P + 2), 4096 * 2048))
    e("s_mov_b32 %s, %d" % (sr(SRD_X + 2), 3584 * 2048))
    e("s_lshl_b32 %s, s2, 2" % sr(aT0))
    e("s_add_u32 %s, %s, %s" % (sr(aT0), sr(aT0), sr(sWave)))
    e("s_mul_i32 %s, %s, %d" % (sr(aT0), sr(aT0), L * 64))
    e("v_lshlrev_b32 %s, 6, v0" % vr(vAPf))
    e("v_add_u32 %s, %s, %s" % (vr(vAPf), sr(aT0), vr(vAPf)))
    e("v_cmp_gt_u32 vcc, %d, v0" % L)
    e("v_mov_b32 %s, 0x70000000" % vr(vAPfD))
    e("v_mov_b32 %s, 0" % vr(vNegm[1]))
    e("v_cndmask_b32 %s, %s, %s, vcc" % (vr(vAPf), vr(vAPfD), vr(vAPf)))
    e("s_waitcnt vmcnt(%d) lgkmcnt(0)" % N_H_STORES)
    e("s_barrier")
    e("v_mov_b32 %s, %s" % (vr(vRd), vr(vLane16)))
    for r in k_reads(0):
        e(r)
    m0, d = a_dma('K')
    e(m0)
    e("s_mov_b32 %s, 0" % sr(aT1))
    for x in d:
        e(x)
    for x in maskprep_items(1):
        e(x)
    for i in range(4):
        e("v_mov_b32 %s, 0" % vr(vZ + i))
    for X in range(2):
        e("v_mov_b32 %s, 0" % vr(vL[X]))
    e("s_waitcnt lgkmcnt(0)")
    q0 = qk_mfmas(0, (0, 1), czero=(0,))
    zo = ["v_mfma_f32_32x32x16_bf16 %s, %s, %s, 0" % (oreg(X, db), ar(rQ[0], 4), vr(vZ, 4)) for X in range(2) for db in range(4)]
    kr1 = k_reads(1)
    m0, d = a_dma('V')
    fx = {}
    fx[0] = [m0]
    for i in range(8):
        fx.setdefault(2 * i + 1, []).append(kr1[i])
    for j in range(4):
        fx.setdefault(2 + 2 * j, []).append(d[j])
    st = [(10, x) for x in a_dma_advance()] + [(10, x) for x in a_pf(0) + a_pf(1)]
    st += [(10, "s_mov_b32 %s, 1" % sr(aT1))] + [(10, x) for x in maskprep_items(1)]
    mix(a, q0 + zo[:4], fx, st)
    e("s_waitcnt lgkmcnt(0)")
    q1 = qk_mfmas(1, (0, 1), czero=(0,))
    st = []
    for X in range(2):
        st += rowmax_items(vS[X][0], vNegm[X], vTmp[1])
        st += resm_items(X, 0, vNegm[X])
    st += a_rd_advance()
    mix(a, zo[4:] + q1, {}, st)
    e("s_waitcnt vmcnt(%d)" % (8 + npf))
    e("s_barrier")
    e("v_add_u32 %s, %s, %s" % (vr(vRd), sr(aRd), vr(vLane16)))
    e("s_add_u32 %s, s2, %d" % (sr(aT0), WS_F2))
    flag_store(a, "byte", vTmp[0], "1", SRD_WS, sr(aT0))
    for r in k_reads(0):
        e(r)
    m0, d = a_dma('K')
    e(m0)
    e("s_mov_b32 %s, 2" % sr(aT1))
    for x in d:
        e(x)
    for X in range(2):
        for r in range(16):
            e("v_sub_f32 %s, %s, %s" % (vr(vS[X][1] + r), vr(vS[X][1] + r), vr(vNegm[X])))
        e("v_sub_f32 %s, 0, %s" % (vr(vNegm[X]), vr(vNegm[X])))
    for r in range(16):
        e("v_mov_b32 %s, %s" % (vr(vC[0] + r), vr(vNegm[0])))
    for x in maskprep_items(1):
        e(x)
    e("s_mov_b32 %s, 1" % sr(aT))
    e("s_branch %s_dentry" % name)
    B2 = (0, 1)
    A1 = (0,)
    De, Do = Sched(0, B2, B2, B2, thr=1), Sched(1, B2, B2, B2, thr=1)
    align(a)
    a.label(name + "_dloop")
    stamp_ts(a)
    a_barrier(a)
    De.emit(a, 'h2')
    stage_end(a, De, B2, handlers)
    a.label(name + "_dentry")
    Do.emit(a, 'all')
    stage_end(a, Do, B2, handlers)
    De.emit(a, 'h1')
    e("s_sub_u32 %s, %s, 1" % (sr(aLoop), sr(aLoop)))
    e("s_cmp_lg_u32 %s, 0" % sr(aLoop))
    e("s_cbranch_scc1 %s_dloop" % name)
    M1, M2 = Sched(1, A1, B2, B2, thr=0), Sched(0, A1, B2, A1, thr=0)
    stamp_ts(a)
    a_barrier(a)
    De.emit(a, 'h2')
    stage_end(a, De, A1, handlers)
    M1.emit(a, 'all')
    stage_end(a, M1, A1, handlers)
    M2.emit(a, 'h1')
    a_barrier(a)
    M2.emit(a, 'h2')
    stage_end(a, M2, A1, handlers)
    e("v_add_f32 %s, %s, %s" % (vr(vL[1]), vr(vL[1]), vr(vLs[1])))
    att_epilogue(a, 1)
    e("s_branch %s_sentry" % name)
    Se, So = Sched(0, A1, A1, A1, thr=0), Sched(1, A1, A1, A1, thr=0)
    align(a)
    a.label(name + "_aloop")
    stamp_ts(a)
    a_barrier(a)
    Se.emit(a, 'h2')
    stage_end(a, Se, A1, handlers)
    a.label(name + "_sentry")
    So.emit(a, 'all')
    stage_end(a, So, A1, handlers)
    Se.emit(a, 'h1')
    e("s_sub_u32 %s, %s, 1" % (sr(aLoopS), sr(aLoopS)))
    e("s_cmp_lg_u32 %s, 0" % sr(aLoopS))
    e("s_cbranch_scc1 %s_aloop" % name)
    stamp_ts(a)
    Te, To = Sched(0, A1, A1, A1, kr=False), Sched(1, (), A1, A1, kr=False)
    a_barrier(a)
    e(poll_issue(vPoll2, SRD_WS, sr(aPl)))
    Te.emit(a, 'h2')
    stage_end(a, Te, (), handlers)
    To.emit(a, 'all')
    stage_end(a, To, (), handlers)
    for r in v_reads(1):
        e(r)
    e("v_add_f32 %s, %s, %s" % (vr(vL[0]), vr(vL[0]), vr(vLs[0])))
    pv = pv_mfmas(1, A1)
    e("s_waitcnt lgkmcnt(4)")
    for i in range(4):
        e(pv[i])
    e("s_waitcnt lgkmcnt(0)")
    for i in range(4, 8):
        e(pv[i])
    out_prologue(a)
    a.label(name + "_nopro")
    att_epilogue(a, 0)
    stamp_ts(a)


SRD_OUT = SRD_X
oTm, oTn, oRole, oXk, oWk, oIter, oM0, oT0, oT1, oT2, oTile, oSw, oXk2, oWk2, oBit, oC3 = range(68, 84)
oWO, oWD, oOUT = 84, 86, 88
vX = [16, 17, 18, 19]
vWd3 = [20, 21, 22, 23]
vWr3 = [24, 25, 26, 27]
vSigW = 28
vPoll3 = 13
vWF = 32
vTMP = 64
vACC = 128
aACC = 0
aX = 128


def acc3(nb, tb):
    if tb < 2:
        return ('v', vACC + 16 * (tb * 4 + nb))
    return ('a', aACC + 16 * ((tb - 2) * 4 + nb))


def loads3(slot):
    pre = "s_add_u32 m0, %s, %d" % (sr(oM0), slot * 4096)
    d = ["buffer_load_dwordx4 %s, %s, %s offen offset:%d lds" % (vr(vWd3[j]), sr(SRD_W, 4), sr(oWk), j * 1024) for j in range(4)]
    x = ["buffer_load_dwordx4 %s, %s, %s, %s offen" % (ar(aX + 16 * slot + 4 * tb, 4), vr(vX[tb]), sr(SRD_WS, 4), sr(oXk)) for tb in range(4)]
    post = ["s_add_u32 %s, %s, %d" % (sr(oWk), sr(oWk), 64 * 2048), "s_add_u32 %s, %s, 4096" % (sr(oXk), sr(oXk))]
    return pre, d, x, post


def wreads3(slot, fs):
    out = []
    for nb in range(4):
        for t in range(2):
            out.append("ds_read_b64_tr_b16 %s, %s offset:%d" % (vr(vWF + 16 * fs + 4 * nb + 2 * t, 2), vr(vWr3[nb]), slot * 4096 + t * 2048))
    return out


def step3(a, i, zero=False, do_load=True, do_read=True, vm=44):
    slot, fs = i % 8, i % 2
    a.e("s_waitcnt vmcnt(%d) lgkmcnt(0)" % vm)
    mf = []
    for nb in range(4):
        for tb in range(4):
            d = reg(acc3(nb, tb), 16)
            mf.append("v_mfma_f32_32x32x16_bf16 %s, %s, %s, %s" % (d, vr(vWF + 16 * fs + 4 * nb, 4), ar(aX + 16 * slot + 4 * tb, 4), "0" if zero else d))
    fill = {}
    if do_read:
        for j, r in enumerate(wreads3((i + 1) % 8, fs ^ 1)):
            fill.setdefault(j, []).append(r)
    if do_load:
        pre, d, x, post = loads3((i + 7) % 8)
        fill.setdefault(0, []).append(pre)
        for j in range(4):
            fill.setdefault(1 + 2 * j, []).append(d[j])
        for j in range(4):
            fill.setdefault(8 + 2 * j, []).append(x[j])
        fill.setdefault(15, []).extend(post)
    interleave(a, mf, fill)


def out_prologue(a):
    e = a.e
    e("s_load_dwordx2 %s, s[0:1], 40" % sr(oWO, 2))
    e("s_load_dwordx2 %s, s[0:1], 72" % sr(oWD, 2))
    e("s_load_dwordx2 %s, s[0:1], 88" % sr(oOUT, 2))
    e("s_and_b32 %s, s2, 7" % sr(oT0))
    e("s_lshr_b32 %s, s2, 3" % sr(oT1))
    if OPT.get('omap', 0) == 0:
        e("s_and_b32 %s, %s, 3" % (sr(oTm), sr(oT0)))
        e("s_lshl_b32 %s, %s, 2" % (sr(oTm), sr(oTm)))
        e("s_and_b32 %s, %s, 3" % (sr(oT2), sr(oT1)))
        e("s_add_u32 %s, %s, %s" % (sr(oTm), sr(oTm), sr(oT2)))
        e("s_lshr_b32 %s, %s, 2" % (sr(oTn), sr(oT0)))
        e("s_lshl_b32 %s, %s, 2" % (sr(oTn), sr(oTn)))
        e("s_bfe_u32 %s, %s, 0x20002" % (sr(oT2), sr(oT1)))
        e("s_add_u32 %s, %s, %s" % (sr(oTn), sr(oTn), sr(oT2)))
        e("s_lshr_b32 %s, %s, 4" % (sr(oRole), sr(oT1)))
        if OPT.get('rswap', 1):
            e("s_xor_b32 %s, %s, 1" % (sr(oRole), sr(oRole)))
    else:
        e("s_and_b32 %s, %s, 1" % (sr(oTm), sr(oT0)))
        e("s_lshl_b32 %s, %s, 3" % (sr(oTm), sr(oTm)))
        e("s_and_b32 %s, %s, 7" % (sr(oT2), sr(oT1)))
        e("s_add_u32 %s, %s, %s" % (sr(oTm), sr(oTm), sr(oT2)))
        e("s_bfe_u32 %s, %s, 0x10001" % (sr(oTn), sr(oT0)))
        e("s_lshl_b32 %s, %s, 2" % (sr(oTn), sr(oTn)))
        e("s_lshr_b32 %s, %s, 3" % (sr(oT2), sr(oT1)))
        e("s_add_u32 %s, %s, %s" % (sr(oTn), sr(oTn), sr(oT2)))
        e("s_lshr_b32 %s, %s, 2" % (sr(oRole), sr(oT0)))
    e("s_lshl_b32 %s, %s, 3" % (sr(oTile), sr(oTm)))
    e("s_add_u32 %s, %s, %s" % (sr(oTile), sr(oTile), sr(oTn)))
    e("s_mov_b32 %s, %d" % (sr(SRD_OUT + 2), 2048 * 1024 * 2))
    e("s_lshl_b32 %s, %s, 15" % (sr(oM0), sr(sWave)))
    for tb in range(4):
        e("s_xor_b32 %s, %s, %d" % (sr(oT0), sr(sWave), tb))
        e("s_mul_i32 %s, %s, %d" % (sr(oT0), sr(oT0), 480 * 1024))
        e("v_add_u32 %s, %s, %s" % (vr(vX[tb]), sr(oT0), vr(vLane16)))
    e("v_lshrrev_b32 v32, 4, v0")
    e("v_bfe_u32 v33, v0, 2, 2")
    e("v_xor_b32 v34, v33, v32")
    e("v_and_b32 v35, 3, v0")
    e("v_lshlrev_b32 v36, 11, v32")
    e("v_lshl_add_u32 v36, v34, 6, v36")
    e("v_lshl_add_u32 %s, v35, 4, v36" % vr(vWd3[0]))
    for j in range(1, 4):
        e("v_add_u32 %s, %d, %s" % (vr(vWd3[j]), [0, 2, 1, 3][j] * 8192 - 1024 * j, vr(vWd3[0])))
    e("v_lshrrev_b32 v32, 5, v0")
    e("v_lshl_add_u32 v32, v32, 2, v33")
    e("v_lshlrev_b32 v32, 8, v32")
    e("v_bfe_u32 v34, v0, 4, 1")
    e("v_lshl_add_u32 v32, v34, 5, v32")
    e("v_lshl_add_u32 v32, v35, 3, v32")
    e("v_add_u32 v32, %s, v32" % sr(oM0))
    for nb in range(4):
        e("v_xor_b32 v34, %d, v33" % nb)
        e("v_lshl_add_u32 %s, v34, 6, v32" % vr(vWr3[nb]))
    e("s_mul_i32 %s, %s, %d" % (sr(oXk2), sr(oTm), 4 * 480 * 1024))
    e("s_lshl_b32 %s, %s, 10" % (sr(oT0), sr(sWave)))
    e("s_add_u32 %s, %s, %s" % (sr(oXk2), sr(oXk2), sr(oT0)))
    e("s_add_u32 %s, %s, %d" % (sr(oXk2), sr(oXk2), WS_A3))
    e("s_lshl_b32 %s, %s, 15" % (sr(oWk2), sr(sWave)))
    e("s_lshl_b32 %s, %s, 8" % (sr(oT0), sr(oTn)))
    e("s_add_u32 %s, %s, %s" % (sr(oWk2), sr(oWk2), sr(oT0)))
    e("s_mul_i32 %s, %s, %d" % (sr(oT0), sr(oRole), 4 * 32 * 1024))
    e("s_add_u32 %s, %s, %s" % (sr(oXk), sr(oXk2), sr(oT0)))
    e("s_add_u32 %s, %s, %d" % (sr(oXk), sr(oXk), 256 * 1024))
    e("s_mul_i32 %s, %s, %d" % (sr(oT0), sr(oRole), 4 * 512 * 2048))
    e("s_add_u32 %s, %s, %s" % (sr(oWk), sr(oWk2), sr(oT0)))

    e("s_mul_i32 %s, %s, %d" % (sr(oT0), sr(oRole), 3 * 32 * 1024))
    e("s_add_u32 %s, %s, %s" % (sr(oXk2), sr(oXk2), sr(oT0)))
    e("s_mul_i32 %s, %s, %d" % (sr(oT0), sr(oRole), 3 * 512 * 2048))
    e("s_add_u32 %s, %s, %s" % (sr(oWk2), sr(oWk2), sr(oT0)))
    e("s_add_u32 %s, %s, 6" % (sr(oIter), sr(oRole)))
    e("s_lshl_b32 %s, %s, 1" % (sr(oSw), sr(oRole)))
    e("s_add_u32 %s, %s, 3" % (sr(oSw), sr(oSw)))
    e("s_lshl_b32 %s, %s, 7" % (sr(oC3), sr(oTm)))
    e("s_add_u32 %s, %s, %d" % (sr(oC3), sr(oC3), WS_F3))
    e("s_waitcnt vmcnt(0) lgkmcnt(0)")
    e("s_barrier")
    e("s_mov_b32 %s, %s" % (sr(SRD_W), sr(oWD)))
    e("s_mov_b32 %s, %s" % (sr(SRD_W + 1), sr(oWD + 1)))
    e("s_mov_b32 %s, %d" % (sr(SRD_W + 2), 3584 * 2048))
    e("s_mov_b32 %s, %s" % (sr(SRD_OUT), sr(oOUT)))
    e("s_mov_b32 %s, %s" % (sr(SRD_OUT + 1), sr(oOUT + 1)))
    poll_check(a, vPoll2, SRD_WS, sr(aPl), 64, oT0)
    for i in range(7):
        pre, d, x, post = loads3(i)
        e(pre)
        e("s_nop 0")
        for s in d + x + post:
            e(s)


def part3(a, name):
    e = a.e
    for X in range(2):
        e("s_lshl_b32 %s, %s, 7" % (sr(aThr[X]), sr(aQb[X])))
        e("s_lshl_b32 %s, %s, 2" % (sr(aT1), sr(aHead)))
        e("s_add_u32 %s, %s, %s" % (sr(aThr[X]), sr(aThr[X]), sr(aT1)))
        e("s_add_u32 %s, %s, %s" % (sr(aThr[X]), sr(aThr[X]), sr(sWave)))
        e("s_add_u32 %s, %s, %d" % (sr(aThr[X]), sr(aThr[X]), WS_F3))
    flag_store(a, "byte", 14, "1", SRD_WS, sr(aThr[1]), wave0=False)
    e("s_waitcnt vmcnt(61)")
    for r in wreads3(0, 0):
        e(r)
    step3(a, 0, zero=True, vm=53)
    e("s_branch %s_o1" % name)
    align(a)
    a.label(name + "_oloop")
    stamp_ts(a)
    step3(a, 0)
    a.label(name + "_o1")
    l1_, l2_ = a.newlabel("osw"), a.newlabel("opl")
    e("s_cmp_lg_u32 %s, %s" % (sr(oIter), sr(oSw)))
    e("s_cbranch_scc1 %s" % l1_)
    e("s_waitcnt vmcnt(24)")
    poll_check(a, vPoll3, SRD_WS, sr(oC3), 32, oT0)
    e("s_mov_b32 %s, %s" % (sr(SRD_W), sr(oWO)))
    e("s_mov_b32 %s, %s" % (sr(SRD_W + 1), sr(oWO + 1)))
    e("s_mov_b32 %s, %d" % (sr(SRD_W + 2), 4096 * 2048))
    e("s_mov_b32 %s, %s" % (sr(oXk), sr(oXk2)))
    e("s_mov_b32 %s, %s" % (sr(oWk), sr(oWk2)))
    e("v_subrev_u32 %s, 8192, %s" % (vr(vWd3[1]), vr(vWd3[1])))
    e("v_add_u32 %s, 8192, %s" % (vr(vWd3[2]), vr(vWd3[2])))
    a.label(l1_)
    for i in range(1, 8):
        step3(a, i)
        if i == 5:
            l3_ = a.newlabel("opi")
            e("s_sub_u32 %s, %s, 1" % (sr(oT0), sr(oIter)))
            e("s_cmp_lg_u32 %s, %s" % (sr(oT0), sr(oSw)))
            e("s_cbranch_scc1 %s" % l3_)
            e(poll_issue(vPoll3, SRD_WS, sr(oC3)))
            a.label(l3_)
    e("s_add_u32 %s, %s, 6" % (sr(oT0), sr(oRole)))
    e("s_cmp_lg_u32 %s, %s" % (sr(oIter), sr(oT0)))
    e("s_cbranch_scc1 %s" % l2_)
    flag_store(a, "byte", 14, "1", SRD_WS, sr(aThr[0]), wave0=False)
    a.label(l2_)
    e("s_sub_u32 %s, %s, 1" % (sr(oIter), sr(oIter)))
    e("s_cmp_lg_u32 %s, 0" % sr(oIter))
    e("s_cbranch_scc1 %s_oloop" % name)
    step3(a, 0)
    for i in range(1, 8):
        step3(a, i, do_load=False, do_read=(i < 7), vm=(52 - 8 * i) if i < 7 else 0)
    stamp_ts(a)
    e("v_add_u32 v2, %s, %s" % (sr(oM0), vr(vLane16)))
    e("s_xor_b32 %s, %s, 0x10000" % (sr(oT1), sr(oM0)))
    e("v_add_u32 v3, %s, %s" % (sr(oT1), vr(vLane16)))
    e("s_xor_b32 %s, %s, 0x8000" % (sr(oT1), sr(oM0)))
    e("v_add_u32 v4, %s, %s" % (sr(oT1), vr(vLane16)))
    e("s_lshl_b32 %s, %s, 16" % (sr(oT1), sr(oTile)))
    e("s_lshl_b32 %s, %s, 14" % (sr(oT2), sr(sWave)))
    e("s_add_u32 %s, %s, %s" % (sr(oT1), sr(oT1), sr(oT2)))
    e("s_add_u32 %s, %s, %d" % (sr(oT1), sr(oT1), WS_P))
    e("s_lshl_b32 %s, %s, 7" % (sr(oT2), sr(oTile)))
    e("s_add_u32 %s, %s, %d" % (sr(oT2), sr(oT2), WS_FP))
    for q in range(32):
        e("ds_write_b128 v2, %s offset:%d" % (ar(aACC + 4 * q, 4), q * 1024))
    e("s_waitcnt lgkmcnt(0)")
    e("s_barrier")
    for half in (1, 0):
        for q in range(16):
            e("ds_read_b128 %s, v3 offset:%d" % (vr(vTMP + 4 * q, 4), (half * 16 + q) * 1024))
        for q in range(16):
            e("s_waitcnt lgkmcnt(%d)" % (15 - q))
            for i in range(0, 4, 2):
                r = vACC + half * 64 + 4 * q + i
                e("v_pk_add_f32 %s, %s, %s" % (vr(r, 2), vr(r, 2), vr(vTMP + 4 * q + i, 2)))
    e("s_barrier")
    for q in range(16):
        e("ds_write_b128 v2, %s offset:%d" % (vr(vACC + 64 + 4 * q, 4), q * 1024))
    e(poll_issue(5, SRD_WS, sr(oT2)))
    e("s_waitcnt lgkmcnt(0)")
    e("s_barrier")
    for q in range(16):
        e("ds_read_b128 %s, v4 offset:%d" % (vr(vTMP + 4 * q, 4), q * 1024))
    for q in range(16):
        e("s_waitcnt lgkmcnt(%d)" % (15 - q))
        for i in range(0, 4, 2):
            r = vACC + 4 * q + i
            e("v_pk_add_f32 %s, %s, %s" % (vr(r, 2), vr(r, 2), vr(vTMP + 4 * q + i, 2)))
    stamp_ts(a)
    e("s_cmp_lg_u32 %s, 0" % sr(oRole))
    e("s_cbranch_scc1 %s_cons" % name)
    for q in range(16):
        if q and q % 4 == 0:
            e("s_add_u32 %s, %s, 4096" % (sr(oT1), sr(oT1)))
        e("buffer_store_dwordx4 %s, %s, %s, %s offen offset:%d sc1" % (vr(vACC + 4 * q, 4), vr(vLane16), sr(SRD_WS, 4), sr(oT1), (q & 3) * 1024))
    e("s_waitcnt vmcnt(0)")
    e("s_barrier")
    flag_store(a, "dword", 5, "0x%x" % ALL1, SRD_WS, sr(oT2))
    e("s_branch %s_fin" % name)
    a.label(name + "_cons")
    e("s_waitcnt vmcnt(0)")
    poll_check(a, 5, SRD_WS, sr(oT2), 1, oT0)
    a.label(name + "_got")
    for q in range(16):
        if q and q % 4 == 0:
            e("s_add_u32 %s, %s, 4096" % (sr(oT1), sr(oT1)))
        e("buffer_load_dwordx4 %s, %s, %s, %s offen offset:%d sc1" % (vr(vTMP + 4 * q, 4), vr(vLane16), sr(SRD_WS, 4), sr(oT1), (q & 3) * 1024))
    e("v_and_b32 v2, 31, v0")
    e("v_lshlrev_b32 v2, 11, v2")
    e("v_lshrrev_b32 v3, 5, v0")
    e("v_lshl_add_u32 v2, v3, 4, v2")
    e("s_lshl_b32 %s, %s, 2" % (sr(oT0), sr(oTm)))
    e("s_add_u32 %s, %s, %s" % (sr(oT0), sr(oT0), sr(sWave)))
    e("s_lshl_b32 %s, %s, 16" % (sr(oT0), sr(oT0)))
    e("s_lshl_b32 %s, %s, 8" % (sr(oT2), sr(oTn)))
    e("s_add_u32 %s, %s, %s" % (sr(oT0), sr(oT0), sr(oT2)))
    for pq in range(8):
        e("s_waitcnt vmcnt(%d)" % (14 - pq))
        r = vACC + 8 * pq
        for i in range(0, 8, 2):
            e("v_pk_add_f32 %s, %s, %s" % (vr(r + i, 2), vr(r + i, 2), vr(vTMP + 8 * pq + i, 2)))
        for i in range(4):
            e("v_cvt_pk_bf16_f32 %s, %s, %s" % (vr(r + i), vr(r + 2 * i), vr(r + 2 * i + 1)))
        e("s_nop 1")
        e("v_permlane32_swap_b32 %s, %s" % (vr(r), vr(r + 2)))
        e("v_permlane32_swap_b32 %s, %s" % (vr(r + 1), vr(r + 3)))
        e("buffer_store_dwordx4 %s, v2, %s, %s offen offset:%d" % (vr(r, 4), sr(SRD_OUT, 4), sr(oT0), pq * 32))
    a.label(name + "_fin")
    stamp_ts(a)


NAME = "gated_mix__compressed_kv_cla__geglu_ffn__prompt_kernel"
HEADER = open('gated_mix__compressed_kv_cla__geglu_ffn__prompt.s.ref').read().split("; Override launch")[0]


def build(opt):
    OPT.clear()
    OPT.update(opt)
    M16HACK[0] = opt.get('m16hack', 0)
    a = Asm()
    kernel_header(a, NAME)
    n = "mk"
    handlers = []
    a.e("s_cmp_ge_u32 s2, 256")
    a.e("s_cbranch_scc1 mk_end")
    part1(a, n, att_prologue)
    part2(a, n, out_prologue, handlers)
    part3(a, n)
    a.label("mk_end")
    a.e("s_endpgm")
    for h in handlers:
        emit_handler(a, *h)
    if opt.get('list', 1):
        out = HEADER + "; @launch kernel=%s grid=(256,1,1) block=(256,1,1) lds=%d\n" % (NAME, LDS)
    else:
        out = HEADER + "; @launch grid=(256,1,1) block=(256,1,1) lds=%d\n" % LDS
    out += '.amdgcn_target "amdgcn-amd-amdhsa--gfx950"\n.text\n' + a.text()
    out += '.section .rodata,"a"\n.p2align 6\n' + kernel_desc(NAME, 512, 102, 256)
    return out


if __name__ == "__main__":
    open(sys.argv[1], "w").write(build(json.loads(sys.argv[2]) if len(sys.argv) > 2 else {}))
```

```python
import sys, json, struct
from asmlib import *

WS_Q = 0
WS_K = 16 << 20
WS_V = 32 << 20
WS_A3 = 48 << 20
WS_G = 80 << 20
WS_P = 81 << 20
WS_STAMP = 128 << 20
WS_SIZE = 268435456
LDS = 163840
WS_F2 = (80 << 20) + 65536
WS_F3 = WS_F2 + 4096
WS_FP = WS_F2 + 8192
WS_FQ = WS_F2 + 65536
WS_F1 = WS_F2 + 32768
ALL1 = 0x01010101

OPT = {}


def f32(x):
    return "0x%08x" % struct.unpack("<I", struct.pack("<f", x))[0]


sPfOff = 3
sPfA, sPfB = 4, 6
sPoll = 7
SRD_DBG, SRD_P = 8, 12
SRD_X, SRD_W, SRD_WS = 44, 48, 52
sWave = 67
sTs = 101
SC = " sc1"


def stamp_ts(a):
    if not OPT.get('ts'):
        return
    l = a.newlabel("ts")
    a.e("s_cmp_lg_u32 %s, 0" % sr(sWave))
    a.e("s_cbranch_scc1 %s" % l)
    a.e("s_memtime vcc")
    a.e("s_waitcnt lgkmcnt(0)")
    a.e("s_mov_b64 exec, 1")
    a.e("v_mov_b32 v30, vcc_lo")
    a.e("v_mov_b32 v31, vcc_hi")
    a.e("s_memrealtime vcc")
    a.e("buffer_store_dwordx2 v[30:31], off, %s, %s" % (sr(SRD_WS, 4), sr(sTs)))
    a.e("s_waitcnt lgkmcnt(0)")
    a.e("v_mov_b32 v30, vcc_lo")
    a.e("v_mov_b32 v31, vcc_hi")
    a.e("buffer_store_dwordx2 v[30:31], off, %s, %s offset:8" % (sr(SRD_WS, 4), sr(sTs)))
    a.e("s_add_u32 %s, %s, 16" % (sr(sTs), sr(sTs)))
    a.e("s_mov_b64 exec, -1")
    a.label(l)


vFl4 = 29


def poll_issue(vdst, srd, soff):
    return "buffer_load_dword %s, %s, %s, %s offen sc1" % (vr(vdst), vr(vFl4), sr(srd, 4), soff)


def poll_check(a, vdst, srd, soff, lanes, tmp, val=ALL1, masked=False, fail=None, sleep=8):
    ok = a.newlabel("pok")
    sp = a.newlabel("pspin")

    def test():
        if masked:
            a.e("v_and_b32 v30, %s, %s" % (sr(sPoll), vr(vdst)))
            a.e("v_cmp_ne_u32 vcc, %s, v30" % sr(sPoll))
        else:
            a.e("v_cmp_ne_u32 vcc, %s, %s" % (sr(sPoll), vr(vdst)))
        if lanes == 64:
            a.e("s_nop 1")
            a.e("s_cmp_eq_u64 vcc, 0")
        elif lanes == 32:
            a.e("s_nop 1")
            a.e("s_cmp_eq_u32 vcc_lo, 0")
        elif lanes == 16:
            a.e("s_nop 1")
            a.e("s_and_b32 vcc_lo, vcc_lo, 0xffff")
            a.e("s_cmp_eq_u32 vcc_lo, 0")
        else:
            a.e("s_nop 1")
            a.e("s_bitcmp0_b32 vcc_lo, 0")
    a.e("s_mov_b32 %s, 0x%x" % (sr(sPoll), val))
    a.e("s_mov_b32 %s, 0x40000" % sr(tmp))
    test()
    if fail:
        a.e("s_cbranch_scc0 %s" % fail)
        return
    a.e("s_cbranch_scc1 %s" % ok)
    a.label(sp)
    a.e("s_sleep %d" % sleep)
    a.e(poll_issue(vdst, srd, soff))
    a.e("s_sub_u32 %s, %s, 1" % (sr(tmp), sr(tmp)))
    a.e("s_cmp_eq_u32 %s, 0" % sr(tmp))
    a.e("s_cbranch_scc1 %s" % ok)
    a.e("s_waitcnt vmcnt(0)")
    test()
    a.e("s_cbranch_scc0 %s" % sp)
    a.label(ok)


def flag_store(a, kind, vtmp, val, srd, soff, wave0=True):
    l = a.newlabel("fs")
    if wave0:
        a.e("s_cmp_lg_u32 %s, 0" % sr(sWave))
        a.e("s_cbranch_scc1 %s" % l)
    a.e("v_mov_b32 %s, %s" % (vr(vtmp), val))
    a.e("s_mov_b64 exec, 1")
    a.e("buffer_store_%s %s, off, %s, %s sc1" % (kind, vr(vtmp), sr(srd, 4), soff))
    a.e("s_mov_b64 exec, -1")
    a.label(l)


S_X, S_CKV, S_WQ, S_WUK, S_WUV, S_WO, S_BX, S_WG, S_WU, S_WD, S_GW, S_OUT, S_DBG, S_WS = [16 + 2 * i for i in range(14)]
sXk, sXk2, sWk, sWstep, sXrow32 = 56, 57, 58, 59, 60
sXdst, sXbeg, sXend = 61, 62, 63
sWm0a, sWm0b = 64, 65
sIter, sJob = 66, 68
sTm, sTn8, sTn7 = 69, 70, 71
sRslot, sDelta, sCp, sCm = 72, 73, 74, 75
sT0, sT1, sT2, sT3 = 76, 77, 78, 79
sOb = 80
sNXlo, sNXhi, sNXn, sNXk, sNXrow32 = 81, 82, 83, 84, 85
sNWlo, sNWhi, sNWn, sNWk, sNWstep, sNm0a, sNm0b = 86, 87, 88, 89, 90, 91, 92
sCA, sCC = 94, 96
sGm0a, sGm0b, sGoff = 98, 99, 100

vXr = [1, 2]
vXdl = [3, 4]
vWr8 = [5, 6, 7, 8]
vWr7 = 9
vXd = [10, 11, 12, 13]
vWd = [14, 15, 16, 17]
vXdN = [18, 19, 20, 21]
vWdN = [22, 23, 24, 25]
vSt = 26
vPf, vPfD = 27, 28
ACC0 = 32
XBASE = 65536


def accq(q):
    if q < 56:
        return ('v', ACC0 + 4 * q)
    return ('a', 4 * (q - 56))


def fragX(xs, tb):
    return 32 + xs * 16 + 4 * tb


def fragW(h, nbl):
    return 64 + h * 32 + 4 * nbl


def mfmas(kind, half, xs, zero=False):
    NBH = 7 if kind == 'G' else 8
    out = []
    for nbl in range(NBH):
        for tb in range(4):
            d = reg(accq((half * NBH + nbl) * 4 + tb), 4)
            w = ar(fragW(half, nbl), 4)
            x = ar(fragX(xs, tb), 4)
            A, B = (x, w) if kind == 'V' else (w, x)
            out.append("v_mfma_f32_16x16x32_bf16 %s, %s, %s, %s" % (d, A, B, "0" if zero else d))
    return out


def reads(kind, p, half):
    slot = p % 4
    pp = p & 1
    out = []
    if half == 0:
        for tb in range(4):
            addr, off = vXr[pp], tb * 2048
            out.append("ds_read_b128 %s, %s offset:%d" % (ar(fragX(pp, tb), 4), vr(addr), off))
    NBH = 7 if kind == 'G' else 8
    for nbl in range(NBH):
        for t in range(2):
            if kind == 'G':
                addr = vWr7
                off = slot * 16384 + half * 7296 + 4 * t * 224 + nbl * 32
            else:
                addr = vWr8[(nbl >> 1) & 3]
                off = slot * 16384 + t * 2048 + half * 256 + (nbl & 1) * 32
            out.append("ds_read_b64_tr_b16 %s, %s offset:%d" % (ar(fragW(half, nbl) + 2 * t, 2), vr(addr), off))
    return out


def dmaW(slot):
    g = []
    for j in range(4):
        l = []
        if j == 0:
            l.append("s_add_u32 m0, %s, %d" % (sr(sWm0a), slot * 16384))
        if j == 3:
            l.append("s_add_u32 m0, %s, %d" % (sr(sWm0b), slot * 16384))
        l.append(("DMA", "buffer_load_dwordx4 %s, %s, %s offen offset:%d lds" % (vr(vWd[j]), sr(SRD_W, 4), sr(sWk), j * 1024)))
        g.append(l)
    g[3].append("s_add_u32 %s, %s, %s" % (sr(sWk), sr(sWk), sr(sWstep)))
    return g


def dmaX(half):
    g = []
    for j in range(4):
        l = []
        if j == 0:
            if half == 0:
                l.append("s_mov_b32 m0, %s" % sr(sXdst))
            else:
                l.append("s_add_u32 m0, %s, 4096" % sr(sXdst))
        l.append(("DMA", "buffer_load_dwordx4 %s, %s, %s offen offset:%d lds" % (
            vr(vXd[j]), sr(SRD_X, 4), sr(sXk if half == 0 else sXk2), j * 1024)))
        g.append(l)
    if half == 0:
        g[3].append("s_add_u32 %s, %s, %s" % (sr(sXk2), sr(sXk), sr(sXrow32)))
        g[3].append("s_add_u32 %s, %s, 128" % (sr(sXk), sr(sXk)))
    else:
        g[3].append("s_add_u32 %s, %s, 8192" % (sr(sXdst), sr(sXdst)))
        g[3].append("s_cmp_eq_u32 %s, %s" % (sr(sXdst), sr(sXend)))
        g[3].append("s_cselect_b32 %s, %s, %s" % (sr(sXdst), sr(sXbeg), sr(sXdst)))
    return g


def flat_dma(groups):
    out = []
    for l in groups:
        prev_m0 = False
        for s in l:
            if isinstance(s, tuple):
                if prev_m0:
                    out.append("s_nop 0")
                out.append(s[1])
                prev_m0 = False
            else:
                out.append(s)
                prev_m0 = " m0," in s
    return out


def group(a, kind_m, half, xs, zero, rd, dma, extra=None, flex=None):
    m = mfmas(kind_m, half, xs, zero) if kind_m else []
    n = len(m)
    fill = {g: [] for g in range(n)}
    if n == 0:
        for r in rd:
            a.e(r)
        for x in flat_dma(dma):
            a.e(x)
        return
    for i, r in enumerate(rd):
        fill[i].append(r)
    pos = n - OPT.get('dpos', 20)
    for l in dma:
        pre, post, seen = [], [], False
        for sx in l:
            if isinstance(sx, tuple):
                seen = True
                post.append(sx[1])
            elif not seen:
                pre.append(sx)
            else:
                post.append(sx)
        if pre:
            fill[pos - 1].extend(pre)
        fill[pos].append(post[0])
        if post[1:]:
            fill[pos + 1].extend(post[1:])
        pos += 4
    for gi, xs_ in (extra or []):
        if gi < 0:
            gi += n
        fill[gi].extend(xs_)
    fl = list(flex or [])
    slots = [g for g in range(n - 1) if len(fill[g]) == 0] + [g for g in range(n - 1) if len(fill[g]) <= 1]
    slots = sorted(slots[:len(fl)])
    assert len(slots) == len(fl)
    for g, x in zip(slots, fl):
        fill[g].append(x)
    interleave(a, m, fill)


SRD_ST = 40
sStA, sStB, sStD, sStE = 26, 27, 28, 29
STASH = 128
ST_IMM = [0, 1024, 2048, 3072]


def st_moves(p):
    out = []
    for lvl in range(3):
        for c in range(8 * p, 8 * p + 8):
            out.append("v_accvgpr_mov_b32 %s, %s" % (ar(STASH + 32 * lvl + c), ar(STASH + 32 * (lvl + 1) + c)))
    return out


def st_stores(p):
    out = []
    for x in range(2):
        i = 2 * p + x
        out.append("buffer_store_dwordx4 %s, %s, %s, %s offen offset:%d%s" % (
            ar(STASH + 4 * i, 4), vr(vSt), sr(SRD_WS, 4), sr(sStA if i < 4 else sStB), ST_IMM[i & 3], SC))
    return out


def st_advance():
    return ["s_add_u32 %s, %s, %s" % (sr(sStA), sr(sStA), sr(sStD)),
            "s_add_u32 %s, %s, 4096" % (sr(sStB), sr(sStA)),
            "s_xor_b32 %s, %s, %d" % (sr(sStD), sr(sStD), 8192 ^ (524288 - 8192))]


def xr_update(s):
    return "v_add_u32 %s, %s, %s" % (vr(vXr[s]), sr(sDelta), vr(vXr[s]))


def delta_update():
    return ["s_add_u32 %s, %s, 1" % (sr(sRslot), sr(sRslot)),
            "s_cmp_eq_u32 %s, 3" % sr(sRslot),
            "s_cselect_b32 %s, %s, %s" % (sr(sDelta), sr(sCm), sr(sCp)),
            "s_cselect_b32 %s, 0, %s" % (sr(sRslot), sr(sRslot))]


def pf_setup():
    lst = sPfA
    return [
        "s_and_b32 %s, %s, 15" % (sr(sT2), sr(lst)),
        "s_lshl_b32 %s, %s, 3" % (sr(sT2), sr(sT2)),
        "s_load_dwordx2 %s, s[0:1], %s" % (sr(SRD_P, 2), sr(sT2)),
        "s_bfe_u32 %s, %s, 0x40004" % (sr(sT3), sr(lst)),
        "s_cmp_eq_u32 %s, 15" % sr(sT3),
        "s_cselect_b32 %s, 0, -1" % sr(sPfB),
        "s_lshl_b32 %s, %s, 20" % (sr(sT3), sr(sT3)),
        "s_add_u32 %s, %s, %s" % (sr(sT3), sr(sT3), sr(sPfOff)),
        "s_lshr_b64 %s, %s, 8" % (sr(lst, 2), sr(lst, 2)),
        "s_or_b32 %s, %s, 0xf0000000" % (sr(lst + 1), sr(lst + 1)),
    ]


def pf_load():
    return "buffer_load_dword %s, %s, %s, %s offen" % (vr(vPfD), vr(vPf), sr(SRD_P, 4), sr(sT3))


def pf_lists(a, A):
    v = 0
    for i in range(8):
        sl, mb = A[i] if i < len(A) else (0, 15)
        v |= (sl | (mb << 4)) << (8 * i)
    a.e("s_mov_b32 %s, 0x%x" % (sr(sPfA), v & 0xffffffff))
    a.e("s_mov_b32 %s, 0x%x" % (sr(sPfA + 1), v >> 32))


def switchX(a):
    for d, s in ((SRD_X, sNXlo), (SRD_X + 1, sNXhi), (SRD_X + 2, sNXn), (sXk, sNXk), (sXrow32, sNXrow32)):
        a.e("s_mov_b32 %s, %s" % (sr(d), sr(s)))


def switchW(a):
    for d, s in ((SRD_W, sNWlo), (SRD_W + 1, sNWhi), (SRD_W + 2, sNWn), (sWk, sNWk), (sWstep, sNWstep), (sWm0a, sNm0a), (sWm0b, sNm0b)):
        a.e("s_mov_b32 %s, %s" % (sr(d), sr(s)))


def nwait(st, pf):
    tail = (2 if st else 0) + (1 if pf else 0)
    return tail + 2 * (8 + tail)


def interval(a, kind, p, half='both', kindA=None, zero=False, st=False, pf=False, vm=None, pre=None):
    mv = st_moves((p - 1) % 4) if st and not (zero and p == 0) else []
    if half in ('both', 'A'):
        a.e("s_waitcnt vmcnt(%d) lgkmcnt(0)" % (nwait(st, pf) if vm is None else vm))
        a.e("s_barrier")
        for x in (pre or []):
            a.e(x)
        ka = kind if kindA is None else kindA
        ex = []
        if ka == 'none':
            ka = None
        if p == 1 and pf:
            ps = pf_setup()
            ex += [(-7, ps[0:2]), (-6, ps[2:4]), (-5, ps[4:6]), (-3, ps[6:8]), (-2, ps[8:10])]
        if p == 0 and st:
            sa = st_advance()
            ex += [(-7, sa[0:2]), (-6, sa[2:3])]
        if p & 1:
            du = delta_update()
            ex += [(-11, du[0:1]), (-10, du[1:4]), (-4, [xr_update(0), xr_update(1)])]
        group(a, ka, 1, (p - 1) & 1, zero, reads(kind, p, 0), dmaW((p + 3) % 4), ex, mv[:8])
    if half in ('both', 'B'):
        a.e("s_waitcnt lgkmcnt(0)")
        ex = []
        if pf:
            ex.append((-10, ["s_cmp_eq_u32 %s, %d" % (sr(sWave), p), "s_cselect_b32 %s, %s, 0" % (sr(SRD_P + 2), sr(sPfB))]))
        if st:
            ss = st_stores(p)
            ex += [(-6, [ss[0]]), (-4, [ss[1]])]
        if pf:
            ex.append((-3, [pf_load()]))
        group(a, kind, 0, p & 1, zero, reads(kind, p, 1), dmaX(p & 1), ex, mv[8:])


def align(a):
    if OPT.get('align', 1):
        a.raw(".p2align 6")


def loop(a, kind, name, vswitch, hook=None, st=False, pf=False, last=1, switch=True, hook3=None):
    align(a)
    a.label(name + "_top")
    interval(a, kind, 0, 'A', st=st, pf=pf)
    if hook:
        hook(a)
    if switch:
        a.e("s_cmp_lg_u32 %s, 1" % sr(sIter))
        a.e("s_cbranch_scc1 %s_nsx" % name)
        switchX(a)
        vswitch(a, 'X')
        a.label(name + "_nsx")
    interval(a, kind, 0, 'B', st=st, pf=pf)
    stamp_ts(a)
    if switch:
        a.e("s_cmp_lg_u32 %s, 1" % sr(sIter))
        a.e("s_cbranch_scc1 %s_nsw" % name)
        switchW(a)
        vswitch(a, 'W')
        a.label(name + "_nsw")
    interval(a, kind, 1, 'A', st=st, pf=pf)
    a.label(name + "_entry")
    interval(a, kind, 1, 'B', st=st, pf=pf)
    interval(a, kind, 2, st=st, pf=pf)
    if hook3:
        hook3(a)
    interval(a, kind, 3, st=st, pf=pf)
    a.e("s_sub_u32 %s, %s, 1" % (sr(sIter), sr(sIter)))
    a.e("s_cmp_lg_u32 %s, %d" % (sr(sIter), last - 1))
    a.e("s_cbranch_scc1 %s_top" % name)


def job_start(a, kind, name, st, pf):
    interval(a, kind, 0, 'B', zero=True, st=st, pf=pf)
    stamp_ts(a)
    interval(a, kind, 1, 'A', zero=True, st=st, pf=pf, vm=19)
    a.e("s_branch %s_entry" % name)


def epilogue_kqv(a, kind, scale=None):
    e = a.e
    e("s_mov_b32 %s, %s" % (sr(sStA), sr(sOb)))
    e("s_add_u32 %s, %s, 4096" % (sr(sStB), sr(sOb)))
    e("s_mov_b32 %s, 8192" % sr(sStD))
    e("s_mov_b32 %s, 0" % sr(SRD_P + 2))
    for i in range(4):
        e(pf_load())
    chunks = []
    if kind == 'V':
        for db in range(8):
            for tb in range(4):
                sq = 8 * ((db >> 2) * 2 + (tb >> 1)) + (tb & 1) * 4 + (db & 3)
                chunks.append((2 * db * 4 + tb, (2 * db + 1) * 4 + tb, sq))
    else:
        for nb in range(16):
            for a2 in range(2):
                sq = 8 * ((nb >> 3) * 2 + a2) + (nb & 7)
                chunks.append((nb * 4 + 2 * a2, nb * 4 + 2 * a2 + 1, sq))
    pend = []
    for q0, q1, sq in chunks:
        rs = []
        for n_, q in enumerate((q0, q1)):
            k, r = accq(q)
            if k == 'a':
                rv = ACC0 + 4 * (q - 56)
                for i in range(4):
                    e("v_accvgpr_read_b32 %s, %s" % (vr(rv + i), ar(r + i)))
                r = rv
            rs.append(r)
        if scale is not None:
            for r in rs:
                for i in (0, 2):
                    e("v_pk_mul_f32 %s, %s, %s" % (vr(r + i, 2), vr(r + i, 2), sr(scale, 2)))
        for r in rs:
            for i in range(2):
                e("v_cvt_pk_bf16_f32 %s, %s, %s" % (vr(r + i), vr(r + 2 * i), vr(r + 2 * i + 1)))
        for x in pend:
            e(x)
        pend = ["v_permlane16_swap_b32 %s, %s" % (vr(rs[0] + i), vr(rs[1] + i)) for i in range(2)]
        for n_, r in enumerate(rs):
            for i in range(2):
                pend.append("v_accvgpr_write_b32 %s, %s" % (ar(STASH + 4 * sq + 2 * n_ + i), vr(r + i)))
    e("s_nop 1")
    for x in pend:
        e(x)


vG1 = [20, 21, 22, 23]


def epilogue_gu(a):
    e = a.e
    A = -2.0 * 1.4426950408889634 * 0.7978845608028654
    B = A * 0.044715
    e("s_mov_b32 %s, %s" % (sr(sCC), f32(B)))
    e("s_mov_b32 %s, %s" % (sr(sCC + 1), f32(B)))
    e("v_mov_b32 v10, %s" % f32(A))
    e("v_mov_b32 v11, %s" % f32(A))
    first = True
    pend = []
    for fb in range(7):
        for a2 in range(2):
            wk = [(fb, 2 * a2), (fb, 2 * a2 + 1)]
            G = [accq(f_ * 4 + tb)[1] for f_, tb in wk]
            U = [accq(28 + f_ * 4 + tb)[1] for f_, tb in wk]
            prs = [(G[0], U[0], 12, wk[0][1]), (G[0] + 2, U[0] + 2, 14, wk[0][1]), (G[1], U[1], 16, wk[1][1]), (G[1] + 2, U[1] + 2, 18, wk[1][1])]
            for g, u, t, tb in prs:
                e("v_pk_mul_f32 %s, %s, %s" % (vr(t, 2), vr(g, 2), vr(g, 2)))
            for x in pend:
                e(x)
            for g, u, t, tb in prs:
                e("v_pk_fma_f32 %s, %s, %s, v[10:11]" % (vr(t, 2), vr(t, 2), sr(sCC, 2)))
            for g, u, t, tb in prs:
                e("v_pk_mul_f32 %s, %s, %s" % (vr(t, 2), vr(t, 2), vr(g, 2)))
            for i in range(8):
                e("v_exp_f32 %s, %s" % (vr(12 + i), vr(12 + i)))
            for g, u, t, tb in prs:
                e("v_pk_mul_f32 %s, %s, %s" % (vr(g, 2), vr(g, 2), vr(u, 2)))
            if first:
                first = False
                e("s_waitcnt vmcnt(%d)" % ATT_PRO_LOADS)
                for t2 in range(4):
                    e("v_sub_f32 %s, 1.0, %s" % (vr(vG1[t2]), vr(vG1[t2])))
                    e("v_max_f32 %s, %s, %s" % (vr(vG1[t2]), f32(1e-30), vr(vG1[t2])))
                    e("v_rcp_f32 %s, %s" % (vr(vG1[t2]), vr(vG1[t2])))
                e("s_nop 0")
            for g, u, t, tb in prs:
                gp = vG1[tb] & ~1
                hi = vG1[tb] & 1
                e("v_pk_fma_f32 %s, %s, %s, %s op_sel:[0,%d,%d] op_sel_hi:[1,%d,%d]" % (vr(t, 2), vr(t, 2), vr(gp, 2), vr(gp, 2), hi, hi, hi, hi))
            for i in range(8):
                e("v_rcp_f32 %s, %s" % (vr(12 + i), vr(12 + i)))
            o = a2 * 480 * 1024 + fb * 1024
            e("s_nop 0")
            for g, u, t, tb in prs:
                e("v_pk_mul_f32 %s, %s, %s" % (vr(g, 2), vr(g, 2), vr(t, 2)))
            d = U[0]
            for n_, (g, u, t, tb) in enumerate(prs):
                e("v_cvt_pk_bf16_f32 %s, %s, %s" % (vr(d + n_), vr(g), vr(g + 1)))
            pend = ["s_add_u32 %s, %s, %d" % (sr(sT0), sr(sOb), o & ~4095),
                    "v_permlane16_swap_b32 %s, %s" % (vr(d), vr(d + 2)),
                    "v_permlane16_swap_b32 %s, %s" % (vr(d + 1), vr(d + 3)),
                    "buffer_store_dwordx4 %s, %s, %s, %s offen offset:%d%s" % (vr(d, 4), vr(vSt), sr(SRD_WS, 4), sr(sT0), o & 4095, SC)]
    e("s_nop 0")
    for x in pend:
        e(x)


N_H_STORES = 14


def decode_att(a, dhead, dpair, t0, t1):
    e = a.e
    e("s_and_b32 %s, s2, 7" % sr(t0))
    e("s_lshr_b32 %s, s2, 3" % sr(t1))
    if OPT.get('amap', 1):
        e("s_lshl_b32 %s, %s, 2" % (sr(dhead), sr(t0)))
        e("s_bfe_u32 %s, %s, 0x20002" % (sr(t0), sr(t1)))
        e("s_add_u32 %s, %s, %s" % (sr(dhead), sr(dhead), sr(t0)))
        e("s_and_b32 %s, %s, 3" % (sr(dpair), sr(t1)))
        e("s_lshr_b32 %s, %s, 4" % (sr(t1), sr(t1)))
        e("s_lshl_b32 %s, %s, 2" % (sr(t1), sr(t1)))
        e("s_add_u32 %s, %s, %s" % (sr(dpair), sr(dpair), sr(t1)))
    else:
        e("s_and_b32 %s, %s, 7" % (sr(dpair), sr(t1)))
        e("s_lshr_b32 %s, %s, 3" % (sr(t1), sr(t1)))
        e("s_lshl_b32 %s, %s, 2" % (sr(dhead), sr(t0)))
        e("s_add_u32 %s, %s, %s" % (sr(dhead), sr(dhead), sr(t1)))


sF1w, sF1r = 93, 34


def part1(a, name, att_prologue):
    e = a.e
    e("s_load_dwordx16 s[16:31], s[0:1], 0")
    e("s_load_dwordx8 s[32:39], s[0:1], 64")
    e("s_load_dwordx4 s[40:43], s[0:1], 96")
    e("v_lshrrev_b32 v27, 6, v0")
    e("v_and_b32 v0, 63, v0")
    e("v_readfirstlane_b32 %s, v27" % sr(sWave))
    e("v_lshlrev_b32 %s, 2, v0" % vr(vFl4))
    e("s_and_b32 %s, s2, 7" % sr(sT0))
    e("s_lshr_b32 %s, s2, 3" % sr(sT1))
    e("s_and_b32 %s, %s, 1" % (sr(sT2), sr(sT0)))
    e("s_lshl_b32 %s, %s, 2" % (sr(sT2), sr(sT2)))
    e("s_and_b32 %s, %s, 3" % (sr(sT3), sr(sT1)))
    e("s_add_u32 %s, %s, %s" % (sr(sTm), sr(sT2), sr(sT3)))
    e("s_lshr_b32 %s, %s, 1" % (sr(sT0), sr(sT0)))
    e("s_lshr_b32 %s, %s, 2" % (sr(sT2), sr(sT1)))
    e("s_lshl_b32 %s, %s, 3" % (sr(sT3), sr(sT0)))
    e("s_add_u32 %s, %s, %s" % (sr(sTn7), sr(sT3), sr(sT2)))
    e("s_and_b32 %s, %s, 3" % (sr(sT2), sr(sT2)))
    e("s_lshl_b32 %s, %s, 2" % (sr(sT3), sr(sT0)))
    e("s_add_u32 %s, %s, %s" % (sr(sTn8), sr(sT3), sr(sT2)))
    e("s_lshr_b32 %s, %s, 4" % (sr(sJob), sr(sT1)))
    for s in (SRD_X, SRD_W, SRD_WS, SRD_DBG, SRD_P):
        e("s_mov_b32 %s, 0x20000" % sr(s + 3))
    e("s_mov_b32 %s, %d" % (sr(SRD_WS + 2), WS_SIZE))
    e("s_mov_b32 %s, 256" % sr(SRD_DBG + 2))
    e("s_mov_b32 %s, 8192" % sr(sCp))
    e("s_mov_b32 %s, -16384" % sr(sCm))
    e("s_mov_b32 %s, 0" % sr(sRslot))
    e("s_mul_i32 %s, %s, 24576" % (sr(sXbeg), sr(sWave)))
    e("s_add_u32 %s, %s, %d" % (sr(sXbeg), sr(sXbeg), XBASE))
    e("s_add_u32 %s, %s, 24576" % (sr(sXend), sr(sXbeg)))
    e("s_mov_b32 %s, %s" % (sr(sXdst), sr(sXbeg)))
    T0, T1, T2, T3, T4 = 27, 28, 30, 31, 26
    e("v_lshrrev_b32 v%d, 3, v0" % T0)
    e("s_lshl_b32 %s, %s, 6" % (sr(sT0), sr(sWave)))
    e("v_add_u32 v%d, %s, v%d" % (T0, sr(sT0), T0))
    e("v_and_b32 v%d, 7, v0" % T1)
    e("v_lshrrev_b32 v%d, 4, v0" % T4)
    e("v_xor_b32 v%d, v%d, v%d" % (T1, T1, T4))
    e("v_xor_b32 v%d, 4, v%d" % (T4, T1))
    e("s_movk_i32 %s, 11" % sr(sT1))
    e("s_sub_u32 %s, %s, %s" % (sr(sT1), sr(sT1), sr(sJob)))
    for j in range(4):
        ch = T1 if (j & 1) == 0 else T4
        e("v_add_u32 v%d, %d, v%d" % (T2, 8 * j, T0))
        e("v_lshlrev_b32 v%d, 11, v%d" % (T3, T2))
        e("v_lshl_add_u32 v%d, v%d, 4, v%d" % (T3, ch, T3))
        e("v_subrev_u32 %s, %d, v%d" % (vr(vXdN[j]), 1024 * j, T3))
        e("v_lshlrev_b32 v%d, %s, v%d" % (T3, sr(sT1), T2))
        e("v_lshl_add_u32 v%d, v%d, 4, v%d" % (T3, ch, T3))
        e("v_subrev_u32 %s, %d, v%d" % (vr(vXd[j]), 1024 * j, T3))
    e("v_lshrrev_b32 v%d, 5, v0" % T0)
    e("s_lshl_b32 %s, %s, 3" % (sr(sT0), sr(sWave)))
    e("v_bfe_u32 v%d, v0, 2, 3" % T1)
    e("v_and_b32 v%d, 3, v0" % T4)
    e("v_lshlrev_b32 v%d, 4, v%d" % (T4, T4))
    for j in range(4):
        e("v_add_u32 v%d, %d, v%d" % (T2, 2 * j, T0))
        e("v_and_b32 v%d, 3, v%d" % (T3, T2))
        e("v_xor_b32 v%d, v%d, v%d" % (T3, T3, T1))
        e("v_add_u32 v%d, %s, v%d" % (T2, sr(sT0), T2))
        e("v_lshlrev_b32 v%d, 13, v%d" % (T2, T2))
        e("v_lshl_add_u32 v%d, v%d, 6, v%d" % (T2, T3, T2))
        e("v_add_u32 v%d, v%d, v%d" % (T2, T2, T4))
        e("v_subrev_u32 %s, %d, v%d" % (vr(vWd[j]), 1024 * j, T2))
    e("s_lshl_b32 %s, %s, 12" % (sr(sWm0a), sr(sWave)))
    e("s_mov_b32 %s, %s" % (sr(sWm0b), sr(sWm0a)))
    e("s_waitcnt lgkmcnt(0)")
    e("s_mov_b32 %s, %s" % (sr(SRD_WS), sr(S_WS)))
    e("s_mov_b32 %s, %s" % (sr(SRD_WS + 1), sr(S_WS + 1)))
    e("s_mov_b32 %s, %s" % (sr(SRD_DBG), sr(S_DBG)))
    e("s_mov_b32 %s, %s" % (sr(SRD_DBG + 1), sr(S_DBG + 1)))
    if OPT.get('ts'):
        e("s_lshl_b32 %s, s2, 11" % sr(sTs))
        e("s_add_u32 %s, %s, %d" % (sr(sTs), sr(sTs), WS_STAMP))
    stamp_ts(a)
    e("s_cmp_eq_u32 %s, 0" % sr(sJob))
    e("s_cselect_b32 %s, %s, %s" % (sr(SRD_X), sr(S_X), sr(S_CKV)))
    e("s_cselect_b32 %s, %s, %s" % (sr(SRD_X + 1), sr(S_X + 1), sr(S_CKV + 1)))
    e("s_cselect_b32 %s, %s, %s" % (sr(SRD_W), sr(S_WQ), sr(S_WUK)))
    e("s_cselect_b32 %s, %s, %s" % (sr(SRD_W + 1), sr(S_WQ + 1), sr(S_WUK + 1)))
    e("s_cselect_b32 %s, 8, 4" % sr(sIter))
    e("s_lshr_b32 %s, %d, %s" % (sr(SRD_X + 2), 2048 * 1024 * 2, sr(sJob)))
    e("s_lshr_b32 %s, %d, %s" % (sr(SRD_W + 2), 1024 * 4096 * 2, sr(sJob)))
    e("s_lshl_b32 %s, %s, 19" % (sr(sXk), sr(sTm)))
    e("s_lshr_b32 %s, %s, %s" % (sr(sXk), sr(sXk), sr(sJob)))
    e("s_lshr_b32 %s, 65536, %s" % (sr(sXrow32), sr(sJob)))
    e("s_lshl_b32 %s, %s, 9" % (sr(sWk), sr(sTn8)))
    e("s_mov_b32 %s, %d" % (sr(sWstep), 32 * 8192))
    e("s_mov_b32 %s, %s" % (sr(SRD_P), sr(S_X)))
    e("s_mov_b32 %s, %s" % (sr(SRD_P + 1), sr(S_X + 1)))
    e("s_mov_b32 %s, %d" % (sr(SRD_P + 2), 2048 * 1024 * 2))
    e("s_lshl_b32 %s, s2, 3" % sr(sT0))
    e("s_lshl_b32 %s, %s, 1" % (sr(sT1), sr(sWave)))
    e("s_add_u32 %s, %s, %s" % (sr(sT0), sr(sT0), sr(sT1)))
    e("s_lshl_b32 %s, %s, 11" % (sr(sT1), sr(sT0)))
    e("v_lshlrev_b32 v27, 5, v0")
    e("buffer_load_dwordx4 v[32:35], v27, %s, %s offen" % (sr(SRD_P, 4), sr(sT1)))
    e("buffer_load_dwordx4 v[36:39], v27, %s, %s offen offset:16" % (sr(SRD_P, 4), sr(sT1)))
    e("buffer_load_dwordx4 v[40:43], v27, %s, %s offen offset:2048" % (sr(SRD_P, 4), sr(sT1)))
    e("buffer_load_dwordx4 v[44:47], v27, %s, %s offen offset:2064" % (sr(SRD_P, 4), sr(sT1)))
    e("s_mov_b32 %s, %s" % (sr(SRD_P), sr(S_GW)))
    e("s_mov_b32 %s, %s" % (sr(SRD_P + 1), sr(S_GW + 1)))
    e("s_mov_b32 %s, 2048" % sr(SRD_P + 2))
    e("buffer_load_dwordx4 v[48:51], v27, %s, 0 offen" % sr(SRD_P, 4))
    e("buffer_load_dwordx4 v[52:55], v27, %s, 0 offen offset:16" % sr(SRD_P, 4))
    e("s_lshl_b32 %s, %s, 2" % (sr(sGoff), sr(sT0)))
    e("s_add_u32 %s, %s, %d" % (sr(sGoff), sr(sGoff), WS_G))
    for x in flat_dma(dmaW(0)) + flat_dma(dmaX(0)) + flat_dma(dmaX(1)) + flat_dma(dmaW(1)) + \
            flat_dma(dmaX(0)) + flat_dma(dmaW(2)) + flat_dma(dmaX(1)):
        e(x)
    e("v_and_b32 v%d, 15, v0" % T0)
    e("v_lshrrev_b32 v%d, 4, v0" % T1)
    e("v_lshrrev_b32 v%d, 1, v%d" % (T4, T0))
    e("v_lshlrev_b32 v%d, 7, v%d" % (T2, T0))
    e("v_add_u32 v%d, %s, v%d" % (T2, sr(sXbeg), T2))
    for s_ in range(2):
        e("v_add_u32 v%d, %d, v%d" % (T3, 4 * s_, T1))
        e("v_xor_b32 v%d, v%d, v%d" % (T3, T3, T4))
        e("v_lshl_add_u32 %s, v%d, 4, v%d" % (vr(vXr[s_]), T3, T2))
    e("v_and_b32 v%d, 3, v%d" % (T2, T0))
    e("v_bfe_u32 v%d, v%d, 2, 1" % (T3, T0))
    e("v_lshl_add_u32 v%d, v%d, 3, v%d" % (T2, T3, T2))
    e("v_bfe_u32 v%d, v%d, 3, 1" % (T3, T0))
    e("v_lshl_add_u32 v%d, v%d, 2, v%d" % (T2, T3, T2))
    e("v_lshrrev_b32 v%d, 1, v%d" % (T4, T2))
    e("v_lshlrev_b32 v%d, 7, v%d" % (T2, T2))
    e("v_add_u32 v%d, %s, v%d" % (T2, sr(sXbeg), T2))
    for s_ in range(2):
        e("v_add_u32 v%d, %d, v%d" % (T3, 4 * s_, T1))
        e("v_xor_b32 v%d, v%d, v%d" % (T3, T3, T4))
        e("v_lshl_add_u32 v%d, v%d, 4, v%d" % (T3, T3, T2))
        e("v_sub_u32 %s, v%d, %s" % (vr(vXdl[s_]), T3, vr(vXr[s_])))
    e("v_bfe_u32 v%d, v0, 2, 2" % T0)
    e("v_and_b32 v%d, 3, v0" % T2)
    e("v_lshl_add_u32 v%d, v%d, 3, v%d" % (T3, T1, T0))
    e("v_lshlrev_b32 v%d, 3, v%d" % (T2, T2))
    e("v_mul_u32_u24 %s, 224, v%d" % (vr(vWr7), T3))
    e("v_add_u32 %s, %s, v%d" % (vr(vWr7), vr(vWr7), T2))
    e("v_lshl_add_u32 v%d, v%d, 9, v%d" % (T3, T3, T2))
    for q in range(4):
        e("v_xor_b32 v%d, %d, v%d" % (T2, q, T0))
        e("v_lshl_add_u32 %s, v%d, 6, v%d" % (vr(vWr8[q]), T2, T3))
    e("s_and_b32 %s, %s, 1" % (sr(sT0), sr(sWave)))
    e("s_lshl_b32 %s, %s, 8" % (sr(sT1), sr(sT0)))
    e("v_add_u32 v%d, %s, v0" % (T0, sr(sT1)))
    for j in range(4):
        e("v_add_u32 v%d, %d, v%d" % (T1, 64 * j, T0))
        e("v_mul_u32_u24 v%d, 4682, v%d" % (T2, T1))
        e("v_lshrrev_b32 v%d, 16, v%d" % (T2, T2))
        e("v_mul_u32_u24 v%d, 14, v%d" % (T3, T2))
        e("v_sub_u32 v%d, v%d, v%d" % (T3, T1, T3))
        e("v_mul_u32_u24 v%d, 7168, v%d" % (T2, T2))
        e("v_lshl_add_u32 v%d, v%d, 4, v%d" % (T2, T3, T2))
        e("v_subrev_u32 %s, %d, v%d" % (vr(vWdN[j]), 1024 * j, T2))
    e("s_lshl_b32 %s, %s, 30" % (sr(sT1), sr(sT0)))
    e("v_or_b32 %s, %s, %s" % (vr(vWdN[3]), sr(sT1), vr(vWdN[3])))
    e("s_lshr_b32 %s, %s, 1" % (sr(sT1), sr(sWave)))
    e("s_mul_i32 %s, %s, 7296" % (sr(sT2), sr(sT1)))
    e("s_lshl_b32 %s, %s, 12" % (sr(sT3), sr(sT0)))
    e("s_add_u32 %s, %s, %s" % (sr(sGm0a), sr(sT2), sr(sT3)))
    e("s_cmp_eq_u32 %s, 0" % sr(sT0))
    e("s_cselect_b32 %s, %s, %d" % (sr(sGm0b), sr(sGm0a), 14464 - 3072))

    def set_next_gu():
        e("s_mov_b32 %s, %s" % (sr(sNXlo), sr(S_X)))
        e("s_mov_b32 %s, %s" % (sr(sNXhi), sr(S_X + 1)))
        e("s_mov_b32 %s, %d" % (sr(sNXn), 2048 * 1024 * 2))
        e("s_lshl_b32 %s, %s, 19" % (sr(sNXk), sr(sTm)))
        e("s_mov_b32 %s, 65536" % sr(sNXrow32))
        e("s_cmp_lt_u32 %s, 2" % sr(sWave))
        e("s_cselect_b32 %s, %s, %s" % (sr(sNWlo), sr(S_WG), sr(S_WU)))
        e("s_cselect_b32 %s, %s, %s" % (sr(sNWhi), sr(S_WG + 1), sr(S_WU + 1)))
        e("s_mov_b32 %s, %d" % (sr(sNWn), 1024 * 3584 * 2))
        e("s_mul_i32 %s, %s, 224" % (sr(sNWk), sr(sTn7)))
        e("s_mov_b32 %s, %d" % (sr(sNWstep), 32 * 7168))
        e("s_mov_b32 %s, %s" % (sr(sNm0a), sr(sGm0a)))
        e("s_mov_b32 %s, %s" % (sr(sNm0b), sr(sGm0b)))

    def set_next_v():
        e("s_mov_b32 %s, %s" % (sr(sNXlo), sr(S_CKV)))
        e("s_mov_b32 %s, %s" % (sr(sNXhi), sr(S_CKV + 1)))
        e("s_mov_b32 %s, %d" % (sr(sNXn), 2048 * 512 * 2))
        e("s_lshl_b32 %s, %s, 18" % (sr(sNXk), sr(sTm)))
        e("s_mov_b32 %s, 32768" % sr(sNXrow32))
        e("s_mov_b32 %s, %s" % (sr(sNWlo), sr(S_WUV)))
        e("s_mov_b32 %s, %s" % (sr(sNWhi), sr(S_WUV + 1)))
        e("s_mov_b32 %s, %d" % (sr(sNWn), 512 * 4096 * 2))
        e("s_lshl_b32 %s, %s, 9" % (sr(sNWk), sr(sTn8)))
        e("s_mov_b32 %s, %d" % (sr(sNWstep), 32 * 8192))
        e("s_mov_b32 %s, %s" % (sr(sNm0a), sr(sWm0a)))
        e("s_mov_b32 %s, %s" % (sr(sNm0b), sr(sWm0b)))

    e("s_cmp_eq_u32 %s, 0" % sr(sJob))
    e("s_cbranch_scc0 %s_nB" % name)
    set_next_gu()
    e("s_branch %s_nC" % name)
    a.label(name + "_nB")
    set_next_v()
    a.label(name + "_nC")
    e("s_lshl_b32 %s, %s, 14" % (sr(sT0), sr(sWave)))
    e("v_lshlrev_b32 %s, 4, v0" % vr(vSt))
    e("v_add_u32 %s, %s, %s" % (vr(vSt), sr(sT0), vr(vSt)))
    pf = OPT.get('pf', [[[2, 4], [4, 0], [7, 0], [8, 0], [7, 3], [8, 3]],
                        [] if OPT.get('apf', 1) else [[0, 15], [0, 15], [0, 15], [9, 0], [9, 3], [5, 0], [5, 4]]])
    pf_lists(a, pf[0])
    e("s_lshl_b32 %s, s2, 2" % sr(sPfOff))
    e("s_add_u32 %s, %s, %s" % (sr(sPfOff), sr(sPfOff), sr(sWave)))
    e("s_lshl_b32 %s, %s, 12" % (sr(sPfOff), sr(sPfOff)))
    e("v_lshlrev_b32 %s, 6, v0" % vr(vPf))
    e("s_mov_b32 %s, 0" % sr(sPfB))
    e("s_mov_b32 %s, 0" % sr(sT3))

    def vsw_k(a, which):
        if which == 'W':
            l = a.newlabel("vsw")
            a.e("s_cmp_lg_u32 %s, 0" % sr(sJob))
            a.e("s_cbranch_scc1 %s" % l)
            for j in range(4):
                a.e("v_mov_b32 %s, %s" % (vr(vWd[j]), vr(vWdN[j])))
            a.label(l)

    def vsw_v(a, which):
        for j in range(4):
            if which == 'W':
                a.e("v_mov_b32 %s, %s" % (vr(vWd[j]), vr(vWdN[j])))
            else:
                a.e("v_mov_b32 %s, %s" % (vr(vXd[j]), vr(vXdN[j])))

    def vsw_g(a, which):
        pass

    def hook_k(a):
        l1_ = a.newlabel("hk")
        a.e("s_cmp_lg_u32 %s, 3" % sr(sIter))
        a.e("s_cbranch_scc1 %s" % l1_)
        flag_store(a, "byte", 30, "1", SRD_DBG, "s2")
        a.label(l1_)

    def hook_g(a):
        l1_ = a.newlabel("hk")
        a.e("s_cmp_lg_u32 %s, 3" % sr(sIter))
        a.e("s_cbranch_scc1 %s" % l1_)
        flag_store(a, "dword", 24, "0x%x" % ALL1, SRD_WS, sr(sF1w))
        a.e(poll_issue(25, SRD_DBG, "0"))
        a.label(l1_)

    def hook_g3(a):
        l1_ = a.newlabel("hk")
        a.e("s_cmp_lg_u32 %s, 1" % sr(sIter))
        a.e("s_cbranch_scc1 %s" % l1_)
        poll_check(a, 25, SRD_DBG, "0", 64, sT0)
        a.e(poll_issue(25, SRD_WS, sr(sF1r)))
        a.label(l1_)

    e("s_waitcnt vmcnt(28)")
    e("v_mov_b32 v30, 0")
    e("v_mov_b32 v31, 0")
    for i in range(8):
        e("v_dot2_f32_bf16 v30, v%d, v%d, v30" % (32 + i, 48 + i))
        e("v_dot2_f32_bf16 v31, v%d, v%d, v31" % (40 + i, 48 + i))
    e("s_nop 2")
    for mode in ("row_shr:1", "row_shr:2", "row_shr:4", "row_shr:8", "row_bcast:15 row_mask:0xa", "row_bcast:31 row_mask:0xc"):
        rm = "" if "row_mask" in mode else " row_mask:0xf"
        e("v_add_f32_dpp v30, v30, v30 %s%s bank_mask:0xf" % (mode, rm))
        e("v_add_f32_dpp v31, v31, v31 %s%s bank_mask:0xf" % (mode, rm))
        e("s_nop 0")
    e("v_mul_f32 v30, %s, v30" % f32(-1.4426950408889634))
    e("v_mul_f32 v31, %s, v31" % f32(-1.4426950408889634))
    e("v_exp_f32 v30, v30")
    e("v_exp_f32 v31, v31")
    e("s_nop 0")
    e("v_add_f32 v30, 1.0, v30")
    e("v_add_f32 v31, 1.0, v31")
    e("v_rcp_f32 v30, v30")
    e("v_rcp_f32 v31, v31")
    e("s_mov_b32 exec_lo, 0")
    e("s_brev_b32 exec_hi, 1")
    e("buffer_store_dwordx2 v[30:31], off, %s, %s%s" % (sr(SRD_WS, 4), sr(sGoff), SC))
    decode_att(a, sT2, sT3, sT0, sT1)
    e("s_lshr_b32 %s, %s, 1" % (sr(sF1r), sr(sT2)))
    e("s_lshl_b32 %s, %s, 8" % (sr(sF1r), sr(sF1r)))
    e("s_add_u32 %s, %s, %d" % (sr(sF1r), sr(sF1r), WS_F1))
    e("s_lshl_b32 %s, %s, 3" % (sr(sF1w), sr(sJob)))
    e("s_add_u32 %s, %s, %s" % (sr(sF1w), sr(sF1w), sr(sTm)))
    e("s_lshl_b32 %s, %s, 2" % (sr(sF1w), sr(sF1w)))
    e("s_lshl_b32 %s, %s, 8" % (sr(sT0), sr(sTn8)))
    e("s_add_u32 %s, %s, %s" % (sr(sF1w), sr(sF1w), sr(sT0)))
    e("s_add_u32 %s, %s, %d" % (sr(sF1w), sr(sF1w), WS_F1))
    e("s_lshl_b32 %s, %s, 2" % (sr(sT2), sr(sT2)))
    e("s_sub_u32 %s, 15, %s" % (sr(sOb), sr(sT3)))
    e("s_cmp_eq_u32 %s, 1" % sr(sWave))
    e("s_cselect_b32 %s, %s, %s" % (sr(sT3), sr(sT3), sr(sOb)))
    e("s_lshl_b32 %s, %s, 7" % (sr(sT3), sr(sT3)))
    e("s_add_u32 %s, %s, %s" % (sr(sT2), sr(sT2), sr(sT3)))
    e("s_add_u32 %s, %s, %d" % (sr(sT2), sr(sT2), WS_F3))
    e("s_lshr_b32 %s, s2, 2" % sr(sT3))
    e("s_lshl_b32 %s, %s, 7" % (sr(sT3), sr(sT3)))
    e("s_and_b32 %s, s2, 3" % sr(sT0))
    e("s_lshl_b32 %s, %s, 2" % (sr(sT0), sr(sT0)))
    e("s_add_u32 %s, %s, %s" % (sr(sT3), sr(sT3), sr(sT0)))
    e("s_add_u32 %s, %s, %d" % (sr(sT3), sr(sT3), WS_FP))
    e("s_cmp_eq_u32 %s, 3" % sr(sWave))
    e("s_cselect_b32 %s, %s, %s" % (sr(sT2), sr(sT3), sr(sT2)))
    e("s_add_u32 %s, s2, %d" % (sr(sT3), WS_F2))
    e("v_mov_b32 v30, 0")
    e("s_cmp_eq_u32 %s, 0" % sr(sWave))
    e("s_cbranch_scc1 %s_z0" % name)
    e("buffer_store_dword v30, off, %s, %s sc1" % (sr(SRD_WS, 4), sr(sT2)))
    e("s_branch %s_z1" % name)
    a.label(name + "_z0")
    e("buffer_store_byte v30, off, %s, %s sc1" % (sr(SRD_WS, 4), sr(sT3)))
    e("buffer_store_dword v30, off, %s, %s sc1" % (sr(SRD_WS, 4), sr(sF1w)))
    a.label(name + "_z1")
    e("s_lshl_b32 %s, s2, 2" % sr(sT0))
    e("s_add_u32 %s, %s, %s" % (sr(sT0), sr(sT0), sr(sWave)))
    e("s_lshl_b32 %s, %s, 7" % (sr(sT0), sr(sT0)))
    e("s_add_u32 %s, %s, %d" % (sr(sT0), sr(sT0), WS_FQ))
    e("buffer_store_dword v30, off, %s, %s sc1" % (sr(SRD_WS, 4), sr(sT0)))
    e("s_mov_b64 exec, -1")
    e("s_mov_b32 %s, 0" % sr(sT3))
    e("s_mov_b32 %s, 0" % sr(SRD_P + 2))
    e(pf_load())
    interval(a, 'K', 0, 'A', kindA='none', vm=16)
    job_start(a, 'K', name + "_k", False, True)
    loop(a, 'K', name + "_k", vsw_k, hook_k, pf=True)
    e("s_cmp_lg_u32 %s, 0" % sr(sJob))
    e("s_cbranch_scc1 %s_k2v" % name)
    interval(a, 'G', 0, 'A', kindA='K', vm=nwait(False, True))
    qs = 1.4426950408889634 / (128.0 ** 0.5)
    e("s_mov_b32 %s, %s" % (sr(sCA), f32(qs)))
    e("s_mov_b32 %s, %s" % (sr(sCA + 1), f32(qs)))
    e("s_lshl_b32 %s, %s, 20" % (sr(sOb), sr(sTn8)))
    e("s_lshl_b32 %s, %s, 16" % (sr(sT0), sr(sTm)))
    e("s_add_u32 %s, %s, %s" % (sr(sOb), sr(sOb), sr(sT0)))
    epilogue_kqv(a, 'K', scale=sCA)
    e("s_branch %s_gu_start" % name)
    a.label(name + "_k2v")
    interval(a, 'V', 0, 'A', kindA='K', vm=nwait(False, True),
             pre=["v_add_u32 %s, %s, %s" % (vr(vXr[i]), vr(vXr[i]), vr(vXdl[i])) for i in range(2)])
    e("s_lshl_b32 %s, %s, 20" % (sr(sOb), sr(sTn8)))
    e("s_lshl_b32 %s, %s, 16" % (sr(sT0), sr(sTm)))
    e("s_add_u32 %s, %s, %s" % (sr(sOb), sr(sOb), sr(sT0)))
    e("s_add_u32 %s, %s, %d" % (sr(sOb), sr(sOb), WS_K))
    epilogue_kqv(a, 'K')
    set_next_gu()
    e("s_mov_b32 %s, 4" % sr(sIter))
    job_start(a, 'V', name + "_v", True, True)
    loop(a, 'V', name + "_v", vsw_v, st=True, pf=True)
    interval(a, 'G', 0, 'A', kindA='V', vm=nwait(True, True),
             pre=["v_sub_u32 %s, %s, %s" % (vr(vXr[i]), vr(vXr[i]), vr(vXdl[i])) for i in range(2)])
    e("s_add_u32 %s, %s, %d" % (sr(sOb), sr(sOb), WS_V - WS_K))
    epilogue_kqv(a, 'V')
    a.label(name + "_gu_start")
    e("s_mov_b32 %s, 0" % sr(sNXn))
    e("s_mov_b32 %s, 0" % sr(sNWn))
    e("s_mov_b32 %s, 8" % sr(sIter))
    job_start(a, 'G', name + "_ga", True, False)
    loop(a, 'G', name + "_ga", None, st=True, last=5, switch=False)
    loop(a, 'G', name + "_gb", vsw_g, hook_g, hook3=hook_g3)
    stamp_ts(a)
    e("s_waitcnt vmcnt(0) lgkmcnt(0)")
    e("s_barrier")
    for m in mfmas('G', 1, 1):
        e(m)
    e("s_lshl_b32 %s, %s, 10" % (sr(sT0), sr(sTm)))
    e("s_lshl_b32 %s, %s, 8" % (sr(sT1), sr(sWave)))
    e("s_add_u32 %s, %s, %s" % (sr(sT0), sr(sT0), sr(sT1)))
    e("s_add_u32 %s, %s, %d" % (sr(sT0), sr(sT0), WS_G))
    e("v_and_b32 v31, 15, v0")
    e("v_lshlrev_b32 v31, 2, v31")
    for tb in range(4):
        e("buffer_load_dword %s, v31, %s, %s offen offset:%d sc1" % (vr(vG1[tb]), sr(SRD_WS, 4), sr(sT0), tb * 64))
    e("s_mul_i32 %s, %s, %d" % (sr(sOb), sr(sTm), 8 * 480 * 1024))
    e("s_mul_i32 %s, %s, 7168" % (sr(sT0), sr(sTn7)))
    e("s_add_u32 %s, %s, %s" % (sr(sOb), sr(sOb), sr(sT0)))
    e("s_add_u32 %s, %s, %d" % (sr(sOb), sr(sOb), WS_A3 + 256 * 1024))
    e("s_mul_i32 %s, %s, %d" % (sr(sT0), sr(sWave), 2 * 480 * 1024))
    e("v_lshlrev_b32 %s, 4, v0" % vr(vSt))
    e("v_add_u32 %s, %s, %s" % (vr(vSt), sr(sT0), vr(vSt)))
    e("s_mov_b32 %s, 1" % sr(sJob))
    e("s_mov_b32 %s, %s" % (sr(sT3), sr(sF1r)))
    poll_check(a, 25, SRD_WS, sr(sT3), 16, sT0, fail=name + "_late")
    att_prologue(a)
    e("s_mov_b32 %s, 0" % sr(sJob))
    e("s_branch %s_epi" % name)
    a.label(name + "_late")
    e("s_waitcnt vmcnt(0)")
    a.label(name + "_epi")
    epilogue_gu(a)
    e("s_cmp_eq_u32 %s, 0" % sr(sJob))
    e("s_cbranch_scc1 %s_att" % name)
    e(poll_issue(25, SRD_WS, sr(sT3)))
    e("s_waitcnt vmcnt(0)")
    poll_check(a, 25, SRD_WS, sr(sT3), 16, sT0)
    att_prologue(a)
    e("s_waitcnt vmcnt(0)")
    a.label(name + "_att")
    stamp_ts(a)


NSLOT = 5
aHead, aPair, aT, aLoop, aRd, aWr, aWrEnd, aWrBeg = range(16, 24)
aDK, aDV, aKmax, aVmax, aT0, aT1, aT2, aTHR, aNEG, aPl, aLoopS = range(24, 35)
aQb = [35, 36]
aThr = [37, 38]
aMaskB = [39, 40]
aFB = 42
aCmp = 56

vLane16, vDma, vRd, vDl = 1, 2, 3, 4
vNegm, vL, vLs, vG = [5, 6], [7, 24], [26, 27], [8, 9]
vTmp = [10, 11, 12, 13]
vPoll2 = 14
vAPf, vAPfD = 15, 28
vE = [16, 17, 18, 19, 20, 21, 22, 23]
vC = [32, 160]
vS = [[48, 64], [176, 192]]
vP = [[80, 88], [208, 216]]
vZ = 224
vO = 96
rQ = [0, 32]
rK, rV, rOB = 64, 96, 128


def oreg(X, db, n=16, off=0):
    return vr(vO + 16 * db + off, n) if X == 0 else ar(rOB + 16 * db + off, n)


def a_pf(which):
    if not OPT.get('apf', 1):
        return []
    srd = SRD_P if which == 0 else SRD_X
    out = ["buffer_load_dword %s, %s, %s, 0 offen" % (vr(vAPfD), vr(vAPf), sr(srd, 4))]
    if which == 1:
        out.append("v_add_u32 %s, %d, %s" % (vr(vAPf), 1024 * OPT.get('apl', 8) * 64, vr(vAPf)))
    return out


def qk_mfmas(par, streams, czero=()):
    out = []
    for ks in range(8):
        for X in streams:
            c = vr(vS[X][par], 16)
            if ks == 0:
                c = "0" if X in czero else vr(vC[X], 16)
            out.append("v_mfma_f32_32x32x16_bf16 %s, %s, %s, %s" % (vr(vS[X][par], 16), ar(rK + 4 * ks, 4), ar(rQ[X] + 4 * ks, 4), c))
    return out


def pv_mfmas(par, streams):
    out = []
    for g in range(2):
        for db in range(4):
            for X in streams:
                o = oreg(X, db)
                out.append("v_mfma_f32_32x32x16_bf16 %s, %s, %s, %s" % (o, ar(rV + 4 * (g * 4 + db), 4), vr(vP[X][par] + 4 * g, 4), o))
    return out


def k_reads(sb):
    return ["ds_read_b128 %s, %s offset:%d" % (ar(rK + 4 * ks, 4), vr(vRd), sb * 8192 + ks * 1024) for ks in range(8)]


def v_reads(sb):
    return ["ds_read_b128 %s, %s offset:%d" % (ar(rV + 4 * j, 4), vr(vRd), 16384 + sb * 8192 + j * 1024) for j in range(8)]


def sm_items(X, par):
    it = [(4, "v_add_f32 %s, %s, %s" % (vr(vL[X]), vr(vL[X]), vr(vLs[X])))]
    S, P, Ls = vS[X][par], vP[X][par], vLs[X]
    pend = []
    for r in range(16):
        e = vE[r % 8]
        it.append((8, "v_exp_f32 %s, %s" % (vr(e), vr(S + r))))
        it.extend(pend)
        pend = []
        if r == 1:
            pend.append((4, "v_add_f32 %s, %s, %s" % (vr(Ls), vr(vE[0]), vr(vE[1]))))
        elif r > 1:
            pend.append((4, "v_add_f32 %s, %s, %s" % (vr(Ls), vr(Ls), vr(e))))
        if r & 1:
            pend.append((4, "v_cvt_pk_bf16_f32 %s, %s, %s" % (vr(P + (r >> 1)), vr(vE[(r - 1) % 8]), vr(e))))
    it.extend(pend)
    it.append((4, "v_cmp_lt_f32 %s, %s, %s" % ("vcc" if X == 0 else sr(aFB, 2), sr(aTHR), vr(Ls))))
    return it


def a_dma(which):
    m0 = "s_mov_b32 m0, %s" % sr(aWr) if which == 'K' else "s_add_u32 m0, %s, 16384" % sr(aWr)
    so = aDK if which == 'K' else aDV
    d = ["buffer_load_dwordx4 %s, %s, %s offen offset:%d sc1 lds" % (vr(vDma), sr(SRD_WS, 4), sr(so), j * 1024) for j in range(4)]
    return m0, d


def a_dma_advance():
    return [
        "s_add_u32 %s, %s, 32768" % (sr(aWr), sr(aWr)),
        "s_cmp_eq_u32 %s, %s" % (sr(aWr), sr(aWrEnd)),
        "s_cselect_b32 %s, %s, %s" % (sr(aWr), sr(aWrBeg), sr(aWr)),
        "s_add_u32 %s, %s, 16384" % (sr(aDK), sr(aDK)),
        "s_min_u32 %s, %s, %s" % (sr(aDK), sr(aDK), sr(aKmax)),
        "s_add_u32 %s, %s, 16384" % (sr(aDV), sr(aDV)),
        "s_min_u32 %s, %s, %s" % (sr(aDV), sr(aDV), sr(aVmax)),
    ]


def a_rd_advance():
    return [
        "s_add_u32 %s, %s, 32768" % (sr(aRd), sr(aRd)),
        "s_cmp_eq_u32 %s, %d" % (sr(aRd), NSLOT * 32768),
        "s_cselect_b32 %s, 0, %s" % (sr(aRd), sr(aRd)),
    ]


class Sched:
    def __init__(self, par, qk, pv, sm, kr=True, thr=None):
        self.par, self.sm = par, sm
        m1 = qk_mfmas(par ^ 1, qk) if qk else [None] * 8
        m2 = pv_mfmas(par ^ 1, pv)
        n1, n2 = len(m1), len(m2)
        self.n1, self.n = n1, n1 + n2
        self.mf = m1 + m2
        n = self.n
        fill = {g: [] for g in range(n)}
        used = {g: 0 for g in range(n)}
        pre = {g: [] for g in range(n)}

        def put(g, s, c=4):
            fill[g].append(s)
            used[g] += c
        s1, s2 = n1 // 8, n2 // 8
        for j, r in enumerate(v_reads(1 if par == 0 else 0)):
            put(j * s1, r)
        if kr:
            for j, r in enumerate(k_reads(0 if par == 0 else 1)):
                put(n1 + j * s2, r)
        if qk:
            pre[0].append("s_waitcnt lgkmcnt(4)")
            pre[n1 // 2].append("s_waitcnt lgkmcnt(4)")
            used[n1 // 2 - 1] += 4
        pre[n1].append("s_waitcnt lgkmcnt(4)")
        used[n1 - 1] += 4
        pre[n1 + n2 // 2].append("s_waitcnt lgkmcnt(%d)" % (4 if kr else 0))
        used[n1 + n2 // 2 - 1] += 4
        if par == 0:
            m0, d = a_dma('K')
            put(n1, m0)
            for j in range(4):
                put(n1 + (1 + 2 * j) * s2 - (s2 - 1), d[j])
            for x in a_rd_advance():
                put(n1 - 2, x)
            for x in a_pf(1):
                put(2 * s1, x)
        else:
            m0, d = a_dma('V')
            put(0, m0)
            for j in range(4):
                put((1 + 2 * j) * s1 - (s1 - 1), d[j])
            adv = a_dma_advance()
            for g, lo, hi in ((1, 0, 3), (3, 3, 5), (5, 5, 7)):
                for x in adv[lo:hi]:
                    put(n1 + g * s2, x)
            for x in a_pf(0):
                put(n1 + 2 * s2, x)
        g = 0
        cap = OPT.get('cap', 24)
        items = []
        for X in reversed(sm):
            items += sm_items(X, par)
        tot = sum(c for c, _ in items) + sum(used.values())
        if len(sm) == 2 or n > 16:
            cap = max(16, min(cap, 4 * (-(-tot // (4 * (n - 2)))) + 4))
        for c, s_ in items:
            while g < n - 1 and used[g] + c > cap:
                g += 1
            put(g, s_, c)
        if 1 in sm:
            put(n - 1, "s_or_b64 vcc, vcc, %s" % sr(aFB, 2))
        self.thr = thr
        if thr is not None:
            put(n - 1, "s_cmp_ge_i32 %s, %s" % (sr(aT), sr(aThr[thr])))
        self.fill, self.pre = fill, pre

    def emit(self, a, half):
        lo, hi = {'h1': (0, self.n1), 'h2': (self.n1, self.n), 'all': (0, self.n)}[half]
        for g in range(lo, hi):
            for s_ in self.pre[g]:
                a.e(s_)
            if self.mf[g]:
                a.e(self.mf[g])
            for s_ in self.fill[g]:
                a.e(s_)


def a_barrier(a):
    a.e("s_waitcnt vmcnt(%d)" % (22 if OPT.get('apf', 1) else 16))
    a.e("s_barrier")
    a.e("v_add_u32 %s, %s, %s" % (vr(vRd), sr(aRd), vr(vLane16)))


def maskprep_items(X):
    it = []
    it.append("s_lshl_b32 %s, %s, 5" % (sr(aT2), sr(aT1)))
    it.append("s_sub_i32 %s, %s, %s" % (sr(aT2), sr(aMaskB[X]), sr(aT2)))
    it.append("v_add_u32 %s, %s, %s" % (vr(vTmp[2]), sr(aT2), vr(vDl)))
    it.append("v_mov_b32 %s, %s" % (vr(vTmp[3]), sr(aNEG)))
    for r in range(16):
        kc = 8 * (r >> 2) + (r & 3)
        it.append("v_cmp_gt_i32 %s, %d, %s" % (sr(aCmp + 2 * (r & 3), 2), kc, vr(vTmp[2])))
        if (r & 3) == 3:
            for q in range(4):
                it.append("v_cndmask_b32 %s, %s, %s, %s" % (vr(vC[X] + r - 3 + q), vr(vNegm[X]), vr(vTmp[3]), sr(aCmp + 2 * q, 2)))
    return it


def rowmax_items(S, t0, t1):
    it = ["v_max3_f32 %s, %s, %s, %s" % (vr(t0), vr(S), vr(S + 1), vr(S + 2))]
    for r in range(3, 15, 2):
        it.append("v_max3_f32 %s, %s, %s, %s" % (vr(t0), vr(t0), vr(S + r), vr(S + r + 1)))
    it.append("v_max_f32 %s, %s, %s" % (vr(t0), vr(t0), vr(S + 15)))
    it.append("v_mov_b32 %s, %s" % (vr(t1), vr(t0)))
    it.append("s_nop 1")
    it.append("v_permlane32_swap_b32 %s, %s" % (vr(t0), vr(t1)))
    it.append("s_nop 1")
    it.append("v_max_f32 %s, %s, %s" % (vr(t0), vr(t0), vr(t1)))
    return it


def resm_items(X, par, t0):
    S, P, Ls = vS[X][par], vP[X][par], vLs[X]
    it = []
    for r in range(16):
        it.append("v_sub_f32 %s, %s, %s" % (vr(S + r), vr(S + r), vr(t0)))
    for r in range(16):
        it.append("v_exp_f32 %s, %s" % (vr(S + r), vr(S + r)))
    it.append("v_add_f32 %s, %s, %s" % (vr(Ls), vr(S), vr(S + 1)))
    for r in range(2, 16):
        it.append("v_add_f32 %s, %s, %s" % (vr(Ls), vr(Ls), vr(S + r)))
    for r in range(8):
        it.append("v_cvt_pk_bf16_f32 %s, %s, %s" % (vr(P + r), vr(S + 2 * r), vr(S + 2 * r + 1)))
    return it


def stage_end(a, sc, masks, handlers):
    ret, sp, sl = a.newlabel("aret"), a.newlabel("asp"), a.newlabel("asl")
    if sc.thr is not None:
        a.e("s_cbranch_scc1 %s" % sp)
    a.e("s_cbranch_vccnz %s" % sl)
    a.label(ret)
    a.e("s_add_u32 %s, %s, 1" % (sr(aT), sr(aT)))
    handlers.append((sc.par, sc.sm, masks, sp if sc.thr is not None else None, sl, ret))


def emit_handler(a, par, sm, masks, sp, sl, ret):
    e = a.e
    mask = a.newlabel("hmask")
    if sp:
        a.label(sp)
        e("s_cbranch_vccz %s" % mask)
    a.label(sl)
    t0, t1 = vTmp[0], vTmp[1]
    for X in sm:
        for x in rowmax_items(vS[X][par], t0, t1):
            e(x)
        e("v_max_f32 %s, 0, %s" % (vr(t0), vr(t0)))
        e("v_exp_f32 %s, -%s" % (vr(t1), vr(t0)))
        e("v_sub_f32 %s, %s, %s" % (vr(vNegm[X]), vr(vNegm[X]), vr(t0)))
        e("v_mul_f32 %s, %s, %s" % (vr(vL[X]), vr(vL[X]), vr(t1)))
        for i in range(64):
            if X == 0:
                e("v_mul_f32 %s, %s, %s" % (vr(vO + i), vr(vO + i), vr(t1)))
            else:
                e("v_accvgpr_read_b32 %s, %s" % (vr(vTmp[2]), ar(rOB + i)))
                e("v_mul_f32 %s, %s, %s" % (vr(vTmp[2]), vr(vTmp[2]), vr(t1)))
                e("v_accvgpr_write_b32 %s, %s" % (ar(rOB + i), vr(vTmp[2])))
        Sn = vS[X][par ^ 1]
        for r in range(16):
            e("v_sub_f32 %s, %s, %s" % (vr(Sn + r), vr(Sn + r), vr(t0)))
        for x in resm_items(X, par, t0):
            e(x)
    a.label(mask)
    e("s_add_u32 %s, %s, 2" % (sr(aT1), sr(aT)))
    for X in masks:
        for x in maskprep_items(X):
            e(x)
    e("s_branch %s" % ret)


def att_prologue(a):
    e = a.e
    decode_att(a, aHead, aQb[1], aT0, aT1)
    e("s_sub_u32 %s, 15, %s" % (sr(aQb[0]), sr(aQb[1])))
    e("v_lshlrev_b32 %s, 4, v0" % vr(vLane16))
    e("s_lshl_b32 %s, %s, 12" % (sr(aWrBeg), sr(sWave)))
    e("v_add_u32 %s, %s, %s" % (vr(vDma), sr(aWrBeg), vr(vLane16)))
    e("s_mov_b32 %s, %s" % (sr(aWr), sr(aWrBeg)))
    e("s_add_u32 %s, %s, %d" % (sr(aWrEnd), sr(aWrBeg), NSLOT * 32768))
    e("s_lshl_b32 %s, %s, 19" % (sr(aT0), sr(aHead)))
    e("s_add_u32 %s, %s, %d" % (sr(aDK), sr(aT0), WS_K))
    e("s_add_u32 %s, %s, %d" % (sr(aDV), sr(aT0), WS_V - 16384))
    e("s_lshl_b32 %s, %s, 15" % (sr(aT1), sr(aQb[0])))
    e("s_add_u32 %s, %s, 16384" % (sr(aT1), sr(aT1)))
    e("s_add_u32 %s, %s, %s" % (sr(aKmax), sr(aDK), sr(aT1)))
    e("s_add_u32 %s, %s, %d" % (sr(aVmax), sr(aKmax), WS_V - WS_K))
    e("v_and_b32 v24, 31, v0")
    e("v_lshrrev_b32 v25, 5, v0")
    e("v_lshlrev_b32 v25, 2, v25")
    e("v_sub_u32 %s, v24, v25" % vr(vDl))
    e("v_lshlrev_b32 v24, 2, v24")

    def qload(X):
        e("s_lshl_b32 %s, %s, 2" % (sr(aT1), sr(aQb[X])))
        e("s_add_u32 %s, %s, %s" % (sr(aT1), sr(aT1), sr(sWave)))
        e("s_lshl_b32 %s, %s, 13" % (sr(aT2), sr(aT1)))
        e("s_lshl_b32 %s, %s, 19" % (sr(aT0), sr(aHead)))
        e("s_add_u32 %s, %s, %s" % (sr(aT2), sr(aT2), sr(aT0)))
        e("s_add_u32 %s, %s, 4096" % (sr(aT0), sr(aT2)))
        for ks in range(8):
            e("buffer_load_dwordx4 %s, %s, %s, %s offen offset:%d sc1" % (
                ar(rQ[X] + 4 * ks, 4), vr(vLane16), sr(SRD_WS, 4), sr(aT2 if ks < 4 else aT0), (ks & 3) * 1024))
        e("s_lshl_b32 %s, %s, 7" % (sr(aT1), sr(aT1)))
        e("s_add_u32 %s, %s, %d" % (sr(aT1), sr(aT1), WS_G))
        e("buffer_load_dword %s, v24, %s, %s offen sc1" % (vr(vG[X]), sr(SRD_WS, 4), sr(aT1)))
    for i in range(3):
        for w in ('K', 'V'):
            if i == 0 and w == 'V':
                continue
            m0, d = a_dma(w)
            e(m0)
            e("s_nop 0")
            for x in d:
                e(x)
        for x in a_dma_advance():
            e(x)
        if i == 0:
            qload(0)
            qload(1)
    e("s_mov_b32 %s, %s" % (sr(aTHR), f32(4096.0)))
    e("s_mov_b32 %s, %s" % (sr(aNEG), f32(-1e30)))
    e("s_mov_b32 %s, 0" % sr(aRd))
    e("s_mov_b32 %s, %d" % (sr(aPl), WS_F2))
    for X in range(2):
        e("s_lshl_b32 %s, %s, 2" % (sr(aT0), sr(aQb[X])))
        e("s_sub_i32 %s, %s, 2" % (sr(aThr[X]), sr(aT0)))
        e("s_add_u32 %s, %s, %s" % (sr(aMaskB[X]), sr(aT0), sr(sWave)))
        e("s_lshl_b32 %s, %s, 5" % (sr(aMaskB[X]), sr(aMaskB[X])))
    e("s_lshl_b32 %s, %s, 1" % (sr(aLoop), sr(aQb[1])))
    e("s_add_u32 %s, %s, 1" % (sr(aLoop), sr(aLoop)))
    e("s_sub_u32 %s, %s, %s" % (sr(aLoopS), sr(aQb[0]), sr(aQb[1])))
    e("s_lshl_b32 %s, %s, 1" % (sr(aLoopS), sr(aLoopS)))
    e("s_sub_u32 %s, %s, 1" % (sr(aLoopS), sr(aLoopS)))


ATT_PRO_LOADS = 20 + 18


def mix(a, mf, fixed, stream, cap=6):
    i = 0
    for g, m in enumerate(mf):
        a.e(m)
        k = 0
        for x in fixed.get(g, []):
            a.e(x)
            k += 1
        while i < len(stream) and k < cap:
            mg = 0
            x = stream[i]
            if isinstance(x, tuple):
                mg, x = x
            if mg > g:
                break
            a.e(x)
            k += 2 if x.startswith("v_exp") else 1
            i += 1
    while i < len(stream):
        x = stream[i]
        a.e(x[1] if isinstance(x, tuple) else x)
        i += 1


def att_epilogue(a, X):
    e = a.e
    t0, t1 = vTmp[0], vTmp[1]
    e("v_mov_b32 %s, %s" % (vr(t0), vr(vL[X])))
    e("s_lshl_b32 %s, %s, 2" % (sr(aT1), sr(aQb[X])))
    e("s_add_u32 %s, %s, %s" % (sr(aT1), sr(aT1), sr(sWave)))
    e("v_permlane32_swap_b32 %s, %s" % (vr(t0), vr(vL[X])))
    e("s_mul_i32 %s, %s, %d" % (sr(aT1), sr(aT1), 480 * 1024))
    e("s_lshl_b32 %s, %s, 13" % (sr(aT2), sr(aHead)))
    e("v_add_f32 %s, %s, %s" % (vr(t0), vr(vL[X]), vr(t0)))
    e("v_rcp_f32 %s, %s" % (vr(t0), vr(t0)))
    e("s_add_u32 %s, %s, %s" % (sr(aT1), sr(aT1), sr(aT2)))
    e("s_add_u32 %s, %s, %d" % (sr(aT1), sr(aT1), WS_A3))
    e("v_mul_f32 %s, %s, %s" % (vr(t0), vr(t0), vr(vG[X])))
    e("s_add_u32 %s, %s, 4096" % (sr(aT2), sr(aT1)))
    e("v_mov_b32 %s, %s" % (vr(t1), vr(t0)))
    for db in range(4):
        if X == 0:
            r = vO + 16 * db
        else:
            r = vYB + 16 * db
            for i in range(16):
                e("v_accvgpr_read_b32 %s, %s" % (vr(r + i), ar(rOB + 16 * db + i)))
        for i in range(0, 16, 2):
            e("v_pk_mul_f32 %s, %s, %s" % (vr(r + i, 2), vr(r + i, 2), vr(t0, 2)))
        for g in range(2):
            for i in range(4):
                e("v_cvt_pk_bf16_f32 %s, %s, %s" % (vr(r + 8 * g + i), vr(r + 8 * g + 2 * i), vr(r + 8 * g + 2 * i + 1)))
            fi = db * 2 + g
            e("buffer_store_dwordx4 %s, %s, %s, %s offen offset:%d%s" % (
                vr(r + 8 * g, 4), vr(vLane16), sr(SRD_WS, 4), sr(aT1 if fi < 4 else aT2), (fi & 3) * 1024, SC))


vYB = 160


def part2(a, name, out_prologue, handlers):
    e = a.e
    L = OPT.get('apl', 8)
    npf = 2 if OPT.get('apf', 1) else 0
    e("s_load_dwordx2 %s, s[0:1], 40" % sr(SRD_P, 2))
    e("s_load_dwordx2 %s, s[0:1], 72" % sr(SRD_X, 2))
    e("s_mov_b32 %s, %d" % (sr(SRD_P + 2), 4096 * 2048))
    e("s_mov_b32 %s, %d" % (sr(SRD_X + 2), 3584 * 2048))
    e("s_lshl_b32 %s, s2, 2" % sr(aT0))
    e("s_add_u32 %s, %s, %s" % (sr(aT0), sr(aT0), sr(sWave)))
    e("s_mul_i32 %s, %s, %d" % (sr(aT0), sr(aT0), L * 64))
    if OPT.get('apd', 0):
        e("s_sub_u32 %s, %s, %d" % (sr(aT0), sr(aT0), OPT['apd'] * 1024 * L * 64))
    e("v_lshlrev_b32 %s, 6, v0" % vr(vAPf))
    e("v_add_u32 %s, %s, %s" % (vr(vAPf), sr(aT0), vr(vAPf)))
    e("v_cmp_gt_u32 vcc, %d, v0" % L)
    e("v_mov_b32 %s, 0x70000000" % vr(vAPfD))
    e("v_mov_b32 %s, 0" % vr(vNegm[1]))
    e("v_cndmask_b32 %s, %s, %s, vcc" % (vr(vAPf), vr(vAPfD), vr(vAPf)))
    e("s_waitcnt vmcnt(%d) lgkmcnt(0)" % N_H_STORES)
    e("s_barrier")
    e("v_mov_b32 %s, %s" % (vr(vRd), vr(vLane16)))
    for r in k_reads(0):
        e(r)
    m0, d = a_dma('K')
    e(m0)
    e("s_mov_b32 %s, 0" % sr(aT1))
    for x in d:
        e(x)
    for x in maskprep_items(1):
        e(x)
    for i in range(4):
        e("v_mov_b32 %s, 0" % vr(vZ + i))
    for X in range(2):
        e("v_mov_b32 %s, 0" % vr(vL[X]))
    e("s_waitcnt lgkmcnt(0)")
    q0 = qk_mfmas(0, (0, 1), czero=(0,))
    zo = ["v_mfma_f32_32x32x16_bf16 %s, %s, %s, 0" % (oreg(X, db), ar(rQ[0], 4), vr(vZ, 4)) for X in range(2) for db in range(4)]
    kr1 = k_reads(1)
    m0, d = a_dma('V')
    fx = {}
    fx[0] = [m0]
    for i in range(8):
        fx.setdefault(2 * i + 1, []).append(kr1[i])
    for j in range(4):
        fx.setdefault(2 + 2 * j, []).append(d[j])
    st = [(10, x) for x in a_dma_advance()] + [(10, x) for x in a_pf(0) + a_pf(1)]
    st += [(10, "s_mov_b32 %s, 1" % sr(aT1))] + [(10, x) for x in maskprep_items(1)]
    mix(a, q0 + zo[:4], fx, st)
    e("s_waitcnt lgkmcnt(0)")
    q1 = qk_mfmas(1, (0, 1), czero=(0,))
    st = []
    for X in range(2):
        st += rowmax_items(vS[X][0], vNegm[X], vTmp[1])
        st += resm_items(X, 0, vNegm[X])
    st += a_rd_advance()
    mix(a, zo[4:] + q1, {}, st)
    e("s_waitcnt vmcnt(%d)" % (8 + npf))
    e("s_barrier")
    e("v_add_u32 %s, %s, %s" % (vr(vRd), sr(aRd), vr(vLane16)))
    e("s_add_u32 %s, s2, %d" % (sr(aT0), WS_F2))
    flag_store(a, "byte", vTmp[0], "1", SRD_WS, sr(aT0))
    for r in k_reads(0):
        e(r)
    m0, d = a_dma('K')
    e(m0)
    e("s_mov_b32 %s, 2" % sr(aT1))
    for x in d:
        e(x)
    for X in range(2):
        for r in range(16):
            e("v_sub_f32 %s, %s, %s" % (vr(vS[X][1] + r), vr(vS[X][1] + r), vr(vNegm[X])))
        e("v_sub_f32 %s, 0, %s" % (vr(vNegm[X]), vr(vNegm[X])))
    for r in range(16):
        e("v_mov_b32 %s, %s" % (vr(vC[0] + r), vr(vNegm[0])))
    for x in maskprep_items(1):
        e(x)
    e("s_mov_b32 %s, 1" % sr(aT))
    e("s_branch %s_dentry" % name)
    B2 = (0, 1)
    A1 = (0,)
    De, Do = Sched(0, B2, B2, B2, thr=1), Sched(1, B2, B2, B2, thr=1)
    align(a)
    a.label(name + "_dloop")
    stamp_ts(a)
    a_barrier(a)
    De.emit(a, 'h2')
    stage_end(a, De, B2, handlers)
    a.label(name + "_dentry")
    Do.emit(a, 'all')
    stage_end(a, Do, B2, handlers)
    De.emit(a, 'h1')
    e("s_sub_u32 %s, %s, 1" % (sr(aLoop), sr(aLoop)))
    e("s_cmp_lg_u32 %s, 0" % sr(aLoop))
    e("s_cbranch_scc1 %s_dloop" % name)
    M1, M2 = Sched(1, A1, B2, B2, thr=0), Sched(0, A1, B2, A1, thr=0)
    stamp_ts(a)
    a_barrier(a)
    De.emit(a, 'h2')
    stage_end(a, De, A1, handlers)
    M1.emit(a, 'all')
    stage_end(a, M1, A1, handlers)
    M2.emit(a, 'h1')
    a_barrier(a)
    M2.emit(a, 'h2')
    stage_end(a, M2, A1, handlers)
    e("v_add_f32 %s, %s, %s" % (vr(vL[1]), vr(vL[1]), vr(vLs[1])))
    att_epilogue(a, 1)
    e("s_branch %s_sentry" % name)
    Se, So = Sched(0, A1, A1, A1, thr=0), Sched(1, A1, A1, A1, thr=0)
    align(a)
    a.label(name + "_aloop")
    stamp_ts(a)
    a_barrier(a)
    Se.emit(a, 'h2')
    stage_end(a, Se, A1, handlers)
    a.label(name + "_sentry")
    So.emit(a, 'all')
    stage_end(a, So, A1, handlers)
    Se.emit(a, 'h1')
    e("s_sub_u32 %s, %s, 1" % (sr(aLoopS), sr(aLoopS)))
    e("s_cmp_lg_u32 %s, 0" % sr(aLoopS))
    e("s_cbranch_scc1 %s_aloop" % name)
    stamp_ts(a)
    Te, To = Sched(0, A1, A1, A1, kr=False), Sched(1, (), A1, A1, kr=False)
    a_barrier(a)
    e(poll_issue(vPoll2, SRD_WS, sr(aPl)))
    Te.emit(a, 'h2')
    stage_end(a, Te, (), handlers)
    To.emit(a, 'all')
    stage_end(a, To, (), handlers)
    for r in v_reads(1):
        e(r)
    e("v_add_f32 %s, %s, %s" % (vr(vL[0]), vr(vL[0]), vr(vLs[0])))
    pv = pv_mfmas(1, A1)
    e("s_waitcnt lgkmcnt(4)")
    for i in range(4):
        e(pv[i])
    e("s_waitcnt lgkmcnt(0)")
    for i in range(4, 8):
        e(pv[i])
    out_prologue(a)
    a.label(name + "_nopro")
    att_epilogue(a, 0)
    stamp_ts(a)


SRD_OUT = SRD_X
oTm, oTn, oR, oXk, oWk, oIter, oM0, oT0, oT1, oT2, oTile, oCnt, oXk2, oWk2, oC3 = range(68, 83)
oWO, oWD, oOUT = 84, 86, 88
vX = [16, 17]
vWd3 = [20, 21, 22, 23]
vWr3 = 160
vPoll3 = 13
vWF = 168
vACC = 32
aX = 96
NR = 5
WS_PART = WS_P


def loads3(slot):
    pre = "s_add_u32 m0, %s, %d" % (sr(oM0), slot * 16384)
    d = ["buffer_load_dwordx4 %s, %s, %s offen offset:%d lds" % (vr(vWd3[j]), sr(SRD_W, 4), sr(oWk), j * 1024) for j in range(4)]
    x = []
    for st in range(2):
        for tb in range(4):
            x.append("buffer_load_dwordx4 %s, %s, %s, %s offen offset:%d sc1" % (
                ar(aX + 32 * slot + 16 * st + 4 * tb, 4), vr(vX[tb >> 1]), sr(SRD_WS, 4), sr(oXk), st * 2048 + (tb & 1) * 256))
    post = ["s_add_u32 %s, %s, %d" % (sr(oWk), sr(oWk), 64 * 2048), "s_add_u32 %s, %s, 4096" % (sr(oXk), sr(oXk))]
    return pre, d, x, post


def wreads3(slot, st):
    out = []
    for nb in range(8):
        for t in range(2):
            off = slot * 16384 + st * 8192 + t * 1024
            assert off < 65536 + 16384
            out.append((nb, t, off))
    return out


def wread_txt(slot, st):
    out = []
    for nb, t, off in wreads3(slot, st):
        base = vWr3 + nb
        if off >= 65536:
            base, off = vWr3B + nb, off - 65536
        out.append("ds_read_b64_tr_b16 %s, %s offset:%d" % (vr(vWF + 32 * st + 4 * nb + 2 * t, 2), vr(base), off))
    return out


vWr3B = 232


def mf3(slot, st, zero=False):
    out = []
    for nb in range(8):
        for tb in range(4):
            d = vr(vACC + 4 * (nb * 4 + tb), 4)
            out.append("v_mfma_f32_16x16x32_bf16 %s, %s, %s, %s" % (d, vr(vWF + 32 * st + 4 * nb, 4), ar(aX + 32 * slot + 16 * st + 4 * tb, 4), "0" if zero else d))
    return out


def interval3(a, i, half='both', zero=False, load=True, vm=36, first=False):
    slot, pslot = i % NR, (i - 1) % NR
    pre, d, x, post = loads3(pslot) if load else (None, [], [], [])
    if half in ('both', 'A'):
        a.e("s_waitcnt vmcnt(%d) lgkmcnt(0)" % vm)
        a.e("s_barrier")
        rd = wread_txt(slot, 0)
        if first:
            for r in rd:
                a.e(r)
            if load:
                a.e(pre)
                a.e("s_nop 0")
                for q in d:
                    a.e(q)
        else:
            fill = {g: [r] for g, r in enumerate(rd)}
            if load:
                fill.setdefault(15, []).append(pre)
                for j in range(4):
                    fill.setdefault(16 + 4 * j, []).append(d[j])
            interleave(a, mf3(pslot, 1), fill)
    if half in ('both', 'B'):
        a.e("s_waitcnt lgkmcnt(0)")
        fill = {g: [r] for g, r in enumerate(wread_txt(slot, 1))}
        if load:
            for j in range(8):
                fill.setdefault(14 + 2 * j, []).append(x[j])
            fill.setdefault(29, []).extend(post)
        interleave(a, mf3(slot, 0, zero), fill)


def out_prologue(a):
    e = a.e
    e("s_load_dwordx2 %s, s[0:1], 40" % sr(oWO, 2))
    e("s_load_dwordx2 %s, s[0:1], 72" % sr(oWD, 2))
    e("s_load_dwordx2 %s, s[0:1], 88" % sr(oOUT, 2))
    e("s_and_b32 %s, s2, 7" % sr(oT0))
    e("s_lshr_b32 %s, s2, 3" % sr(oT1))
    if OPT.get('omap', 0) == 0:
        e("s_lshr_b32 %s, %s, 1" % (sr(oR), sr(oT0)))
        e("s_and_b32 %s, %s, 1" % (sr(oTm), sr(oT0)))
        e("s_and_b32 %s, %s, 3" % (sr(oT2), sr(oT1)))
        if OPT.get('tmix', 0):
            e("s_lshl_b32 %s, %s, 1" % (sr(oT2), sr(oT2)))
        else:
            e("s_lshl_b32 %s, %s, 2" % (sr(oTm), sr(oTm)))
        e("s_add_u32 %s, %s, %s" % (sr(oTm), sr(oTm), sr(oT2)))
        e("s_lshr_b32 %s, %s, 2" % (sr(oTn), sr(oT1)))
    else:
        e("s_lshr_b32 %s, %s, 3" % (sr(oR), sr(oT1)))
        e("s_mov_b32 %s, %s" % (sr(oTm), sr(oT0)))
        e("s_and_b32 %s, %s, 7" % (sr(oTn), sr(oT1)))
    e("s_lshl_b32 %s, %s, 3" % (sr(oTile), sr(oTm)))
    e("s_add_u32 %s, %s, %s" % (sr(oTile), sr(oTile), sr(oTn)))
    e("s_mov_b32 %s, %d" % (sr(SRD_OUT + 2), 2048 * 1024 * 2))
    e("s_lshl_b32 %s, %s, 12" % (sr(oM0), sr(sWave)))
    e("v_lshrrev_b32 v32, 4, v0")
    e("v_and_b32 v33, 15, v0")
    e("v_lshlrev_b32 v34, 9, v32")
    e("v_lshl_add_u32 %s, v33, 4, v34" % vr(vX[0]))
    e("v_add_u32 %s, %d, %s" % (vr(vX[1]), 480 * 1024, vr(vX[0])))
    e("v_lshlrev_b32 v34, 1, v32")
    e("v_lshrrev_b32 v35, 1, v33")
    e("v_xor_b32 v34, v34, v35")
    e("v_and_b32 v35, 1, v0")
    e("v_lshlrev_b32 v36, 11, v32")
    e("v_lshl_add_u32 v36, v35, 4, v36")
    e("v_lshl_add_u32 %s, v34, 5, v36" % vr(vWd3[0]))
    e("v_add_u32 %s, %d, %s" % (vr(vWd3[1]), 8192 - 1024, vr(vWd3[0])))
    e("v_xor_b32 v34, 1, v34")
    e("v_lshl_add_u32 v36, v34, 5, v36")
    e("v_add_u32 %s, %d, v36" % (vr(vWd3[2]), 2 * (8192 - 1024)))
    e("v_add_u32 %s, %d, v36" % (vr(vWd3[3]), 3 * (8192 - 1024)))
    e("v_bfe_u32 v33, v0, 2, 2")
    e("v_lshl_add_u32 v34, v32, 3, v33")
    e("v_lshlrev_b32 v34, 8, v34")
    e("v_and_b32 v35, 3, v0")
    e("v_lshl_add_u32 v34, v35, 3, v34")
    e("v_lshlrev_b32 v33, 1, v33")
    e("v_and_b32 v35, 1, v32")
    e("v_xor_b32 v33, v33, v35")
    e("s_lshl_b32 %s, %s, 1" % (sr(oT0), sr(oR)))
    e("v_xor_b32 v33, %s, v33" % sr(oT0))
    for nb in range(8):
        e("v_xor_b32 v35, %d, v33" % nb)
        e("v_lshl_add_u32 %s, v35, 5, v34" % vr(vWr3 + nb))
        e("v_add_u32 %s, 0x10000, %s" % (vr(vWr3B + nb), vr(vWr3 + nb)))
    e("s_lshl_b32 %s, %s, 2" % (sr(oT0), sr(oTm)))
    e("s_add_u32 %s, %s, %s" % (sr(oT0), sr(oT0), sr(sWave)))
    e("s_mul_i32 %s, %s, %d" % (sr(oXk2), sr(oT0), 2 * 480 * 1024))
    e("s_add_u32 %s, %s, %d" % (sr(oXk2), sr(oXk2), WS_A3))
    e("s_mul_i32 %s, %s, %d" % (sr(oT0), sr(oR), 56 * 1024))
    e("s_add_u32 %s, %s, %s" % (sr(oXk), sr(oXk2), sr(oT0)))
    e("s_add_u32 %s, %s, %d" % (sr(oXk), sr(oXk), 256 * 1024))
    e("s_lshl_b32 %s, %s, 16" % (sr(oT0), sr(oR)))
    e("s_add_u32 %s, %s, %s" % (sr(oXk2), sr(oXk2), sr(oT0)))
    e("s_lshl_b32 %s, %s, 15" % (sr(oWk2), sr(sWave)))
    e("s_lshl_b32 %s, %s, 8" % (sr(oT0), sr(oTn)))
    e("s_add_u32 %s, %s, %s" % (sr(oWk2), sr(oWk2), sr(oT0)))
    e("s_mul_i32 %s, %s, %d" % (sr(oT0), sr(oR), 896 * 2048))
    e("s_add_u32 %s, %s, %s" % (sr(oWk), sr(oWk2), sr(oT0)))
    e("s_lshl_b32 %s, %s, 21" % (sr(oT0), sr(oR)))
    e("s_add_u32 %s, %s, %s" % (sr(oWk2), sr(oWk2), sr(oT0)))
    e("s_mov_b32 %s, 5" % sr(oIter))
    e("s_lshl_b32 %s, %s, 1" % (sr(oC3), sr(oTm)))
    e("s_lshr_b32 %s, %s, 1" % (sr(oT0), sr(sWave)))
    e("s_add_u32 %s, %s, %s" % (sr(oC3), sr(oC3), sr(oT0)))
    e("s_lshl_b32 %s, %s, 7" % (sr(oC3), sr(oC3)))
    e("s_add_u32 %s, %s, %d" % (sr(oC3), sr(oC3), WS_F3))
    e("s_waitcnt vmcnt(0) lgkmcnt(0)")
    e("s_barrier")
    e("s_mov_b32 %s, %s" % (sr(SRD_W), sr(oWD)))
    e("s_mov_b32 %s, %s" % (sr(SRD_W + 1), sr(oWD + 1)))
    e("s_mov_b32 %s, %d" % (sr(SRD_W + 2), 3584 * 2048))
    e("s_mov_b32 %s, %s" % (sr(SRD_OUT), sr(oOUT)))
    e("s_mov_b32 %s, %s" % (sr(SRD_OUT + 1), sr(oOUT + 1)))
    poll_check(a, vPoll2, SRD_WS, sr(aPl), 64, oT0)
    for i in range(4):
        pre, d, x, post = loads3(i)
        e(pre)
        e("s_nop 0")
        for q in d + x + post:
            e(q)


def part3(a, name):
    e = a.e
    for X in range(2):
        e("s_lshl_b32 %s, %s, 7" % (sr(aThr[X]), sr(aQb[X])))
        e("s_lshl_b32 %s, %s, 2" % (sr(aT1), sr(aHead)))
        e("s_add_u32 %s, %s, %s" % (sr(aThr[X]), sr(aThr[X]), sr(aT1)))
        e("s_add_u32 %s, %s, %s" % (sr(aThr[X]), sr(aThr[X]), sr(sWave)))
        e("s_add_u32 %s, %s, %d" % (sr(aThr[X]), sr(aThr[X]), WS_F3))
    flag_store(a, "byte", 14, "1", SRD_WS, sr(aThr[1]), wave0=False)
    interval3(a, 0, 'A', first=True, vm=45)
    interval3(a, 0, 'B', zero=True)
    e("s_branch %s_o1" % name)
    align(a)
    a.label(name + "_oloop")
    stamp_ts(a)
    l1_, l2_, l3_ = a.newlabel("osw"), a.newlabel("opl"), a.newlabel("osg")
    e("s_cmp_lg_u32 %s, 3" % sr(oIter))
    e("s_cbranch_scc1 %s" % l1_)
    e("s_waitcnt vmcnt(12)")
    poll_check(a, vPoll3, SRD_WS, sr(oC3), 32, oT0)
    e("s_mov_b32 %s, %s" % (sr(SRD_W), sr(oWO)))
    e("s_mov_b32 %s, %s" % (sr(SRD_W + 1), sr(oWO + 1)))
    e("s_mov_b32 %s, %d" % (sr(SRD_W + 2), 4096 * 2048))
    e("s_mov_b32 %s, %s" % (sr(oXk), sr(oXk2)))
    e("s_mov_b32 %s, %s" % (sr(oWk), sr(oWk2)))
    e("v_add_u32 %s, 8192, %s" % (vr(vWd3[1]), vr(vWd3[1])))
    e("v_subrev_u32 %s, 8192, %s" % (vr(vWd3[2]), vr(vWd3[2])))
    a.label(l1_)
    interval3(a, 0)
    a.label(name + "_o1")
    for i in range(1, NR):
        interval3(a, i)
        if i == OPT.get('afl', 1):
            e("s_cmp_lg_u32 %s, 5" % sr(oIter))
            e("s_cbranch_scc1 %s" % l3_)
            e("s_waitcnt vmcnt(%d)" % (12 * (i + 1)))
            flag_store(a, "byte", 14, "1", SRD_WS, sr(aThr[0]), wave0=False)
            a.label(l3_)
        if i == 3:
            e("s_cmp_lg_u32 %s, 4" % sr(oIter))
            e("s_cbranch_scc1 %s" % l2_)
            e(poll_issue(vPoll3, SRD_WS, sr(oC3)))
            a.label(l2_)
    e("s_sub_u32 %s, %s, 1" % (sr(oIter), sr(oIter)))
    e("s_cmp_lg_u32 %s, 0" % sr(oIter))
    e("s_cbranch_scc1 %s_oloop" % name)
    interval3(a, 0)
    e("s_lshl_b32 %s, %s, 19" % (sr(oT1), sr(oTile)))
    e("s_lshl_b32 %s, %s, 13" % (sr(oT2), sr(sWave)))
    e("s_add_u32 %s, %s, %s" % (sr(oT1), sr(oT1), sr(oT2)))
    e("s_add_u32 %s, %s, %d" % (sr(oT1), sr(oT1), WS_PART))
    e("s_lshl_b32 %s, %s, 2" % (sr(oT2), sr(oTile)))
    e("s_add_u32 %s, %s, %s" % (sr(oT2), sr(oT2), sr(sWave)))
    e("s_lshl_b32 %s, %s, 9" % (sr(oT2), sr(oT2)))
    e("s_add_u32 %s, %s, %d" % (sr(oT2), sr(oT2), WS_FQ))
    sSa = [90, 92, 94]
    sFl = [96, 97, 98]
    for c in range(1, 4):
        A_, F_ = sSa[c - 1], sFl[c - 1]
        e("s_xor_b32 %s, %s, %d" % (sr(oT0), sr(oR), c))
        e("s_lshl_b32 %s, %s, 7" % (sr(F_), sr(oT0)))
        e("s_add_u32 %s, %s, %s" % (sr(F_), sr(F_), sr(oT2)))
        e("s_add_u32 %s, %s, %d" % (sr(F_), sr(F_), c))
        e("s_lshl_b32 %s, %s, 15" % (sr(oT0), sr(oT0)))
        e("s_lshl_b32 %s, %s, 17" % (sr(oCnt), sr(oR)))
        e("s_add_u32 %s, %s, %s" % (sr(A_), sr(oT0), sr(oCnt)))
        e("s_add_u32 %s, %s, %s" % (sr(A_), sr(A_), sr(oT1)))
        e("s_add_u32 %s, %s, 4096" % (sr(A_ + 1), sr(A_)))
    e("s_lshl_b32 %s, %s, 7" % (sr(oT0), sr(oR)))
    e("s_add_u32 %s, %s, %s" % (sr(oT2), sr(oT2), sr(oT0)))
    units = [(c, s_) for c in (1, 2, 3, 0) for s_ in range(8)]

    def ureads(u):
        c, s_ = units[u]
        slot, st = 1 + (s_ >> 1), s_ & 1
        out = []
        for n2 in range(2):
            nb = 2 * c + n2
            for t in range(2):
                off = slot * 16384 + st * 8192 + t * 1024
                base = vWr3 + nb
                if off >= 65536:
                    base, off = vWr3B + nb, off - 65536
                out.append("ds_read_b64_tr_b16 %s, %s offset:%d" % (vr(vWF + 8 * (u % 4) + 4 * n2 + 2 * t, 2), vr(base), off))
        return out

    def umf(u):
        c, s_ = units[u]
        slot, st = 1 + (s_ >> 1), s_ & 1
        out = []
        for n2 in range(2):
            nb = 2 * c + n2
            for tb in range(4):
                d = vr(vACC + 4 * (nb * 4 + tb), 4)
                out.append("v_mfma_f32_16x16x32_bf16 %s, %s, %s, %s" % (d, vr(vWF + 8 * (u % 4) + 4 * n2, 4), ar(aX + 32 * slot + 16 * st + 4 * tb, 4), d))
        return out
    e("s_waitcnt vmcnt(36) lgkmcnt(0)")
    e("s_barrier")
    fill = {g: [r] for g, r in enumerate(ureads(0) + ureads(1))}
    interleave(a, mf3(0, 1), fill)
    for u in range(32):
        c, s_ = units[u]
        if u in (0, 2, 4):
            e("s_waitcnt vmcnt(%d)" % (24 - 6 * u))
            e("s_barrier")
        e("s_waitcnt lgkmcnt(%d)" % (4 if u < 31 else 0))
        fill = {}
        if u + 2 < 32:
            for g, r in enumerate(ureads(u + 2)):
                fill[g] = [r]
        if u >= 8:
            pc = units[u - 8][0]
            q = s_
            fill.setdefault(6, []).append("buffer_store_dwordx4 %s, %s, %s, %s offen offset:%d sc1" % (
                vr(vACC + 32 * pc + 4 * q, 4), vr(vLane16), sr(SRD_WS, 4), sr(sSa[pc - 1] + (q >> 2)), (q & 3) * 1024))
        interleave(a, umf(u), fill)
        if u == 23:
            e("s_waitcnt vmcnt(8)")
            flag_store(a, "byte", 5, "1", SRD_WS, sr(sFl[0]), wave0=False)
    stamp_ts(a)
    e("s_waitcnt vmcnt(9)")
    flag_store(a, "byte", 5, "1", SRD_WS, sr(sFl[1]), wave0=False)
    e("v_and_b32 v2, 15, v0")
    e("v_lshlrev_b32 v2, 11, v2")
    e("v_bfe_u32 v3, v0, 4, 1")
    e("v_lshl_add_u32 v2, v3, 5, v2")
    e("v_lshrrev_b32 v3, 5, v0")
    e("v_lshl_add_u32 v2, v3, 4, v2")
    e("s_waitcnt vmcnt(1)")
    flag_store(a, "byte", 5, "1", SRD_WS, sr(sFl[2]), wave0=False)
    stamp_ts(a)
    e(poll_issue(6, SRD_WS, sr(oT2)))
    e("s_waitcnt vmcnt(0)")
    poll_check(a, 6, SRD_WS, sr(oT2), 1, oT0, val=0x01010100, sleep=2)
    stamp_ts(a)
    for c in range(1, 4):
        e("s_xor_b32 %s, %s, %d" % (sr(oT0), sr(oR), c))
        e("s_lshl_b32 %s, %s, 17" % (sr(oT0), sr(oT0)))
        e("s_lshl_b32 %s, %s, 15" % (sr(oCnt), sr(oR)))
        e("s_add_u32 %s, %s, %s" % (sr(oT0), sr(oT0), sr(oCnt)))
        e("s_add_u32 %s, %s, %s" % (sr(oT0), sr(oT0), sr(oT1)))
        e("s_add_u32 %s, %s, 4096" % (sr(oCnt), sr(oT0)))
        for q in range(8):
            e("buffer_load_dwordx4 %s, %s, %s, %s offen offset:%d sc1" % (
                vr(vACC + 32 * c + 4 * q, 4), vr(vLane16), sr(SRD_WS, 4), sr(oT0 if q < 4 else oCnt), (q & 3) * 1024))
    e("s_lshl_b32 %s, %s, 2" % (sr(oT0), sr(oTm)))
    e("s_add_u32 %s, %s, %s" % (sr(oT0), sr(oT0), sr(sWave)))
    e("s_lshl_b32 %s, %s, 17" % (sr(oT0), sr(oT0)))
    e("s_lshl_b32 %s, %s, 8" % (sr(oT2), sr(oTn)))
    e("s_add_u32 %s, %s, %s" % (sr(oT0), sr(oT0), sr(oT2)))
    e("s_lshl_b32 %s, %s, 6" % (sr(oT2), sr(oR)))
    e("s_add_u32 %s, %s, %s" % (sr(oT0), sr(oT0), sr(oT2)))
    for c in range(1, 4):
        e("s_waitcnt vmcnt(%d)" % (24 - 8 * c))
        for i in range(0, 32, 2):
            e("v_pk_add_f32 %s, %s, %s" % (vr(vACC + i, 2), vr(vACC + i, 2), vr(vACC + 32 * c + i, 2)))
    for tb in range(4):
        q0, q1 = vACC + 4 * tb, vACC + 16 + 4 * tb
        d = vACC + 32 + 4 * tb
        e("v_cvt_pk_bf16_f32 %s, %s, %s" % (vr(d), vr(q0), vr(q0 + 1)))
        e("v_cvt_pk_bf16_f32 %s, %s, %s" % (vr(d + 1), vr(q0 + 2), vr(q0 + 3)))
        e("v_cvt_pk_bf16_f32 %s, %s, %s" % (vr(d + 2), vr(q1), vr(q1 + 1)))
        e("v_cvt_pk_bf16_f32 %s, %s, %s" % (vr(d + 3), vr(q1 + 2), vr(q1 + 3)))
    e("s_nop 0")
    for tb in range(4):
        d = vACC + 32 + 4 * tb
        e("v_permlane16_swap_b32 %s, %s" % (vr(d), vr(d + 2)))
        e("v_permlane16_swap_b32 %s, %s" % (vr(d + 1), vr(d + 3)))
        e("buffer_store_dwordx4 %s, v2, %s, %s offen" % (vr(d, 4), sr(SRD_OUT, 4), sr(oT0)))
        e("s_add_u32 %s, %s, 32768" % (sr(oT0), sr(oT0)))
    a.label(name + "_fin")
    stamp_ts(a)


NAME = "gated_mix__compressed_kv_cla__geglu_ffn__prompt_kernel"
HEADER = open('gated_mix__compressed_kv_cla__geglu_ffn__prompt.s.ref').read().split("; Override launch")[0]


def build(opt):
    OPT.clear()
    OPT.update(opt)
    M16HACK[0] = opt.get('m16hack', 0)
    a = Asm()
    kernel_header(a, NAME)
    n = "mk"
    handlers = []
    a.e("s_cmp_ge_u32 s2, 256")
    a.e("s_cbranch_scc1 mk_end")
    part1(a, n, att_prologue)
    part2(a, n, out_prologue, handlers)
    part3(a, n)
    a.label("mk_end")
    a.e("s_endpgm")
    for h in handlers:
        emit_handler(a, *h)
    if opt.get('list', 1):
        out = HEADER + "; @launch kernel=%s grid=(256,1,1) block=(256,1,1) lds=%d\n" % (NAME, LDS)
    else:
        out = HEADER + "; @launch grid=(256,1,1) block=(256,1,1) lds=%d\n" % LDS
    out += '.amdgcn_target "amdgcn-amd-amdhsa--gfx950"\n.text\n' + a.text()
    out += '.section .rodata,"a"\n.p2align 6\n' + kernel_desc(NAME, 512, 102, 256)
    return out


if __name__ == "__main__":
    open(sys.argv[1], "w").write(build(json.loads(sys.argv[2]) if len(sys.argv) > 2 else {}))
```

```python
import sys, json, struct
from asmlib import *

WS_Q = 0
WS_K = 16 << 20
WS_V = 32 << 20
WS_A3 = 48 << 20
WS_G = 80 << 20
WS_P = 81 << 20
WS_STAMP = 128 << 20
WS_SIZE = 268435456
LDS = 163840
WS_F2 = (80 << 20) + 65536
WS_F3 = WS_F2 + 4096
WS_FP = WS_F2 + 8192
WS_FQ = WS_F2 + 65536
WS_F1 = WS_F2 + 32768
ALL1 = 0x01010101

OPT = {}


def f32(x):
    return "0x%08x" % struct.unpack("<I", struct.pack("<f", x))[0]


sPfOff = 3
sPfA, sPfB = 4, 6
sPoll = 7
SRD_DBG, SRD_P = 8, 12
SRD_X, SRD_W, SRD_WS = 44, 48, 52
sWave = 67
sTs = 101
SC = " sc1"


def stamp_ts(a):
    if not OPT.get('ts'):
        return
    l = a.newlabel("ts")
    a.e("s_cmp_lg_u32 %s, 0" % sr(sWave))
    a.e("s_cbranch_scc1 %s" % l)
    a.e("s_memtime vcc")
    a.e("s_waitcnt lgkmcnt(0)")
    a.e("s_mov_b64 exec, 1")
    a.e("v_mov_b32 v30, vcc_lo")
    a.e("v_mov_b32 v31, vcc_hi")
    a.e("s_memrealtime vcc")
    a.e("buffer_store_dwordx2 v[30:31], off, %s, %s" % (sr(SRD_WS, 4), sr(sTs)))
    a.e("s_waitcnt lgkmcnt(0)")
    a.e("v_mov_b32 v30, vcc_lo")
    a.e("v_mov_b32 v31, vcc_hi")
    a.e("buffer_store_dwordx2 v[30:31], off, %s, %s offset:8" % (sr(SRD_WS, 4), sr(sTs)))
    a.e("s_add_u32 %s, %s, 16" % (sr(sTs), sr(sTs)))
    a.e("s_mov_b64 exec, -1")
    a.label(l)


vFl4 = 29


def poll_issue(vdst, srd, soff):
    return "buffer_load_dword %s, %s, %s, %s offen sc1" % (vr(vdst), vr(vFl4), sr(srd, 4), soff)


def poll_check(a, vdst, srd, soff, lanes, tmp, val=ALL1, masked=False, fail=None, sleep=8):
    ok = a.newlabel("pok")
    sp = a.newlabel("pspin")

    def test():
        if masked:
            a.e("v_and_b32 v30, %s, %s" % (sr(sPoll), vr(vdst)))
            a.e("v_cmp_ne_u32 vcc, %s, v30" % sr(sPoll))
        else:
            a.e("v_cmp_ne_u32 vcc, %s, %s" % (sr(sPoll), vr(vdst)))
        if lanes == 64:
            a.e("s_nop 1")
            a.e("s_cmp_eq_u64 vcc, 0")
        elif lanes == 32:
            a.e("s_nop 1")
            a.e("s_cmp_eq_u32 vcc_lo, 0")
        elif lanes == 16:
            a.e("s_nop 1")
            a.e("s_and_b32 vcc_lo, vcc_lo, 0xffff")
            a.e("s_cmp_eq_u32 vcc_lo, 0")
        else:
            a.e("s_nop 1")
            a.e("s_bitcmp0_b32 vcc_lo, 0")
    a.e("s_mov_b32 %s, 0x%x" % (sr(sPoll), val))
    a.e("s_mov_b32 %s, 0x40000" % sr(tmp))
    test()
    if fail:
        a.e("s_cbranch_scc0 %s" % fail)
        return
    a.e("s_cbranch_scc1 %s" % ok)
    a.label(sp)
    a.e("s_sleep %d" % sleep)
    a.e(poll_issue(vdst, srd, soff))
    a.e("s_sub_u32 %s, %s, 1" % (sr(tmp), sr(tmp)))
    a.e("s_cmp_eq_u32 %s, 0" % sr(tmp))
    a.e("s_cbranch_scc1 %s" % ok)
    a.e("s_waitcnt vmcnt(0)")
    test()
    a.e("s_cbranch_scc0 %s" % sp)
    a.label(ok)


def flag_store(a, kind, vtmp, val, srd, soff, wave0=True):
    l = a.newlabel("fs")
    if wave0:
        a.e("s_cmp_lg_u32 %s, 0" % sr(sWave))
        a.e("s_cbranch_scc1 %s" % l)
    a.e("v_mov_b32 %s, %s" % (vr(vtmp), val))
    a.e("s_mov_b64 exec, 1")
    a.e("buffer_store_%s %s, off, %s, %s sc1" % (kind, vr(vtmp), sr(srd, 4), soff))
    a.e("s_mov_b64 exec, -1")
    a.label(l)


S_X, S_CKV, S_WQ, S_WUK, S_WUV, S_WO, S_BX, S_WG, S_WU, S_WD, S_GW, S_OUT, S_DBG, S_WS = [16 + 2 * i for i in range(14)]
sXk, sXk2, sWk, sWstep, sXrow32 = 56, 57, 58, 59, 60
sXdst, sXbeg, sXend = 61, 62, 63
sWm0a, sWm0b = 64, 65
sIter, sJob = 66, 68
sTm, sTn8, sTn7 = 69, 70, 71
sRslot, sDelta, sCp, sCm = 72, 73, 74, 75
sT0, sT1, sT2, sT3 = 76, 77, 78, 79
sOb = 80
sNXlo, sNXhi, sNXn, sNXk, sNXrow32 = 81, 82, 83, 84, 85
sNWlo, sNWhi, sNWn, sNWk, sNWstep, sNm0a, sNm0b = 86, 87, 88, 89, 90, 91, 92
sCA, sCC = 94, 96
sGm0a, sGm0b, sGoff = 98, 99, 100

vXr = [1, 2]
vXdl = [3, 4]
vWr8 = [5, 6, 7, 8, 18, 19, 20, 21]
vWr7 = 9
vXd = [10, 11, 12, 13]
vWd = [14, 15, 16, 17]
vWdN = [22, 23, 24, 25]
vSt = 26
vPf, vPfD = 27, 28
ACC0 = 32
XBASE = 65536


def accq(q):
    if q < 56:
        return ('v', ACC0 + 4 * q)
    return ('a', 4 * (q - 56))


def fragX(xs, tb):
    return 32 + xs * 16 + 4 * tb


def fragW(h, nbl):
    return 64 + h * 32 + 4 * nbl


def mfmas(kind, half, xs, zero=False):
    NBH = 7 if kind == 'G' else 8
    out = []
    for nbl in range(NBH):
        for tb in range(4):
            d = reg(accq((half * NBH + nbl) * 4 + tb), 4)
            w = ar(fragW(half, nbl), 4)
            x = ar(fragX(xs, tb), 4)
            A, B = (x, w) if kind == 'V' else (w, x)
            out.append("v_mfma_f32_16x16x32_bf16 %s, %s, %s, %s" % (d, A, B, "0" if zero else d))
    return out


def reads(kind, p, half):
    slot = p % 4
    pp = p & 1
    out = []
    if half == 0:
        for tb in range(4):
            addr, off = vXr[pp], tb * 2048
            out.append("ds_read_b128 %s, %s offset:%d" % (ar(fragX(pp, tb), 4), vr(addr), off))
    NBH = 7 if kind == 'G' else 8
    for nbl in range(NBH):
        for t in range(2):
            if kind == 'G':
                addr = vWr7
                off = slot * 16384 + half * 8192 + 4 * t * 224 + nbl * 32
            else:
                addr = vWr8[nbl]
                off = slot * 16384 + t * 2048 + half * 256
            out.append("ds_read_b64_tr_b16 %s, %s offset:%d" % (ar(fragW(half, nbl) + 2 * t, 2), vr(addr), off))
    return out


def dmaW(slot):
    g = []
    for j in range(4):
        l = []
        if j == 0:
            l.append("s_add_u32 m0, %s, %d" % (sr(sWm0a), slot * 16384))
        l.append(("DMA", "buffer_load_dwordx4 %s, %s, %s offen offset:%d lds" % (vr(vWd[j]), sr(SRD_W, 4), sr(sWk), j * 1024)))
        g.append(l)
    g[3].append("s_add_u32 %s, %s, %s" % (sr(sWk), sr(sWk), sr(sWstep)))
    return g


def dmaX(half):
    g = []
    for j in range(4):
        l = []
        if j == 0:
            if half == 0:
                l.append("s_mov_b32 m0, %s" % sr(sXdst))
            else:
                l.append("s_add_u32 m0, %s, 4096" % sr(sXdst))
        l.append(("DMA", "buffer_load_dwordx4 %s, %s, %s offen offset:%d lds" % (
            vr(vXd[j]), sr(SRD_X, 4), sr(sXk if half == 0 else sXk2), j * 1024)))
        g.append(l)
    if half == 0:
        g[3].append("s_add_u32 %s, %s, %s" % (sr(sXk2), sr(sXk), sr(sXrow32)))
        g[3].append("s_add_u32 %s, %s, 128" % (sr(sXk), sr(sXk)))
    else:
        g[3].append("s_add_u32 %s, %s, 8192" % (sr(sXdst), sr(sXdst)))
        g[3].append("s_cmp_eq_u32 %s, %s" % (sr(sXdst), sr(sXend)))
        g[3].append("s_cselect_b32 %s, %s, %s" % (sr(sXdst), sr(sXbeg), sr(sXdst)))
    return g


def flat_dma(groups):
    out = []
    for l in groups:
        prev_m0 = False
        for s in l:
            if isinstance(s, tuple):
                if prev_m0:
                    out.append("s_nop 0")
                out.append(s[1])
                prev_m0 = False
            else:
                out.append(s)
                prev_m0 = " m0," in s
    return out


def group(a, kind_m, half, xs, zero, rd, dma, extra=None, flex=None):
    m = mfmas(kind_m, half, xs, zero) if kind_m else []
    n = len(m)
    fill = {g: [] for g in range(n)}
    if n == 0:
        for r in rd:
            a.e(r)
        for x in flat_dma(dma):
            a.e(x)
        return
    for i, r in enumerate(rd):
        fill[i].append(r)
    pos = n - OPT.get('dpos', 20)
    for l in dma:
        pre, post, seen = [], [], False
        for sx in l:
            if isinstance(sx, tuple):
                seen = True
                post.append(sx[1])
            elif not seen:
                pre.append(sx)
            else:
                post.append(sx)
        if pre:
            fill[pos - 1].extend(pre)
        fill[pos].append(post[0])
        if post[1:]:
            fill[pos + 1].extend(post[1:])
        pos += 4
    for gi, xs_ in (extra or []):
        if gi < 0:
            gi += n
        fill[gi].extend(xs_)
    fl = list(flex or [])
    slots = [g for g in range(n - 1) if len(fill[g]) == 0] + [g for g in range(n - 1) if len(fill[g]) <= 1]
    slots = sorted(slots[:len(fl)])
    assert len(slots) == len(fl)
    for g, x in zip(slots, fl):
        fill[g].append(x)
    interleave(a, m, fill)


SRD_ST = 40
sStA, sStB, sStD, sStE = 26, 27, 28, 29
STASH = 128
ST_IMM = [0, 1024, 2048, 3072]


def st_moves(p):
    out = []
    for lvl in range(3):
        for c in range(8 * p, 8 * p + 8):
            out.append("v_accvgpr_mov_b32 %s, %s" % (ar(STASH + 32 * lvl + c), ar(STASH + 32 * (lvl + 1) + c)))
    return out


def st_stores(p):
    out = []
    for x in range(2):
        i = 2 * p + x
        out.append("buffer_store_dwordx4 %s, %s, %s, %s offen offset:%d%s" % (
            ar(STASH + 4 * i, 4), vr(vSt), sr(SRD_WS, 4), sr(sStA if i < 4 else sStB), ST_IMM[i & 3], SC))
    return out


def st_advance():
    return ["s_add_u32 %s, %s, %s" % (sr(sStA), sr(sStA), sr(sStD)),
            "s_add_u32 %s, %s, 4096" % (sr(sStB), sr(sStA)),
            "s_xor_b32 %s, %s, %d" % (sr(sStD), sr(sStD), 8192 ^ (524288 - 8192))]


def xr_update(s):
    return "v_add_u32 %s, %s, %s" % (vr(vXr[s]), sr(sDelta), vr(vXr[s]))


def delta_update():
    return ["s_add_u32 %s, %s, 1" % (sr(sRslot), sr(sRslot)),
            "s_cmp_eq_u32 %s, 3" % sr(sRslot),
            "s_cselect_b32 %s, %s, %s" % (sr(sDelta), sr(sCm), sr(sCp)),
            "s_cselect_b32 %s, 0, %s" % (sr(sRslot), sr(sRslot))]


def pf_setup():
    lst = sPfA
    return [
        "s_and_b32 %s, %s, 15" % (sr(sT2), sr(lst)),
        "s_lshl_b32 %s, %s, 3" % (sr(sT2), sr(sT2)),
        "s_load_dwordx2 %s, s[0:1], %s" % (sr(SRD_P, 2), sr(sT2)),
        "s_bfe_u32 %s, %s, 0x40004" % (sr(sT3), sr(lst)),
        "s_cmp_eq_u32 %s, 15" % sr(sT3),
        "s_cselect_b32 %s, 0, -1" % sr(sPfB),
        "s_lshl_b32 %s, %s, 20" % (sr(sT3), sr(sT3)),
        "s_add_u32 %s, %s, %s" % (sr(sT3), sr(sT3), sr(sPfOff)),
        "s_lshr_b64 %s, %s, 8" % (sr(lst, 2), sr(lst, 2)),
        "s_or_b32 %s, %s, 0xf0000000" % (sr(lst + 1), sr(lst + 1)),
    ]


def pf_load():
    return "buffer_load_dword %s, %s, %s, %s offen" % (vr(vPfD), vr(vPf), sr(SRD_P, 4), sr(sT3))


def pf_lists(a, L):
    for w in range(4):
        v = 0
        for i in range(8):
            sl, mb = L[w][i] if i < len(L[w]) else (0, 15)
            v |= (sl | (mb << 4)) << (8 * i)
        if w == 0:
            a.e("s_mov_b32 %s, 0x%x" % (sr(sPfA), v & 0xffffffff))
            a.e("s_mov_b32 %s, 0x%x" % (sr(sPfA + 1), v >> 32))
        else:
            a.e("s_cmp_eq_u32 %s, %d" % (sr(sWave), w))
            a.e("s_cselect_b32 %s, 0x%x, %s" % (sr(sPfA), v & 0xffffffff, sr(sPfA)))
            a.e("s_cselect_b32 %s, 0x%x, %s" % (sr(sPfA + 1), v >> 32, sr(sPfA + 1)))


PF_PLANS = {
    'f': [(2, i) for i in range(4, 8)] + [(4, i) for i in range(4)] + [(7, i) for i in range(4)] + [(8, i) for i in range(4)] + [(7, i) for i in range(4, 7)] + [(8, i) for i in range(4, 7)],
    'g': [(2, 2), (3, 2), (2, 3), (3, 3), (2, 4), (4, 0), (2, 5), (4, 1), (2, 6), (4, 2), (2, 7), (4, 3)] + [(s_, i) for i in range(7) for s_ in (7, 8)],
    'a': [(0, 0), (0, 2), (1, 0), (2, 2), (3, 2), (2, 4), (4, 0), (2, 6), (4, 2), (7, 0), (8, 0), (7, 2), (8, 2), (7, 4), (8, 4), (7, 5), (8, 5)],
    'b': [(0, 0), (0, 2), (1, 0), (2, 2), (3, 2), (2, 4), (4, 0), None, (2, 6), (4, 2), (7, 0), None, (8, 0), (7, 2), (8, 2), None, (7, 4), (8, 4), None, (7, 5), None, (8, 5)],
    'c': [(2, 0), (3, 0), (0, 0), (0, 2), (1, 0), (2, 2), (3, 2), (2, 4), (4, 0), (2, 6), (4, 2), (7, 0), (8, 0), (7, 2), (8, 2), (7, 4), (8, 4), (7, 5), (8, 5)],
    'd': [(2, 4), None, (2, 6), None, (4, 0), None, (4, 2), None, (7, 0), None, (8, 0), None, (7, 2), None, (8, 2), None, (7, 4), None, (8, 4), None, (7, 5), None, (8, 5)],
    'e': [(0, 0), (0, 2), (1, 0), (2, 2), (3, 2), None, (2, 4), None, (4, 0), None, (2, 6), None, (4, 2), None, (7, 0), None, (8, 0), None, (7, 2), None, (8, 2), None, (7, 4), None, (8, 4), None, (7, 5), None, (8, 5)],
}


def switchX(a):
    for d, s in ((SRD_X, sNXlo), (SRD_X + 1, sNXhi), (SRD_X + 2, sNXn), (sXk, sNXk), (sXrow32, sNXrow32)):
        a.e("s_mov_b32 %s, %s" % (sr(d), sr(s)))


def switchW(a):
    for d, s in ((SRD_W, sNWlo), (SRD_W + 1, sNWhi), (SRD_W + 2, sNWn), (sWk, sNWk), (sWstep, sNWstep), (sWm0a, sNm0a), (sWm0b, sNm0b)):
        a.e("s_mov_b32 %s, %s" % (sr(d), sr(s)))


def nwait(st, pf):
    tail = (2 if st else 0) + (1 if pf else 0)
    return tail + 2 * (8 + tail)


def interval(a, kind, p, half='both', kindA=None, zero=False, st=False, pf=False, vm=None, pre=None):
    mv = st_moves((p - 1) % 4) if st and not (zero and p == 0) else []
    if half in ('both', 'A'):
        a.e("s_waitcnt vmcnt(%d) lgkmcnt(0)" % (nwait(st, pf) if vm is None else vm))
        a.e("s_barrier")
        for x in (pre or []):
            a.e(x)
        ka = kind if kindA is None else kindA
        ex = []
        if ka == 'none':
            ka = None
        if p == 1 and pf:
            ps = pf_setup()
            ex += [(-7, ps[0:2]), (-6, ps[2:4]), (-5, ps[4:6]), (-3, ps[6:8]), (-2, ps[8:10])]
        if p == 0 and st:
            sa = st_advance()
            ex += [(-7, sa[0:2]), (-6, sa[2:3])]
        if p & 1:
            du = delta_update()
            ex += [(-11, du[0:1]), (-10, du[1:4]), (-4, [xr_update(0), xr_update(1)])]
        group(a, ka, 1, (p - 1) & 1, zero, reads(kind, p, 0), dmaW((p + 3) % 4), ex, mv[:8])
    if half in ('both', 'B'):
        a.e("s_waitcnt lgkmcnt(0)")
        ex = []
        if pf:
            ex.append((-10, ["s_cmp_eq_u32 %s, %d" % (sr(sWave), p), "s_cselect_b32 %s, %s, 0" % (sr(SRD_P + 2), sr(sPfB))]))
        if st:
            ss = st_stores(p)
            ex += [(-6, [ss[0]]), (-4, [ss[1]])]
        if pf:
            ex.append((-3, [pf_load()]))
        group(a, kind, 0, p & 1, zero, reads(kind, p, 1), dmaX(p & 1), ex, mv[8:])


def align(a):
    if OPT.get('align', 1):
        a.raw(".p2align 6")


def loop(a, kind, name, vswitch, hook=None, st=False, pf=False, last=1, switch=True, hook3=None):
    align(a)
    a.label(name + "_top")
    interval(a, kind, 0, 'A', st=st, pf=pf)
    if hook:
        hook(a)
    if switch:
        a.e("s_cmp_lg_u32 %s, 1" % sr(sIter))
        a.e("s_cbranch_scc1 %s_nsx" % name)
        switchX(a)
        vswitch(a, 'X')
        a.label(name + "_nsx")
    interval(a, kind, 0, 'B', st=st, pf=pf)
    stamp_ts(a)
    if switch:
        a.e("s_cmp_lg_u32 %s, 1" % sr(sIter))
        a.e("s_cbranch_scc1 %s_nsw" % name)
        switchW(a)
        vswitch(a, 'W')
        a.label(name + "_nsw")
    interval(a, kind, 1, 'A', st=st, pf=pf)
    a.label(name + "_entry")
    interval(a, kind, 1, 'B', st=st, pf=pf)
    interval(a, kind, 2, st=st, pf=pf)
    if hook3:
        hook3(a)
    interval(a, kind, 3, st=st, pf=pf)
    a.e("s_sub_u32 %s, %s, 1" % (sr(sIter), sr(sIter)))
    a.e("s_cmp_lg_u32 %s, %d" % (sr(sIter), last - 1))
    a.e("s_cbranch_scc1 %s_top" % name)


def job_start(a, kind, name, st, pf):
    interval(a, kind, 0, 'B', zero=True, st=st, pf=pf)
    stamp_ts(a)
    interval(a, kind, 1, 'A', zero=True, st=st, pf=pf, vm=19)
    a.e("s_branch %s_entry" % name)


def epilogue_kqv(a, kind, scale=None):
    e = a.e
    e("s_mov_b32 %s, %s" % (sr(sStA), sr(sOb)))
    e("s_add_u32 %s, %s, 4096" % (sr(sStB), sr(sOb)))
    e("s_mov_b32 %s, 8192" % sr(sStD))
    e("s_mov_b32 %s, 0" % sr(SRD_P + 2))
    for i in range(4):
        e(pf_load())
    chunks = []
    if kind == 'V':
        for db in range(8):
            for tb in range(4):
                sq = 8 * ((db >> 2) * 2 + (tb >> 1)) + (tb & 1) * 4 + (db & 3)
                chunks.append((2 * db * 4 + tb, (2 * db + 1) * 4 + tb, sq))
    else:
        for nb in range(16):
            for a2 in range(2):
                sq = 8 * ((nb >> 3) * 2 + a2) + (nb & 7)
                chunks.append((nb * 4 + 2 * a2, nb * 4 + 2 * a2 + 1, sq))
    pend = []
    for q0, q1, sq in chunks:
        rs = []
        for n_, q in enumerate((q0, q1)):
            k, r = accq(q)
            if k == 'a':
                rv = ACC0 + 4 * (q - 56)
                for i in range(4):
                    e("v_accvgpr_read_b32 %s, %s" % (vr(rv + i), ar(r + i)))
                r = rv
            rs.append(r)
        if scale is not None:
            for r in rs:
                for i in (0, 2):
                    e("v_pk_mul_f32 %s, %s, %s" % (vr(r + i, 2), vr(r + i, 2), sr(scale, 2)))
        for r in rs:
            for i in range(2):
                e("v_cvt_pk_bf16_f32 %s, %s, %s" % (vr(r + i), vr(r + 2 * i), vr(r + 2 * i + 1)))
        for x in pend:
            e(x)
        pend = ["v_permlane16_swap_b32 %s, %s" % (vr(rs[0] + i), vr(rs[1] + i)) for i in range(2)]
        for n_, r in enumerate(rs):
            for i in range(2):
                pend.append("v_accvgpr_write_b32 %s, %s" % (ar(STASH + 4 * sq + 2 * n_ + i), vr(r + i)))
    e("s_nop 1")
    for x in pend:
        e(x)


vG1 = [20, 21, 22, 23]


def epilogue_gu(a, mid=None):
    e = a.e
    A = -2.0 * 1.4426950408889634 * 0.7978845608028654
    B = A * 0.044715
    e("s_mov_b32 %s, %s" % (sr(sCC), f32(B)))
    e("s_mov_b32 %s, %s" % (sr(sCC + 1), f32(B)))
    e("v_mov_b32 v10, %s" % f32(A))
    e("v_mov_b32 v11, %s" % f32(A))
    first = True
    pend = []
    for fb in range(7):
        for a2 in range(2):
            if mid and (fb, a2) in mid:
                mid[(fb, a2)]()
            wk = [(fb, 2 * a2), (fb, 2 * a2 + 1)]
            G = [accq(f_ * 4 + tb)[1] for f_, tb in wk]
            U = [accq(28 + f_ * 4 + tb)[1] for f_, tb in wk]
            prs = [(G[0], U[0], 12, wk[0][1]), (G[0] + 2, U[0] + 2, 14, wk[0][1]), (G[1], U[1], 16, wk[1][1]), (G[1] + 2, U[1] + 2, 18, wk[1][1])]
            for g, u, t, tb in prs:
                e("v_pk_mul_f32 %s, %s, %s" % (vr(t, 2), vr(g, 2), vr(g, 2)))
            for x in pend:
                e(x)
            for g, u, t, tb in prs:
                e("v_pk_fma_f32 %s, %s, %s, v[10:11]" % (vr(t, 2), vr(t, 2), sr(sCC, 2)))
            for g, u, t, tb in prs:
                e("v_pk_mul_f32 %s, %s, %s" % (vr(t, 2), vr(t, 2), vr(g, 2)))
            for i in range(8):
                e("v_exp_f32 %s, %s" % (vr(12 + i), vr(12 + i)))
            for g, u, t, tb in prs:
                e("v_pk_mul_f32 %s, %s, %s" % (vr(g, 2), vr(g, 2), vr(u, 2)))
            if first:
                first = False
                e("s_waitcnt vmcnt(%d)" % ATT_PRO_LOADS)
                for t2 in range(4):
                    e("v_sub_f32 %s, 1.0, %s" % (vr(vG1[t2]), vr(vG1[t2])))
                    e("v_max_f32 %s, %s, %s" % (vr(vG1[t2]), f32(1e-30), vr(vG1[t2])))
                    e("v_rcp_f32 %s, %s" % (vr(vG1[t2]), vr(vG1[t2])))
                e("s_nop 0")
            for g, u, t, tb in prs:
                gp = vG1[tb] & ~1
                hi = vG1[tb] & 1
                e("v_pk_fma_f32 %s, %s, %s, %s op_sel:[0,%d,%d] op_sel_hi:[1,%d,%d]" % (vr(t, 2), vr(t, 2), vr(gp, 2), vr(gp, 2), hi, hi, hi, hi))
            for i in range(8):
                e("v_rcp_f32 %s, %s" % (vr(12 + i), vr(12 + i)))
            o = a2 * 480 * 1024 + fb * 1024
            e("s_nop 0")
            for g, u, t, tb in prs:
                e("v_pk_mul_f32 %s, %s, %s" % (vr(g, 2), vr(g, 2), vr(t, 2)))
            d = U[0]
            for n_, (g, u, t, tb) in enumerate(prs):
                e("v_cvt_pk_bf16_f32 %s, %s, %s" % (vr(d + n_), vr(g), vr(g + 1)))
            pend = ["s_add_u32 %s, %s, %d" % (sr(sT0), sr(sOb), o & ~4095),
                    "v_permlane16_swap_b32 %s, %s" % (vr(d), vr(d + 2)),
                    "v_permlane16_swap_b32 %s, %s" % (vr(d + 1), vr(d + 3)),
                    "buffer_store_dwordx4 %s, %s, %s, %s offen offset:%d%s" % (vr(d, 4), vr(vSt), sr(SRD_WS, 4), sr(sT0), o & 4095, SC)]
    e("s_nop 0")
    for x in pend:
        e(x)


N_H_STORES = 14


def decode_att(a, dhead, dpair, t0, t1):
    e = a.e
    e("s_and_b32 %s, s2, 7" % sr(t0))
    e("s_lshr_b32 %s, s2, 3" % sr(t1))
    if OPT.get('amap', 1):
        e("s_lshl_b32 %s, %s, 2" % (sr(dhead), sr(t0)))
        e("s_bfe_u32 %s, %s, 0x20002" % (sr(t0), sr(t1)))
        e("s_add_u32 %s, %s, %s" % (sr(dhead), sr(dhead), sr(t0)))
        e("s_and_b32 %s, %s, 3" % (sr(dpair), sr(t1)))
        e("s_lshr_b32 %s, %s, 4" % (sr(t1), sr(t1)))
        e("s_lshl_b32 %s, %s, 2" % (sr(t1), sr(t1)))
        e("s_add_u32 %s, %s, %s" % (sr(dpair), sr(dpair), sr(t1)))
    else:
        e("s_and_b32 %s, %s, 7" % (sr(dpair), sr(t1)))
        e("s_lshr_b32 %s, %s, 3" % (sr(t1), sr(t1)))
        e("s_lshl_b32 %s, %s, 2" % (sr(dhead), sr(t0)))
        e("s_add_u32 %s, %s, %s" % (sr(dhead), sr(dhead), sr(t1)))


sF1w, sF1r = 93, 34


def part1(a, name, att_prologue):
    e = a.e
    e("s_load_dwordx16 s[16:31], s[0:1], 0")
    e("s_load_dwordx8 s[32:39], s[0:1], 64")
    e("s_load_dwordx4 s[40:43], s[0:1], 96")
    e("v_lshrrev_b32 v27, 6, v0")
    e("v_and_b32 v0, 63, v0")
    e("v_readfirstlane_b32 %s, v27" % sr(sWave))
    e("v_lshlrev_b32 %s, 2, v0" % vr(vFl4))
    e("s_and_b32 %s, s2, 7" % sr(sT0))
    e("s_lshr_b32 %s, s2, 3" % sr(sT1))
    e("s_and_b32 %s, %s, 1" % (sr(sT2), sr(sT0)))
    e("s_lshl_b32 %s, %s, 2" % (sr(sT2), sr(sT2)))
    e("s_and_b32 %s, %s, 3" % (sr(sT3), sr(sT1)))
    e("s_add_u32 %s, %s, %s" % (sr(sTm), sr(sT2), sr(sT3)))
    e("s_lshr_b32 %s, %s, 1" % (sr(sT0), sr(sT0)))
    e("s_lshr_b32 %s, %s, 2" % (sr(sT2), sr(sT1)))
    e("s_lshl_b32 %s, %s, 3" % (sr(sT3), sr(sT0)))
    e("s_add_u32 %s, %s, %s" % (sr(sTn7), sr(sT3), sr(sT2)))
    e("s_and_b32 %s, %s, 3" % (sr(sT2), sr(sT2)))
    e("s_lshl_b32 %s, %s, 2" % (sr(sT3), sr(sT0)))
    e("s_add_u32 %s, %s, %s" % (sr(sTn8), sr(sT3), sr(sT2)))
    e("s_lshr_b32 %s, %s, 4" % (sr(sJob), sr(sT1)))
    for s in (SRD_X, SRD_W, SRD_WS, SRD_DBG, SRD_P):
        e("s_mov_b32 %s, 0x20000" % sr(s + 3))
    e("s_mov_b32 %s, %d" % (sr(SRD_WS + 2), WS_SIZE))
    e("s_mov_b32 %s, 256" % sr(SRD_DBG + 2))
    e("s_mov_b32 %s, 8192" % sr(sCp))
    e("s_mov_b32 %s, -16384" % sr(sCm))
    e("s_mov_b32 %s, 0" % sr(sRslot))
    e("s_mul_i32 %s, %s, 24576" % (sr(sXbeg), sr(sWave)))
    e("s_add_u32 %s, %s, %d" % (sr(sXbeg), sr(sXbeg), XBASE))
    e("s_add_u32 %s, %s, 24576" % (sr(sXend), sr(sXbeg)))
    e("s_mov_b32 %s, %s" % (sr(sXdst), sr(sXbeg)))
    T0, T1, T2, T3, T4 = 27, 28, 30, 31, 26
    e("v_lshrrev_b32 v%d, 3, v0" % T0)
    e("s_lshl_b32 %s, %s, 6" % (sr(sT0), sr(sWave)))
    e("v_add_u32 v%d, %s, v%d" % (T0, sr(sT0), T0))
    e("v_and_b32 v%d, 7, v0" % T1)
    e("v_lshrrev_b32 v%d, 4, v0" % T4)
    e("v_xor_b32 v%d, v%d, v%d" % (T1, T1, T4))
    e("v_xor_b32 v%d, 4, v%d" % (T4, T1))
    e("s_movk_i32 %s, 11" % sr(sT1))
    e("s_sub_u32 %s, %s, %s" % (sr(sT1), sr(sT1), sr(sJob)))
    for j in range(4):
        ch = T1 if (j & 1) == 0 else T4
        e("v_add_u32 v%d, %d, v%d" % (T2, 8 * j, T0))
        e("v_lshlrev_b32 v%d, %s, v%d" % (T3, sr(sT1), T2))
        e("v_lshl_add_u32 v%d, v%d, 4, v%d" % (T3, ch, T3))
        e("v_subrev_u32 %s, %d, v%d" % (vr(vXd[j]), 1024 * j, T3))
    e("v_lshrrev_b32 v%d, 5, v0" % T0)
    e("s_lshl_b32 %s, %s, 3" % (sr(sT0), sr(sWave)))
    e("v_bfe_u32 v%d, v0, 2, 3" % T1)
    e("v_and_b32 v%d, 3, v0" % T4)
    e("s_and_b32 %s, %s, 1" % (sr(sT1), sr(sWave)))
    e("s_lshl_b32 %s, %s, 1" % (sr(sT1), sr(sT1)))
    e("v_xor_b32 v%d, %s, v%d" % (T4, sr(sT1), T4))
    e("v_lshlrev_b32 v%d, 4, v%d" % (T4, T4))
    for j in range(4):
        e("v_add_u32 v%d, %d, v%d" % (T2, 2 * j, T0))
        e("v_and_b32 v%d, 3, v%d" % (T3, T2))
        e("v_xor_b32 v%d, v%d, v%d" % (T3, T3, T1))
        e("v_add_u32 v%d, %s, v%d" % (T2, sr(sT0), T2))
        e("v_lshlrev_b32 v%d, 13, v%d" % (T2, T2))
        e("v_lshl_add_u32 v%d, v%d, 6, v%d" % (T2, T3, T2))
        e("v_add_u32 v%d, v%d, v%d" % (T2, T2, T4))
        e("v_subrev_u32 %s, %d, v%d" % (vr(vWd[j]), 1024 * j, T2))
    e("s_lshl_b32 %s, %s, 12" % (sr(sWm0a), sr(sWave)))
    e("s_mov_b32 %s, %s" % (sr(sWm0b), sr(sWm0a)))
    e("s_waitcnt lgkmcnt(0)")
    e("s_mov_b32 %s, %s" % (sr(SRD_WS), sr(S_WS)))
    e("s_mov_b32 %s, %s" % (sr(SRD_WS + 1), sr(S_WS + 1)))
    e("s_mov_b32 %s, %s" % (sr(SRD_DBG), sr(S_DBG)))
    e("s_mov_b32 %s, %s" % (sr(SRD_DBG + 1), sr(S_DBG + 1)))
    if OPT.get('ts'):
        e("s_lshl_b32 %s, s2, 11" % sr(sTs))
        e("s_add_u32 %s, %s, %d" % (sr(sTs), sr(sTs), WS_STAMP))
    stamp_ts(a)
    e("s_cmp_eq_u32 %s, 0" % sr(sJob))
    e("s_cselect_b32 %s, %s, %s" % (sr(SRD_X), sr(S_X), sr(S_CKV)))
    e("s_cselect_b32 %s, %s, %s" % (sr(SRD_X + 1), sr(S_X + 1), sr(S_CKV + 1)))
    e("s_cselect_b32 %s, %s, %s" % (sr(SRD_W), sr(S_WQ), sr(S_WUK)))
    e("s_cselect_b32 %s, %s, %s" % (sr(SRD_W + 1), sr(S_WQ + 1), sr(S_WUK + 1)))
    e("s_cselect_b32 %s, 8, 4" % sr(sIter))
    e("s_lshr_b32 %s, %d, %s" % (sr(SRD_X + 2), 2048 * 1024 * 2, sr(sJob)))
    e("s_lshr_b32 %s, %d, %s" % (sr(SRD_W + 2), 1024 * 4096 * 2, sr(sJob)))
    e("s_lshl_b32 %s, %s, 19" % (sr(sXk), sr(sTm)))
    e("s_lshr_b32 %s, %s, %s" % (sr(sXk), sr(sXk), sr(sJob)))
    e("s_lshr_b32 %s, 65536, %s" % (sr(sXrow32), sr(sJob)))
    e("s_lshl_b32 %s, %s, 9" % (sr(sWk), sr(sTn8)))
    e("s_mov_b32 %s, %d" % (sr(sWstep), 32 * 8192))
    e("s_mov_b32 %s, %s" % (sr(SRD_P), sr(S_X)))
    e("s_mov_b32 %s, %s" % (sr(SRD_P + 1), sr(S_X + 1)))
    e("s_mov_b32 %s, %d" % (sr(SRD_P + 2), 2048 * 1024 * 2))
    e("s_lshl_b32 %s, s2, 3" % sr(sT0))
    e("s_lshl_b32 %s, %s, 1" % (sr(sT1), sr(sWave)))
    e("s_add_u32 %s, %s, %s" % (sr(sT0), sr(sT0), sr(sT1)))
    e("s_lshl_b32 %s, %s, 11" % (sr(sT1), sr(sT0)))
    e("v_lshlrev_b32 v27, 5, v0")
    e("buffer_load_dwordx4 v[32:35], v27, %s, %s offen" % (sr(SRD_P, 4), sr(sT1)))
    e("buffer_load_dwordx4 v[36:39], v27, %s, %s offen offset:16" % (sr(SRD_P, 4), sr(sT1)))
    e("buffer_load_dwordx4 v[40:43], v27, %s, %s offen offset:2048" % (sr(SRD_P, 4), sr(sT1)))
    e("buffer_load_dwordx4 v[44:47], v27, %s, %s offen offset:2064" % (sr(SRD_P, 4), sr(sT1)))
    e("s_mov_b32 %s, %s" % (sr(SRD_P), sr(S_GW)))
    e("s_mov_b32 %s, %s" % (sr(SRD_P + 1), sr(S_GW + 1)))
    e("s_mov_b32 %s, 2048" % sr(SRD_P + 2))
    e("buffer_load_dwordx4 v[48:51], v27, %s, 0 offen" % sr(SRD_P, 4))
    e("buffer_load_dwordx4 v[52:55], v27, %s, 0 offen offset:16" % sr(SRD_P, 4))
    e("s_lshl_b32 %s, %s, 2" % (sr(sGoff), sr(sT0)))
    e("s_add_u32 %s, %s, %d" % (sr(sGoff), sr(sGoff), WS_G))
    for x in flat_dma(dmaW(0)) + flat_dma(dmaX(0)) + flat_dma(dmaX(1)) + flat_dma(dmaW(1)) + \
            flat_dma(dmaX(0)) + flat_dma(dmaW(2)) + flat_dma(dmaX(1)):
        e(x)
    e("v_and_b32 v%d, 15, v0" % T0)
    e("v_lshrrev_b32 v%d, 4, v0" % T1)
    e("v_lshrrev_b32 v%d, 1, v%d" % (T4, T0))
    e("v_lshlrev_b32 v%d, 7, v%d" % (T2, T0))
    e("v_add_u32 v%d, %s, v%d" % (T2, sr(sXbeg), T2))
    for s_ in range(2):
        e("v_add_u32 v%d, %d, v%d" % (T3, 4 * s_, T1))
        e("v_xor_b32 v%d, v%d, v%d" % (T3, T3, T4))
        e("v_lshl_add_u32 %s, v%d, 4, v%d" % (vr(vXr[s_]), T3, T2))
    e("v_and_b32 v%d, 3, v%d" % (T2, T0))
    e("v_bfe_u32 v%d, v%d, 2, 1" % (T3, T0))
    e("v_lshl_add_u32 v%d, v%d, 3, v%d" % (T2, T3, T2))
    e("v_bfe_u32 v%d, v%d, 3, 1" % (T3, T0))
    e("v_lshl_add_u32 v%d, v%d, 2, v%d" % (T2, T3, T2))
    e("v_lshrrev_b32 v%d, 1, v%d" % (T4, T2))
    e("v_lshlrev_b32 v%d, 7, v%d" % (T2, T2))
    e("v_add_u32 v%d, %s, v%d" % (T2, sr(sXbeg), T2))
    for s_ in range(2):
        e("v_add_u32 v%d, %d, v%d" % (T3, 4 * s_, T1))
        e("v_xor_b32 v%d, v%d, v%d" % (T3, T3, T4))
        e("v_lshl_add_u32 v%d, v%d, 4, v%d" % (T3, T3, T2))
        e("v_sub_u32 %s, v%d, %s" % (vr(vXdl[s_]), T3, vr(vXr[s_])))
    e("v_bfe_u32 v%d, v0, 2, 2" % T0)
    e("v_and_b32 v%d, 3, v0" % T2)
    e("v_lshl_add_u32 v%d, v%d, 3, v%d" % (T3, T1, T0))
    e("v_lshlrev_b32 v%d, 3, v%d" % (T2, T2))
    e("v_mul_u32_u24 %s, 224, v%d" % (vr(vWr7), T0))
    e("v_mul_u32_u24 v%d, 1920, v%d" % (T4, T1))
    e("v_add3_u32 %s, %s, v%d, v%d" % (vr(vWr7), vr(vWr7), T4, T2))
    e("v_lshl_add_u32 v%d, v%d, 9, v%d" % (T3, T3, T2))
    e("v_lshlrev_b32 v%d, 1, v%d" % (T0, T0))
    e("v_and_b32 v%d, 1, v%d" % (T4, T1))
    e("v_xor_b32 v%d, v%d, v%d" % (T0, T0, T4))
    for q in range(8):
        e("v_xor_b32 v%d, %d, v%d" % (T2, q, T0))
        e("v_lshl_add_u32 %s, v%d, 5, v%d" % (vr(vWr8[q]), T2, T3))
    e("s_and_b32 %s, %s, 1" % (sr(sT0), sr(sWave)))
    e("s_lshl_b32 %s, %s, 8" % (sr(sT1), sr(sT0)))
    e("v_add_u32 v%d, %s, v0" % (T0, sr(sT1)))
    for j in range(4):
        D = vWdN[j]
        e("v_add_u32 v%d, %d, v%d" % (T1, 64 * j, T0))
        e("v_mul_u32_u24 v%d, 547, v%d" % (T2, T1))
        e("v_lshrrev_b32 v%d, 16, v%d" % (T2, T2))
        e("v_mul_u32_u24 v%d, 120, v%d" % (T3, T2))
        e("v_sub_u32 v%d, v%d, v%d" % (T3, T1, T3))
        e("v_mul_u32_u24 v%d, 4682, v%d" % (T4, T3))
        e("v_lshrrev_b32 v%d, 16, v%d" % (T4, T4))
        e("v_mul_u32_u24 v%d, 14, v%d" % (T1, T4))
        e("v_sub_u32 v%d, v%d, v%d" % (T3, T3, T1))
        e("v_lshl_add_u32 v%d, v%d, 3, v%d" % (T1, T2, T4))
        e("v_mul_u32_u24 v%d, 7168, v%d" % (T1, T1))
        e("v_lshl_add_u32 v%d, v%d, 4, v%d" % (T1, T3, T1))
        e("v_subrev_u32 v%d, %d, v%d" % (T1, 1024 * j, T1))
        e("v_lshrrev_b32 v%d, 3, v%d" % (T4, T4))
        e("v_lshrrev_b32 v%d, 2, v%d" % (T2, T2))
        e("v_or_b32 v%d, v%d, v%d" % (T2, T2, T4))
        e("v_lshl_or_b32 v%d, v%d, 30, v%d" % (D, T2, T1))

    def set_next_gu():
        e("s_mov_b32 %s, %s" % (sr(sNXlo), sr(S_X)))
        e("s_mov_b32 %s, %s" % (sr(sNXhi), sr(S_X + 1)))
        e("s_mov_b32 %s, %d" % (sr(sNXn), 2048 * 1024 * 2))
        e("s_lshl_b32 %s, %s, 19" % (sr(sNXk), sr(sTm)))
        e("s_mov_b32 %s, 65536" % sr(sNXrow32))
        e("s_cmp_lt_u32 %s, 2" % sr(sWave))
        e("s_cselect_b32 %s, %s, %s" % (sr(sNWlo), sr(S_WG), sr(S_WU)))
        e("s_cselect_b32 %s, %s, %s" % (sr(sNWhi), sr(S_WG + 1), sr(S_WU + 1)))
        e("s_mov_b32 %s, %d" % (sr(sNWn), 1024 * 3584 * 2))
        e("s_mul_i32 %s, %s, 224" % (sr(sNWk), sr(sTn7)))
        e("s_mov_b32 %s, %d" % (sr(sNWstep), 32 * 7168))
        e("s_mov_b32 %s, %s" % (sr(sNm0a), sr(sWm0a)))
        e("s_mov_b32 %s, %s" % (sr(sNm0b), sr(sWm0b)))

    def set_next_v():
        e("s_mov_b32 %s, %s" % (sr(sNXlo), sr(S_CKV)))
        e("s_mov_b32 %s, %s" % (sr(sNXhi), sr(S_CKV + 1)))
        e("s_mov_b32 %s, %d" % (sr(sNXn), 2048 * 512 * 2))
        e("s_lshl_b32 %s, %s, 18" % (sr(sNXk), sr(sTm)))
        e("s_mov_b32 %s, 32768" % sr(sNXrow32))
        e("s_mov_b32 %s, %s" % (sr(sNWlo), sr(S_WUV)))
        e("s_mov_b32 %s, %s" % (sr(sNWhi), sr(S_WUV + 1)))
        e("s_mov_b32 %s, %d" % (sr(sNWn), 512 * 4096 * 2))
        e("s_lshl_b32 %s, %s, 9" % (sr(sNWk), sr(sTn8)))
        e("s_mov_b32 %s, %d" % (sr(sNWstep), 32 * 8192))
        e("s_mov_b32 %s, %s" % (sr(sNm0a), sr(sWm0a)))
        e("s_mov_b32 %s, %s" % (sr(sNm0b), sr(sWm0b)))

    e("s_cmp_eq_u32 %s, 0" % sr(sJob))
    e("s_cbranch_scc0 %s_nB" % name)
    set_next_gu()
    e("s_branch %s_nC" % name)
    a.label(name + "_nB")
    set_next_v()
    a.label(name + "_nC")
    e("s_lshl_b32 %s, %s, 14" % (sr(sT0), sr(sWave)))
    e("v_lshlrev_b32 %s, 4, v0" % vr(vSt))
    e("v_add_u32 %s, %s, %s" % (vr(vSt), sr(sT0), vr(vSt)))
    plan = PF_PLANS[OPT.get('plan', 'd')]
    L4 = [[], [], [], []]
    for n_ in range(32):
        ent = plan[n_] if n_ < len(plan) and plan[n_] else (0, 15)
        L4[(n_ + 1) % 4].append(ent)
    pf_lists(a, L4)
    if OPT.get('plan', 'd') in ('f', 'g'):
        e("s_lshl_b32 %s, s2, 12" % sr(sPfOff))
        e("v_and_b32 %s, 31, v0" % vr(vPf))
        e("v_lshlrev_b32 %s, 7, %s" % (vr(vPf), vr(vPf)))
    else:
        e("s_lshl_b32 %s, s2, 13" % sr(sPfOff))
        e("v_lshlrev_b32 %s, 7, v0" % vr(vPf))
    e("s_mov_b32 %s, 0" % sr(sPfB))
    e("s_mov_b32 %s, 0" % sr(sT3))

    def vsw_k(a, which):
        if which == 'W':
            l = a.newlabel("vsw")
            a.e("s_cmp_lg_u32 %s, 0" % sr(sJob))
            a.e("s_cbranch_scc1 %s" % l)
            for j in range(4):
                a.e("v_mov_b32 %s, %s" % (vr(vWd[j]), vr(vWdN[j])))
            a.label(l)

    def vsw_v(a, which):
        for j in range(4):
            if which == 'W':
                a.e("v_mov_b32 %s, %s" % (vr(vWd[j]), vr(vWdN[j])))
            else:
                a.e("v_add_u32 v30, %d, %s" % (1024 * j, vr(vXd[j])))
                a.e("v_and_b32 v30, 0xfffffc00, v30")
                a.e("v_add_u32 %s, %s, v30" % (vr(vXd[j]), vr(vXd[j])))

    def vsw_g(a, which):
        pass

    def hook_k(a):
        l1_ = a.newlabel("hk")
        a.e("s_cmp_lg_u32 %s, 3" % sr(sIter))
        a.e("s_cbranch_scc1 %s" % l1_)
        flag_store(a, "byte", 30, "1", SRD_DBG, "s2")
        a.label(l1_)

    def hook_g(a):
        pass

    def hook_g3(a):
        l1_, l2_ = a.newlabel("hk"), a.newlabel("hk")
        a.e("s_cmp_lg_u32 %s, 4" % sr(sIter))
        a.e("s_cbranch_scc1 %s" % l2_)
        flag_store(a, "dword", 24, "0x%x" % ALL1, SRD_WS, sr(sF1w))
        a.e(poll_issue(25, SRD_DBG, "0"))
        a.label(l2_)
        a.e("s_cmp_lg_u32 %s, 1" % sr(sIter))
        a.e("s_cbranch_scc1 %s" % l1_)
        poll_check(a, 25, SRD_DBG, "0", 64, sT0)
        a.e(poll_issue(25, SRD_WS, sr(sF1r)))
        a.label(l1_)

    e("s_waitcnt vmcnt(28)")
    e("v_mov_b32 v30, 0")
    e("v_mov_b32 v31, 0")
    for i in range(8):
        e("v_dot2_f32_bf16 v30, v%d, v%d, v30" % (32 + i, 48 + i))
        e("v_dot2_f32_bf16 v31, v%d, v%d, v31" % (40 + i, 48 + i))
    e("s_nop 2")
    for mode in ("row_shr:1", "row_shr:2", "row_shr:4", "row_shr:8", "row_bcast:15 row_mask:0xa", "row_bcast:31 row_mask:0xc"):
        rm = "" if "row_mask" in mode else " row_mask:0xf"
        e("v_add_f32_dpp v30, v30, v30 %s%s bank_mask:0xf" % (mode, rm))
        e("v_add_f32_dpp v31, v31, v31 %s%s bank_mask:0xf" % (mode, rm))
        e("s_nop 0")
    e("v_mul_f32 v30, %s, v30" % f32(-1.4426950408889634))
    e("v_mul_f32 v31, %s, v31" % f32(-1.4426950408889634))
    e("v_exp_f32 v30, v30")
    e("v_exp_f32 v31, v31")
    e("s_nop 0")
    e("v_add_f32 v30, 1.0, v30")
    e("v_add_f32 v31, 1.0, v31")
    e("v_rcp_f32 v30, v30")
    e("v_rcp_f32 v31, v31")
    e("s_mov_b32 exec_lo, 0")
    e("s_brev_b32 exec_hi, 1")
    e("buffer_store_dwordx2 v[30:31], off, %s, %s%s" % (sr(SRD_WS, 4), sr(sGoff), SC))
    decode_att(a, sT2, sT3, sT0, sT1)
    e("s_lshr_b32 %s, %s, 1" % (sr(sF1r), sr(sT2)))
    e("s_lshl_b32 %s, %s, 8" % (sr(sF1r), sr(sF1r)))
    e("s_add_u32 %s, %s, %d" % (sr(sF1r), sr(sF1r), WS_F1))
    e("s_lshl_b32 %s, %s, 3" % (sr(sF1w), sr(sJob)))
    e("s_add_u32 %s, %s, %s" % (sr(sF1w), sr(sF1w), sr(sTm)))
    e("s_lshl_b32 %s, %s, 2" % (sr(sF1w), sr(sF1w)))
    e("s_lshl_b32 %s, %s, 8" % (sr(sT0), sr(sTn8)))
    e("s_add_u32 %s, %s, %s" % (sr(sF1w), sr(sF1w), sr(sT0)))
    e("s_add_u32 %s, %s, %d" % (sr(sF1w), sr(sF1w), WS_F1))
    e("s_lshl_b32 %s, %s, 2" % (sr(sT2), sr(sT2)))
    e("s_sub_u32 %s, 15, %s" % (sr(sOb), sr(sT3)))
    e("s_cmp_eq_u32 %s, 1" % sr(sWave))
    e("s_cselect_b32 %s, %s, %s" % (sr(sT3), sr(sT3), sr(sOb)))
    e("s_lshl_b32 %s, %s, 7" % (sr(sT3), sr(sT3)))
    e("s_add_u32 %s, %s, %s" % (sr(sT2), sr(sT2), sr(sT3)))
    e("s_add_u32 %s, %s, %d" % (sr(sT2), sr(sT2), WS_F3))
    e("s_lshr_b32 %s, s2, 2" % sr(sT3))
    e("s_lshl_b32 %s, %s, 7" % (sr(sT3), sr(sT3)))
    e("s_and_b32 %s, s2, 3" % sr(sT0))
    e("s_lshl_b32 %s, %s, 2" % (sr(sT0), sr(sT0)))
    e("s_add_u32 %s, %s, %s" % (sr(sT3), sr(sT3), sr(sT0)))
    e("s_add_u32 %s, %s, %d" % (sr(sT3), sr(sT3), WS_FP))
    e("s_cmp_eq_u32 %s, 3" % sr(sWave))
    e("s_cselect_b32 %s, %s, %s" % (sr(sT2), sr(sT3), sr(sT2)))
    e("s_add_u32 %s, s2, %d" % (sr(sT3), WS_F2))
    e("v_mov_b32 v30, 0")
    e("s_cmp_eq_u32 %s, 0" % sr(sWave))
    e("s_cbranch_scc1 %s_z0" % name)
    e("buffer_store_dword v30, off, %s, %s sc1" % (sr(SRD_WS, 4), sr(sT2)))
    e("s_branch %s_z1" % name)
    a.label(name + "_z0")
    e("buffer_store_byte v30, off, %s, %s sc1" % (sr(SRD_WS, 4), sr(sT3)))
    e("buffer_store_dword v30, off, %s, %s sc1" % (sr(SRD_WS, 4), sr(sF1w)))
    a.label(name + "_z1")
    e("s_lshl_b32 %s, s2, 2" % sr(sT0))
    e("s_add_u32 %s, %s, %s" % (sr(sT0), sr(sT0), sr(sWave)))
    e("s_lshl_b32 %s, %s, 7" % (sr(sT0), sr(sT0)))
    e("s_add_u32 %s, %s, %d" % (sr(sT0), sr(sT0), WS_FQ))
    e("buffer_store_dword v30, off, %s, %s sc1" % (sr(SRD_WS, 4), sr(sT0)))
    e("s_mov_b64 exec, -1")
    e("s_mov_b32 %s, 0" % sr(sT3))
    e("s_mov_b32 %s, 0" % sr(SRD_P + 2))
    e(pf_load())
    interval(a, 'K', 0, 'A', kindA='none', vm=16)
    job_start(a, 'K', name + "_k", False, True)
    loop(a, 'K', name + "_k", vsw_k, hook_k, pf=True)
    e("s_cmp_lg_u32 %s, 0" % sr(sJob))
    e("s_cbranch_scc1 %s_k2v" % name)
    interval(a, 'G', 0, 'A', kindA='K', vm=nwait(False, True))
    qs = 1.4426950408889634 / (128.0 ** 0.5)
    e("s_mov_b32 %s, %s" % (sr(sCA), f32(qs)))
    e("s_mov_b32 %s, %s" % (sr(sCA + 1), f32(qs)))
    e("s_lshl_b32 %s, %s, 20" % (sr(sOb), sr(sTn8)))
    e("s_lshl_b32 %s, %s, 16" % (sr(sT0), sr(sTm)))
    e("s_add_u32 %s, %s, %s" % (sr(sOb), sr(sOb), sr(sT0)))
    epilogue_kqv(a, 'K', scale=sCA)
    e("s_branch %s_gu_start" % name)
    a.label(name + "_k2v")
    interval(a, 'V', 0, 'A', kindA='K', vm=nwait(False, True),
             pre=["v_add_u32 %s, %s, %s" % (vr(vXr[i]), vr(vXr[i]), vr(vXdl[i])) for i in range(2)])
    e("s_lshl_b32 %s, %s, 20" % (sr(sOb), sr(sTn8)))
    e("s_lshl_b32 %s, %s, 16" % (sr(sT0), sr(sTm)))
    e("s_add_u32 %s, %s, %s" % (sr(sOb), sr(sOb), sr(sT0)))
    e("s_add_u32 %s, %s, %d" % (sr(sOb), sr(sOb), WS_K))
    epilogue_kqv(a, 'K')
    set_next_gu()
    e("s_mov_b32 %s, 4" % sr(sIter))
    job_start(a, 'V', name + "_v", True, True)
    loop(a, 'V', name + "_v", vsw_v, st=True, pf=True)
    interval(a, 'G', 0, 'A', kindA='V', vm=nwait(True, True),
             pre=["v_sub_u32 %s, %s, %s" % (vr(vXr[i]), vr(vXr[i]), vr(vXdl[i])) for i in range(2)])
    e("s_add_u32 %s, %s, %d" % (sr(sOb), sr(sOb), WS_V - WS_K))
    epilogue_kqv(a, 'V')
    a.label(name + "_gu_start")
    e("s_mov_b32 %s, 0" % sr(sNXn))
    e("s_mov_b32 %s, 0" % sr(sNWn))
    e("s_mov_b32 %s, 8" % sr(sIter))
    job_start(a, 'G', name + "_ga", True, False)
    loop(a, 'G', name + "_ga", None, st=True, last=5, switch=False)
    loop(a, 'G', name + "_gb", vsw_g, hook_g, hook3=hook_g3)
    stamp_ts(a)
    e("s_waitcnt vmcnt(0) lgkmcnt(0)")
    e("s_barrier")
    for m in mfmas('G', 1, 1):
        e(m)
    e("s_lshl_b32 %s, %s, 10" % (sr(sT0), sr(sTm)))
    e("s_lshl_b32 %s, %s, 8" % (sr(sT1), sr(sWave)))
    e("s_add_u32 %s, %s, %s" % (sr(sT0), sr(sT0), sr(sT1)))
    e("s_add_u32 %s, %s, %d" % (sr(sT0), sr(sT0), WS_G))
    e("v_and_b32 v31, 15, v0")
    e("v_lshlrev_b32 v31, 2, v31")
    for tb in range(4):
        e("buffer_load_dword %s, v31, %s, %s offen offset:%d sc1" % (vr(vG1[tb]), sr(SRD_WS, 4), sr(sT0), tb * 64))
    e("s_mul_i32 %s, %s, %d" % (sr(sOb), sr(sTm), 8 * 480 * 1024))
    e("s_mul_i32 %s, %s, 7168" % (sr(sT0), sr(sTn7)))
    e("s_add_u32 %s, %s, %s" % (sr(sOb), sr(sOb), sr(sT0)))
    e("s_add_u32 %s, %s, %d" % (sr(sOb), sr(sOb), WS_A3 + 256 * 1024))
    e("s_mul_i32 %s, %s, %d" % (sr(sT0), sr(sWave), 2 * 480 * 1024))
    e("v_lshlrev_b32 %s, 4, v0" % vr(vSt))
    e("v_add_u32 %s, %s, %s" % (vr(vSt), sr(sT0), vr(vSt)))
    e("s_mov_b32 %s, 1" % sr(sJob))
    e("s_mov_b32 %s, %s" % (sr(sT3), sr(sF1r)))
    poll_check(a, 25, SRD_WS, sr(sT3), 16, sT0, fail=name + "_late")
    att_prologue(a)
    e("s_mov_b32 %s, 0" % sr(sJob))
    e("s_branch %s_epi" % name)
    a.label(name + "_late")
    e("s_waitcnt vmcnt(0)")
    a.label(name + "_epi")

    def mid_poll():
        l = a.newlabel("mp")
        e("s_cmp_eq_u32 %s, 0" % sr(sJob))
        e("s_cbranch_scc1 %s" % l)
        e(poll_issue(25, SRD_WS, sr(sT3)))
        a.label(l)

    def mid_check():
        l = a.newlabel("mc")
        e("s_cmp_eq_u32 %s, 0" % sr(sJob))
        e("s_cbranch_scc1 %s" % l)
        e("s_waitcnt vmcnt(4)")
        poll_check(a, 25, SRD_WS, sr(sT3), 16, sT1, fail=l)
        att_prologue(a)
        e("s_mov_b32 %s, 2" % sr(sJob))
        a.label(l)
    epilogue_gu(a, {(1, 1): mid_poll, (3, 1): mid_check})
    e("s_cmp_eq_u32 %s, 0" % sr(sJob))
    e("s_cbranch_scc1 %s_att" % name)
    e("s_cmp_eq_u32 %s, 2" % sr(sJob))
    e("s_cbranch_scc1 %s_att2" % name)
    e(poll_issue(25, SRD_WS, sr(sT3)))
    e("s_waitcnt vmcnt(0)")
    poll_check(a, 25, SRD_WS, sr(sT3), 16, sT0)
    att_prologue(a)
    e("s_waitcnt vmcnt(0)")
    a.label(name + "_att2")
    e("s_waitcnt vmcnt(8)")
    a.label(name + "_att")
    stamp_ts(a)


NSLOT = 5
aHead, aPair, aT, aLoop, aRd, aWr, aWrEnd, aWrBeg = range(16, 24)
aDK, aDV, aKmax, aVmax, aT0, aT1, aT2, aTHR, aNEG, aPl, aLoopS = range(24, 35)
aQb = [35, 36]
aThr = [37, 38]
aMaskB = [39, 40]
aFB = 42
aCmp = 56

vLane16, vDma, vRd, vDl = 1, 2, 3, 4
vNegm, vL, vLs, vG = [5, 6], [7, 24], [26, 27], [8, 9]
vTmp = [10, 11, 12, 13]
vPoll2 = 14
vAPf, vAPfD = 15, 28
vE = [16, 17, 18, 19, 20, 21, 22, 23]
vC = [32, 160]
vS = [[48, 64], [176, 192]]
vP = [[80, 88], [208, 216]]
vZ = 224
vO = 96
rQ = [0, 32]
rK, rV, rOB = 64, 96, 128


def oreg(X, db, n=16, off=0):
    return vr(vO + 16 * db + off, n) if X == 0 else ar(rOB + 16 * db + off, n)


def a_pf(which):
    if not OPT.get('apf', 1):
        return []
    srd = SRD_P if which == 0 else SRD_X
    out = ["buffer_load_dword %s, %s, %s, 0 offen" % (vr(vAPfD), vr(vAPf), sr(srd, 4))]
    if which == 1:
        out.append("v_add_u32 %s, %d, %s" % (vr(vAPf), 1024 * OPT.get('apl', 8) * 64, vr(vAPf)))
    return out


def qk_mfmas(par, streams, czero=()):
    out = []
    for ks in range(8):
        for X in streams:
            c = vr(vS[X][par], 16)
            if ks == 0:
                c = "0" if X in czero else vr(vC[X], 16)
            out.append("v_mfma_f32_32x32x16_bf16 %s, %s, %s, %s" % (vr(vS[X][par], 16), ar(rK + 4 * ks, 4), ar(rQ[X] + 4 * ks, 4), c))
    return out


def pv_mfmas(par, streams):
    out = []
    for g in range(2):
        for db in range(4):
            for X in streams:
                o = oreg(X, db)
                out.append("v_mfma_f32_32x32x16_bf16 %s, %s, %s, %s" % (o, ar(rV + 4 * (g * 4 + db), 4), vr(vP[X][par] + 4 * g, 4), o))
    return out


def k_reads(sb):
    return ["ds_read_b128 %s, %s offset:%d" % (ar(rK + 4 * ks, 4), vr(vRd), sb * 8192 + ks * 1024) for ks in range(8)]


def v_reads(sb):
    return ["ds_read_b128 %s, %s offset:%d" % (ar(rV + 4 * j, 4), vr(vRd), 16384 + sb * 8192 + j * 1024) for j in range(8)]


def sm_items(X, par):
    it = [(4, "v_add_f32 %s, %s, %s" % (vr(vL[X]), vr(vL[X]), vr(vLs[X])))]
    S, P, Ls = vS[X][par], vP[X][par], vLs[X]
    pend = []
    for r in range(16):
        e = vE[r % 8]
        it.append((8, "v_exp_f32 %s, %s" % (vr(e), vr(S + r))))
        it.extend(pend)
        pend = []
        if r == 1:
            pend.append((4, "v_add_f32 %s, %s, %s" % (vr(Ls), vr(vE[0]), vr(vE[1]))))
        elif r > 1:
            pend.append((4, "v_add_f32 %s, %s, %s" % (vr(Ls), vr(Ls), vr(e))))
        if r & 1:
            pend.append((4, "v_cvt_pk_bf16_f32 %s, %s, %s" % (vr(P + (r >> 1)), vr(vE[(r - 1) % 8]), vr(e))))
    it.extend(pend)
    it.append((4, "v_cmp_lt_f32 %s, %s, %s" % ("vcc" if X == 0 else sr(aFB, 2), sr(aTHR), vr(Ls))))
    return it


def a_dma(which):
    m0 = "s_mov_b32 m0, %s" % sr(aWr) if which == 'K' else "s_add_u32 m0, %s, 16384" % sr(aWr)
    so = aDK if which == 'K' else aDV
    d = ["buffer_load_dwordx4 %s, %s, %s offen offset:%d sc1 lds" % (vr(vDma), sr(SRD_WS, 4), sr(so), j * 1024) for j in range(4)]
    return m0, d


def a_dma_advance():
    return [
        "s_add_u32 %s, %s, 32768" % (sr(aWr), sr(aWr)),
        "s_cmp_eq_u32 %s, %s" % (sr(aWr), sr(aWrEnd)),
        "s_cselect_b32 %s, %s, %s" % (sr(aWr), sr(aWrBeg), sr(aWr)),
        "s_add_u32 %s, %s, 16384" % (sr(aDK), sr(aDK)),
        "s_min_u32 %s, %s, %s" % (sr(aDK), sr(aDK), sr(aKmax)),
        "s_add_u32 %s, %s, 16384" % (sr(aDV), sr(aDV)),
        "s_min_u32 %s, %s, %s" % (sr(aDV), sr(aDV), sr(aVmax)),
    ]


def a_rd_advance():
    return [
        "s_add_u32 %s, %s, 32768" % (sr(aRd), sr(aRd)),
        "s_cmp_eq_u32 %s, %d" % (sr(aRd), NSLOT * 32768),
        "s_cselect_b32 %s, 0, %s" % (sr(aRd), sr(aRd)),
    ]


class Sched:
    def __init__(self, par, qk, pv, sm, kr=True, thr=None):
        self.par, self.sm = par, sm
        m1 = qk_mfmas(par ^ 1, qk) if qk else [None] * 8
        m2 = pv_mfmas(par ^ 1, pv)
        n1, n2 = len(m1), len(m2)
        self.n1, self.n = n1, n1 + n2
        self.mf = m1 + m2
        n = self.n
        fill = {g: [] for g in range(n)}
        used = {g: 0 for g in range(n)}
        pre = {g: [] for g in range(n)}

        def put(g, s, c=4):
            fill[g].append(s)
            used[g] += c
        s1, s2 = n1 // 8, n2 // 8
        for j, r in enumerate(v_reads(1 if par == 0 else 0)):
            put(j * s1, r)
        if kr:
            for j, r in enumerate(k_reads(0 if par == 0 else 1)):
                put(n1 + j * s2, r)
        if qk:
            pre[0].append("s_waitcnt lgkmcnt(4)")
            pre[n1 // 2].append("s_waitcnt lgkmcnt(4)")
            used[n1 // 2 - 1] += 4
        pre[n1].append("s_waitcnt lgkmcnt(4)")
        used[n1 - 1] += 4
        pre[n1 + n2 // 2].append("s_waitcnt lgkmcnt(%d)" % (4 if kr else 0))
        used[n1 + n2 // 2 - 1] += 4
        if par == 0:
            m0, d = a_dma('K')
            put(n1, m0)
            for j in range(4):
                put(n1 + (1 + 2 * j) * s2 - (s2 - 1), d[j])
            for x in a_rd_advance():
                put(n1 - 2, x)
            for x in a_pf(1):
                put(2 * s1, x)
        else:
            m0, d = a_dma('V')
            put(0, m0)
            for j in range(4):
                put((1 + 2 * j) * s1 - (s1 - 1), d[j])
            adv = a_dma_advance()
            for g, lo, hi in ((1, 0, 3), (3, 3, 5), (5, 5, 7)):
                for x in adv[lo:hi]:
                    put(n1 + g * s2, x)
            for x in a_pf(0):
                put(n1 + 2 * s2, x)
        g = 0
        cap = OPT.get('cap', 24)
        items = []
        for X in reversed(sm):
            items += sm_items(X, par)
        tot = sum(c for c, _ in items) + sum(used.values())
        if len(sm) == 2 or n > 16:
            cap = max(16, min(cap, 4 * (-(-tot // (4 * (n - 2)))) + 4))
        for c, s_ in items:
            while g < n - 1 and used[g] + c > cap:
                g += 1
            put(g, s_, c)
        if 1 in sm:
            put(n - 1, "s_or_b64 vcc, vcc, %s" % sr(aFB, 2))
        self.thr = thr
        if thr is not None:
            put(n - 1, "s_cmp_ge_i32 %s, %s" % (sr(aT), sr(aThr[thr])))
        self.fill, self.pre = fill, pre

    def emit(self, a, half):
        lo, hi = {'h1': (0, self.n1), 'h2': (self.n1, self.n), 'all': (0, self.n)}[half]
        for g in range(lo, hi):
            for s_ in self.pre[g]:
                a.e(s_)
            if self.mf[g]:
                a.e(self.mf[g])
            for s_ in self.fill[g]:
                a.e(s_)


def a_barrier(a):
    a.e("s_waitcnt vmcnt(%d)" % (22 if OPT.get('apf', 1) else 16))
    a.e("s_barrier")
    a.e("v_add_u32 %s, %s, %s" % (vr(vRd), sr(aRd), vr(vLane16)))


def maskprep_items(X):
    it = []
    it.append("s_lshl_b32 %s, %s, 5" % (sr(aT2), sr(aT1)))
    it.append("s_sub_i32 %s, %s, %s" % (sr(aT2), sr(aMaskB[X]), sr(aT2)))
    it.append("v_add_u32 %s, %s, %s" % (vr(vTmp[2]), sr(aT2), vr(vDl)))
    it.append("v_mov_b32 %s, %s" % (vr(vTmp[3]), sr(aNEG)))
    for r in range(16):
        kc = 8 * (r >> 2) + (r & 3)
        it.append("v_cmp_gt_i32 %s, %d, %s" % (sr(aCmp + 2 * (r & 3), 2), kc, vr(vTmp[2])))
        if (r & 3) == 3:
            for q in range(4):
                it.append("v_cndmask_b32 %s, %s, %s, %s" % (vr(vC[X] + r - 3 + q), vr(vNegm[X]), vr(vTmp[3]), sr(aCmp + 2 * q, 2)))
    return it


def rowmax_items(S, t0, t1):
    it = ["v_max3_f32 %s, %s, %s, %s" % (vr(t0), vr(S), vr(S + 1), vr(S + 2))]
    for r in range(3, 15, 2):
        it.append("v_max3_f32 %s, %s, %s, %s" % (vr(t0), vr(t0), vr(S + r), vr(S + r + 1)))
    it.append("v_max_f32 %s, %s, %s" % (vr(t0), vr(t0), vr(S + 15)))
    it.append("v_mov_b32 %s, %s" % (vr(t1), vr(t0)))
    it.append("s_nop 1")
    it.append("v_permlane32_swap_b32 %s, %s" % (vr(t0), vr(t1)))
    it.append("s_nop 1")
    it.append("v_max_f32 %s, %s, %s" % (vr(t0), vr(t0), vr(t1)))
    return it


def resm_items(X, par, t0):
    S, P, Ls = vS[X][par], vP[X][par], vLs[X]
    it = []
    for r in range(16):
        it.append("v_sub_f32 %s, %s, %s" % (vr(S + r), vr(S + r), vr(t0)))
    for r in range(16):
        it.append("v_exp_f32 %s, %s" % (vr(S + r), vr(S + r)))
    it.append("v_add_f32 %s, %s, %s" % (vr(Ls), vr(S), vr(S + 1)))
    for r in range(2, 16):
        it.append("v_add_f32 %s, %s, %s" % (vr(Ls), vr(Ls), vr(S + r)))
    for r in range(8):
        it.append("v_cvt_pk_bf16_f32 %s, %s, %s" % (vr(P + r), vr(S + 2 * r), vr(S + 2 * r + 1)))
    return it


def stage_end(a, sc, masks, handlers):
    ret, sp, sl = a.newlabel("aret"), a.newlabel("asp"), a.newlabel("asl")
    if sc.thr is not None:
        a.e("s_cbranch_scc1 %s" % sp)
    a.e("s_cbranch_vccnz %s" % sl)
    a.label(ret)
    a.e("s_add_u32 %s, %s, 1" % (sr(aT), sr(aT)))
    handlers.append((sc.par, sc.sm, masks, sp if sc.thr is not None else None, sl, ret))


def emit_handler(a, par, sm, masks, sp, sl, ret):
    e = a.e
    mask = a.newlabel("hmask")
    if sp:
        a.label(sp)
        e("s_cbranch_vccz %s" % mask)
    a.label(sl)
    t0, t1 = vTmp[0], vTmp[1]
    for X in sm:
        for x in rowmax_items(vS[X][par], t0, t1):
            e(x)
        e("v_max_f32 %s, 0, %s" % (vr(t0), vr(t0)))
        e("v_exp_f32 %s, -%s" % (vr(t1), vr(t0)))
        e("v_sub_f32 %s, %s, %s" % (vr(vNegm[X]), vr(vNegm[X]), vr(t0)))
        e("v_mul_f32 %s, %s, %s" % (vr(vL[X]), vr(vL[X]), vr(t1)))
        for i in range(64):
            if X == 0:
                e("v_mul_f32 %s, %s, %s" % (vr(vO + i), vr(vO + i), vr(t1)))
            else:
                e("v_accvgpr_read_b32 %s, %s" % (vr(vTmp[2]), ar(rOB + i)))
                e("v_mul_f32 %s, %s, %s" % (vr(vTmp[2]), vr(vTmp[2]), vr(t1)))
                e("v_accvgpr_write_b32 %s, %s" % (ar(rOB + i), vr(vTmp[2])))
        Sn = vS[X][par ^ 1]
        for r in range(16):
            e("v_sub_f32 %s, %s, %s" % (vr(Sn + r), vr(Sn + r), vr(t0)))
        for x in resm_items(X, par, t0):
            e(x)
    a.label(mask)
    e("s_add_u32 %s, %s, 2" % (sr(aT1), sr(aT)))
    for X in masks:
        for x in maskprep_items(X):
            e(x)
    e("s_branch %s" % ret)


def att_prologue(a):
    e = a.e
    decode_att(a, aHead, aQb[1], aT0, aT1)
    e("s_sub_u32 %s, 15, %s" % (sr(aQb[0]), sr(aQb[1])))
    e("v_lshlrev_b32 %s, 4, v0" % vr(vLane16))
    e("s_lshl_b32 %s, %s, 12" % (sr(aWrBeg), sr(sWave)))
    e("v_add_u32 %s, %s, %s" % (vr(vDma), sr(aWrBeg), vr(vLane16)))
    e("s_mov_b32 %s, %s" % (sr(aWr), sr(aWrBeg)))
    e("s_add_u32 %s, %s, %d" % (sr(aWrEnd), sr(aWrBeg), NSLOT * 32768))
    e("s_lshl_b32 %s, %s, 19" % (sr(aT0), sr(aHead)))
    e("s_add_u32 %s, %s, %d" % (sr(aDK), sr(aT0), WS_K))
    e("s_add_u32 %s, %s, %d" % (sr(aDV), sr(aT0), WS_V - 16384))
    e("s_lshl_b32 %s, %s, 15" % (sr(aT1), sr(aQb[0])))
    e("s_add_u32 %s, %s, 16384" % (sr(aT1), sr(aT1)))
    e("s_add_u32 %s, %s, %s" % (sr(aKmax), sr(aDK), sr(aT1)))
    e("s_add_u32 %s, %s, %d" % (sr(aVmax), sr(aKmax), WS_V - WS_K))
    e("v_and_b32 v24, 31, v0")
    e("v_lshrrev_b32 v25, 5, v0")
    e("v_lshlrev_b32 v25, 2, v25")
    e("v_sub_u32 %s, v24, v25" % vr(vDl))
    e("v_lshlrev_b32 v24, 2, v24")

    def qload(X):
        e("s_lshl_b32 %s, %s, 2" % (sr(aT1), sr(aQb[X])))
        e("s_add_u32 %s, %s, %s" % (sr(aT1), sr(aT1), sr(sWave)))
        e("s_lshl_b32 %s, %s, 13" % (sr(aT2), sr(aT1)))
        e("s_lshl_b32 %s, %s, 19" % (sr(aT0), sr(aHead)))
        e("s_add_u32 %s, %s, %s" % (sr(aT2), sr(aT2), sr(aT0)))
        e("s_add_u32 %s, %s, 4096" % (sr(aT0), sr(aT2)))
        for ks in range(8):
            e("buffer_load_dwordx4 %s, %s, %s, %s offen offset:%d sc1" % (
                ar(rQ[X] + 4 * ks, 4), vr(vLane16), sr(SRD_WS, 4), sr(aT2 if ks < 4 else aT0), (ks & 3) * 1024))
        e("s_lshl_b32 %s, %s, 7" % (sr(aT1), sr(aT1)))
        e("s_add_u32 %s, %s, %d" % (sr(aT1), sr(aT1), WS_G))
        e("buffer_load_dword %s, v24, %s, %s offen sc1" % (vr(vG[X]), sr(SRD_WS, 4), sr(aT1)))
    for i in range(3):
        for w in ('K', 'V'):
            if i == 0 and w == 'V':
                continue
            m0, d = a_dma(w)
            e(m0)
            e("s_nop 0")
            for x in d:
                e(x)
        for x in a_dma_advance():
            e(x)
        if i == 0:
            qload(0)
            qload(1)
    e("s_mov_b32 %s, %s" % (sr(aTHR), f32(4096.0)))
    e("s_mov_b32 %s, %s" % (sr(aNEG), f32(-1e30)))
    e("s_mov_b32 %s, 0" % sr(aRd))
    e("s_mov_b32 %s, %d" % (sr(aPl), WS_F2))
    for X in range(2):
        e("s_lshl_b32 %s, %s, 2" % (sr(aT0), sr(aQb[X])))
        e("s_sub_i32 %s, %s, 2" % (sr(aThr[X]), sr(aT0)))
        e("s_add_u32 %s, %s, %s" % (sr(aMaskB[X]), sr(aT0), sr(sWave)))
        e("s_lshl_b32 %s, %s, 5" % (sr(aMaskB[X]), sr(aMaskB[X])))
    e("s_lshl_b32 %s, %s, 1" % (sr(aLoop), sr(aQb[1])))
    e("s_add_u32 %s, %s, 1" % (sr(aLoop), sr(aLoop)))
    e("s_sub_u32 %s, %s, %s" % (sr(aLoopS), sr(aQb[0]), sr(aQb[1])))
    e("s_lshl_b32 %s, %s, 1" % (sr(aLoopS), sr(aLoopS)))
    e("s_sub_u32 %s, %s, 1" % (sr(aLoopS), sr(aLoopS)))
    if OPT.get('skip', 0):
        e("s_cmp_lt_u32 %s, 2" % sr(sWave))
        e("s_cselect_b32 %s, 1, 0" % sr(aT0))
        e("s_cmp_lg_u32 %s, 0" % sr(aQb[1]))
        e("s_cselect_b32 %s, %s, 0" % (sr(aT1), sr(aT0)))
        e("s_sub_u32 %s, %s, %s" % (sr(aLoop), sr(aLoop), sr(aT1)))
        e("s_add_u32 %s, %s, %s" % (sr(aLoopS), sr(aLoopS), sr(aT1)))
        e("s_sub_u32 %s, %s, %s" % (sr(aLoopS), sr(aLoopS), sr(aT0)))


ATT_PRO_LOADS = 20 + 18


def mix(a, mf, fixed, stream, cap=6):
    i = 0
    for g, m in enumerate(mf):
        a.e(m)
        k = 0
        for x in fixed.get(g, []):
            a.e(x)
            k += 1
        while i < len(stream) and k < cap:
            mg = 0
            x = stream[i]
            if isinstance(x, tuple):
                mg, x = x
            if mg > g:
                break
            a.e(x)
            k += 2 if x.startswith("v_exp") else 1
            i += 1
    while i < len(stream):
        x = stream[i]
        a.e(x[1] if isinstance(x, tuple) else x)
        i += 1


def att_epilogue(a, X):
    e = a.e
    t0, t1 = vTmp[0], vTmp[1]
    e("v_mov_b32 %s, %s" % (vr(t0), vr(vL[X])))
    e("s_lshl_b32 %s, %s, 2" % (sr(aT1), sr(aQb[X])))
    e("s_add_u32 %s, %s, %s" % (sr(aT1), sr(aT1), sr(sWave)))
    e("v_permlane32_swap_b32 %s, %s" % (vr(t0), vr(vL[X])))
    e("s_mul_i32 %s, %s, %d" % (sr(aT1), sr(aT1), 480 * 1024))
    e("s_lshl_b32 %s, %s, 13" % (sr(aT2), sr(aHead)))
    e("v_add_f32 %s, %s, %s" % (vr(t0), vr(vL[X]), vr(t0)))
    e("v_rcp_f32 %s, %s" % (vr(t0), vr(t0)))
    e("s_add_u32 %s, %s, %s" % (sr(aT1), sr(aT1), sr(aT2)))
    e("s_add_u32 %s, %s, %d" % (sr(aT1), sr(aT1), WS_A3))
    e("v_mul_f32 %s, %s, %s" % (vr(t0), vr(t0), vr(vG[X])))
    e("s_add_u32 %s, %s, 4096" % (sr(aT2), sr(aT1)))
    e("v_mov_b32 %s, %s" % (vr(t1), vr(t0)))
    for db in range(4):
        if X == 0:
            r = vO + 16 * db
        else:
            r = vYB + 16 * db
            for i in range(16):
                e("v_accvgpr_read_b32 %s, %s" % (vr(r + i), ar(rOB + 16 * db + i)))
        for i in range(0, 16, 2):
            e("v_pk_mul_f32 %s, %s, %s" % (vr(r + i, 2), vr(r + i, 2), vr(t0, 2)))
        for g in range(2):
            for i in range(4):
                e("v_cvt_pk_bf16_f32 %s, %s, %s" % (vr(r + 8 * g + i), vr(r + 8 * g + 2 * i), vr(r + 8 * g + 2 * i + 1)))
            fi = db * 2 + g
            e("buffer_store_dwordx4 %s, %s, %s, %s offen offset:%d%s" % (
                vr(r + 8 * g, 4), vr(vLane16), sr(SRD_WS, 4), sr(aT1 if fi < 4 else aT2), (fi & 3) * 1024, SC))


vYB = 160


def part2(a, name, out_prologue, handlers):
    e = a.e
    L = OPT.get('apl', 8)
    npf = 2 if OPT.get('apf', 1) else 0
    e("s_load_dwordx2 %s, s[0:1], 40" % sr(SRD_P, 2))
    e("s_load_dwordx2 %s, s[0:1], 72" % sr(SRD_X, 2))
    e("s_mov_b32 %s, %d" % (sr(SRD_P + 2), 4096 * 2048))
    e("s_mov_b32 %s, %d" % (sr(SRD_X + 2), 3584 * 2048))
    e("s_lshl_b32 %s, s2, 2" % sr(aT0))
    e("s_add_u32 %s, %s, %s" % (sr(aT0), sr(aT0), sr(sWave)))
    e("s_mul_i32 %s, %s, %d" % (sr(aT0), sr(aT0), L * 64))
    if OPT.get('apd', 0):
        e("s_sub_u32 %s, %s, %d" % (sr(aT0), sr(aT0), OPT['apd'] * 1024 * L * 64))
    e("v_lshlrev_b32 %s, %d, v0" % (vr(vAPf), 7 if OPT.get('pf128', 1) else 6))
    e("v_add_u32 %s, %s, %s" % (vr(vAPf), sr(aT0), vr(vAPf)))
    e("v_cmp_gt_u32 vcc, %d, v0" % (L // 2 if OPT.get('pf128', 1) else L))
    e("v_mov_b32 %s, 0x70000000" % vr(vAPfD))
    e("v_mov_b32 %s, 0" % vr(vNegm[1]))
    e("v_cndmask_b32 %s, %s, %s, vcc" % (vr(vAPf), vr(vAPfD), vr(vAPf)))
    e("s_waitcnt vmcnt(%d) lgkmcnt(0)" % N_H_STORES)
    e("s_barrier")
    e("v_mov_b32 %s, %s" % (vr(vRd), vr(vLane16)))
    for r in k_reads(0):
        e(r)
    m0, d = a_dma('K')
    e(m0)
    e("s_mov_b32 %s, 0" % sr(aT1))
    for x in d:
        e(x)
    for x in maskprep_items(1):
        e(x)
    for i in range(4):
        e("v_mov_b32 %s, 0" % vr(vZ + i))
    for X in range(2):
        e("v_mov_b32 %s, 0" % vr(vL[X]))
    e("s_waitcnt lgkmcnt(0)")
    q0 = qk_mfmas(0, (0, 1), czero=(0,))
    zo = ["v_mfma_f32_32x32x16_bf16 %s, %s, %s, 0" % (oreg(X, db), ar(rQ[0], 4), vr(vZ, 4)) for X in range(2) for db in range(4)]
    kr1 = k_reads(1)
    m0, d = a_dma('V')
    fx = {}
    fx[0] = [m0]
    for i in range(8):
        fx.setdefault(2 * i + 1, []).append(kr1[i])
    for j in range(4):
        fx.setdefault(2 + 2 * j, []).append(d[j])
    st = [(10, x) for x in a_dma_advance()] + [(10, x) for x in a_pf(0) + a_pf(1)]
    st += [(10, "s_mov_b32 %s, 1" % sr(aT1))] + [(10, x) for x in maskprep_items(1)]
    mix(a, q0 + zo[:4], fx, st)
    e("s_waitcnt lgkmcnt(0)")
    q1 = qk_mfmas(1, (0, 1), czero=(0,))
    st = []
    for X in range(2):
        st += rowmax_items(vS[X][0], vNegm[X], vTmp[1])
        st += resm_items(X, 0, vNegm[X])
    st += a_rd_advance()
    mix(a, zo[4:] + q1, {}, st)
    e("s_waitcnt vmcnt(%d)" % (8 + npf))
    e("s_barrier")
    e("v_add_u32 %s, %s, %s" % (vr(vRd), sr(aRd), vr(vLane16)))
    e("s_add_u32 %s, s2, %d" % (sr(aT0), WS_F2))
    flag_store(a, "byte", vTmp[0], "1", SRD_WS, sr(aT0))
    for r in k_reads(0):
        e(r)
    m0, d = a_dma('K')
    e(m0)
    e("s_mov_b32 %s, 2" % sr(aT1))
    for x in d:
        e(x)
    for X in range(2):
        for r in range(16):
            e("v_sub_f32 %s, %s, %s" % (vr(vS[X][1] + r), vr(vS[X][1] + r), vr(vNegm[X])))
        e("v_sub_f32 %s, 0, %s" % (vr(vNegm[X]), vr(vNegm[X])))
    for r in range(16):
        e("v_mov_b32 %s, %s" % (vr(vC[0] + r), vr(vNegm[0])))
    for x in maskprep_items(1):
        e(x)
    e("s_mov_b32 %s, 1" % sr(aT))
    e("s_branch %s_dentry" % name)
    B2 = (0, 1)
    A1 = (0,)
    De, Do = Sched(0, B2, B2, B2, thr=1), Sched(1, B2, B2, B2, thr=1)
    align(a)
    a.label(name + "_dloop")
    stamp_ts(a)
    a_barrier(a)
    De.emit(a, 'h2')
    stage_end(a, De, B2, handlers)
    a.label(name + "_dentry")
    Do.emit(a, 'all')
    stage_end(a, Do, B2, handlers)
    De.emit(a, 'h1')
    e("s_sub_u32 %s, %s, 1" % (sr(aLoop), sr(aLoop)))
    e("s_cmp_lg_u32 %s, 0" % sr(aLoop))
    e("s_cbranch_scc1 %s_dloop" % name)
    M1, M2 = Sched(1, A1, B2, B2, thr=0), Sched(0, A1, B2, A1, thr=0)
    stamp_ts(a)
    a_barrier(a)
    De.emit(a, 'h2')
    stage_end(a, De, A1, handlers)
    M1.emit(a, 'all')
    stage_end(a, M1, A1, handlers)
    M2.emit(a, 'h1')
    a_barrier(a)
    M2.emit(a, 'h2')
    stage_end(a, M2, A1, handlers)
    e("v_add_f32 %s, %s, %s" % (vr(vL[1]), vr(vL[1]), vr(vLs[1])))
    att_epilogue(a, 1)
    e("s_branch %s_sentry" % name)
    Se, So = Sched(0, A1, A1, A1, thr=0), Sched(1, A1, A1, A1, thr=0)
    align(a)
    a.label(name + "_aloop")
    stamp_ts(a)
    a_barrier(a)
    Se.emit(a, 'h2')
    stage_end(a, Se, A1, handlers)
    a.label(name + "_sentry")
    So.emit(a, 'all')
    stage_end(a, So, A1, handlers)
    Se.emit(a, 'h1')
    e("s_sub_u32 %s, %s, 1" % (sr(aLoopS), sr(aLoopS)))
    e("s_cmp_lg_u32 %s, 0" % sr(aLoopS))
    e("s_cbranch_scc1 %s_aloop" % name)
    stamp_ts(a)
    Te, To = Sched(0, A1, A1, A1, kr=False), Sched(1, (), A1, A1, kr=False)
    a_barrier(a)
    e(poll_issue(vPoll2, SRD_WS, sr(aPl)))
    Te.emit(a, 'h2')
    stage_end(a, Te, (), handlers)
    To.emit(a, 'all')
    stage_end(a, To, (), handlers)
    for r in v_reads(1):
        e(r)
    e("v_add_f32 %s, %s, %s" % (vr(vL[0]), vr(vL[0]), vr(vLs[0])))
    pv = pv_mfmas(1, A1)
    e("s_waitcnt lgkmcnt(4)")
    for i in range(4):
        e(pv[i])
    e("s_waitcnt lgkmcnt(0)")
    for i in range(4, 8):
        e(pv[i])
    if OPT.get('skip', 0):
        e("s_cmp_lt_u32 %s, 2" % sr(sWave))
        e("s_cbranch_scc0 %s_nsk" % name)
        e("s_waitcnt vmcnt(16)")
        e("s_barrier")
        a.label(name + "_nsk")
    out_prologue(a)
    a.label(name + "_nopro")
    att_epilogue(a, 0)
    stamp_ts(a)


SRD_OUT = SRD_X
oTm, oTn, oR, oXk, oWk, oIter, oM0, oT0, oT1, oT2, oTile, oCnt, oXk2, oWk2, oC3 = range(68, 83)
oWO, oWD, oOUT = 84, 86, 88
vX = [16, 17]
vWd3 = [20, 21, 22, 23]
vWr3 = 160
vPoll3 = 13
vWF = 168
vACC = 32
aX = 96
NR = 5
WS_PART = WS_P


def loads3(slot):
    pre = "s_add_u32 m0, %s, %d" % (sr(oM0), slot * 16384)
    d = ["buffer_load_dwordx4 %s, %s, %s offen offset:%d lds" % (vr(vWd3[j]), sr(SRD_W, 4), sr(oWk), j * 1024) for j in range(4)]
    x = []
    for st in range(2):
        for tb in range(4):
            x.append("buffer_load_dwordx4 %s, %s, %s, %s offen offset:%d sc1" % (
                ar(aX + 32 * slot + 16 * st + 4 * tb, 4), vr(vX[tb >> 1]), sr(SRD_WS, 4), sr(oXk), st * 2048 + (tb & 1) * 256))
    post = ["s_add_u32 %s, %s, %d" % (sr(oWk), sr(oWk), 64 * 2048), "s_add_u32 %s, %s, 4096" % (sr(oXk), sr(oXk))]
    return pre, d, x, post


def wreads3(slot, st):
    out = []
    for nb in range(8):
        for t in range(2):
            off = slot * 16384 + st * 8192 + t * 1024
            assert off < 65536 + 16384
            out.append((nb, t, off))
    return out


def wread_txt(slot, st):
    out = []
    for nb, t, off in wreads3(slot, st):
        base = vWr3 + nb
        if off >= 65536:
            base, off = vWr3B + nb, off - 65536
        out.append("ds_read_b64_tr_b16 %s, %s offset:%d" % (vr(vWF + 32 * st + 4 * nb + 2 * t, 2), vr(base), off))
    return out


vWr3B = 232


def mf3(slot, st, zero=False):
    out = []
    for nb in range(8):
        for tb in range(4):
            d = vr(vACC + 4 * (nb * 4 + tb), 4)
            out.append("v_mfma_f32_16x16x32_bf16 %s, %s, %s, %s" % (d, vr(vWF + 32 * st + 4 * nb, 4), ar(aX + 32 * slot + 16 * st + 4 * tb, 4), "0" if zero else d))
    return out


def interval3(a, i, half='both', zero=False, load=True, vm=36, first=False):
    slot, pslot = i % NR, (i - 1) % NR
    pre, d, x, post = loads3(pslot) if load else (None, [], [], [])
    if half in ('both', 'A'):
        a.e("s_waitcnt vmcnt(%d) lgkmcnt(0)" % vm)
        a.e("s_barrier")
        rd = wread_txt(slot, 0)
        if first:
            for r in rd:
                a.e(r)
            if load:
                a.e(pre)
                a.e("s_nop 0")
                for q in d:
                    a.e(q)
        else:
            fill = {g: [r] for g, r in enumerate(rd)}
            if load:
                fill.setdefault(15, []).append(pre)
                for j in range(4):
                    fill.setdefault(16 + 4 * j, []).append(d[j])
            interleave(a, mf3(pslot, 1), fill)
    if half in ('both', 'B'):
        a.e("s_waitcnt lgkmcnt(0)")
        fill = {g: [r] for g, r in enumerate(wread_txt(slot, 1))}
        if load:
            for j in range(8):
                fill.setdefault(14 + 2 * j, []).append(x[j])
            fill.setdefault(29, []).extend(post)
        interleave(a, mf3(slot, 0, zero), fill)


def out_prologue(a):
    e = a.e
    e("s_load_dwordx2 %s, s[0:1], 40" % sr(oWO, 2))
    e("s_load_dwordx2 %s, s[0:1], 72" % sr(oWD, 2))
    e("s_load_dwordx2 %s, s[0:1], 88" % sr(oOUT, 2))
    e("s_and_b32 %s, s2, 7" % sr(oT0))
    e("s_lshr_b32 %s, s2, 3" % sr(oT1))
    if OPT.get('omap', 0) == 0:
        e("s_lshr_b32 %s, %s, 1" % (sr(oR), sr(oT0)))
        e("s_and_b32 %s, %s, 1" % (sr(oTm), sr(oT0)))
        e("s_and_b32 %s, %s, 3" % (sr(oT2), sr(oT1)))
        if OPT.get('tmix', 0):
            e("s_lshl_b32 %s, %s, 1" % (sr(oT2), sr(oT2)))
        else:
            e("s_lshl_b32 %s, %s, 2" % (sr(oTm), sr(oTm)))
        e("s_add_u32 %s, %s, %s" % (sr(oTm), sr(oTm), sr(oT2)))
        e("s_lshr_b32 %s, %s, 2" % (sr(oTn), sr(oT1)))
    else:
        e("s_lshr_b32 %s, %s, 3" % (sr(oR), sr(oT1)))
        e("s_mov_b32 %s, %s" % (sr(oTm), sr(oT0)))
        e("s_and_b32 %s, %s, 7" % (sr(oTn), sr(oT1)))
    e("s_lshl_b32 %s, %s, 3" % (sr(oTile), sr(oTm)))
    e("s_add_u32 %s, %s, %s" % (sr(oTile), sr(oTile), sr(oTn)))
    e("s_mov_b32 %s, %d" % (sr(SRD_OUT + 2), 2048 * 1024 * 2))
    e("s_lshl_b32 %s, %s, 12" % (sr(oM0), sr(sWave)))
    e("v_lshrrev_b32 v32, 4, v0")
    e("v_and_b32 v33, 15, v0")
    e("v_lshlrev_b32 v34, 9, v32")
    e("v_lshl_add_u32 %s, v33, 4, v34" % vr(vX[0]))
    e("v_add_u32 %s, %d, %s" % (vr(vX[1]), 480 * 1024, vr(vX[0])))
    e("v_lshlrev_b32 v34, 1, v32")
    e("v_lshrrev_b32 v35, 1, v33")
    e("v_xor_b32 v34, v34, v35")
    e("v_and_b32 v35, 1, v0")
    e("v_lshlrev_b32 v36, 11, v32")
    e("v_lshl_add_u32 v36, v35, 4, v36")
    e("v_lshl_add_u32 %s, v34, 5, v36" % vr(vWd3[0]))
    e("v_add_u32 %s, %d, %s" % (vr(vWd3[1]), 8192 - 1024, vr(vWd3[0])))
    e("v_xor_b32 v34, 1, v34")
    e("v_lshl_add_u32 v36, v34, 5, v36")
    e("v_add_u32 %s, %d, v36" % (vr(vWd3[2]), 2 * (8192 - 1024)))
    e("v_add_u32 %s, %d, v36" % (vr(vWd3[3]), 3 * (8192 - 1024)))
    e("v_bfe_u32 v33, v0, 2, 2")
    e("v_lshl_add_u32 v34, v32, 3, v33")
    e("v_lshlrev_b32 v34, 8, v34")
    e("v_and_b32 v35, 3, v0")
    e("v_lshl_add_u32 v34, v35, 3, v34")
    e("v_lshlrev_b32 v33, 1, v33")
    e("v_and_b32 v35, 1, v32")
    e("v_xor_b32 v33, v33, v35")
    e("s_lshl_b32 %s, %s, 1" % (sr(oT0), sr(oR)))
    e("v_xor_b32 v33, %s, v33" % sr(oT0))
    for nb in range(8):
        e("v_xor_b32 v35, %d, v33" % nb)
        e("v_lshl_add_u32 %s, v35, 5, v34" % vr(vWr3 + nb))
        e("v_add_u32 %s, 0x10000, %s" % (vr(vWr3B + nb), vr(vWr3 + nb)))
    e("s_lshl_b32 %s, %s, 2" % (sr(oT0), sr(oTm)))
    e("s_add_u32 %s, %s, %s" % (sr(oT0), sr(oT0), sr(sWave)))
    e("s_mul_i32 %s, %s, %d" % (sr(oXk2), sr(oT0), 2 * 480 * 1024))
    e("s_add_u32 %s, %s, %d" % (sr(oXk2), sr(oXk2), WS_A3))
    e("s_mul_i32 %s, %s, %d" % (sr(oT0), sr(oR), 56 * 1024))
    e("s_add_u32 %s, %s, %s" % (sr(oXk), sr(oXk2), sr(oT0)))
    e("s_add_u32 %s, %s, %d" % (sr(oXk), sr(oXk), 256 * 1024))
    e("s_lshl_b32 %s, %s, 16" % (sr(oT0), sr(oR)))
    e("s_add_u32 %s, %s, %s" % (sr(oXk2), sr(oXk2), sr(oT0)))
    e("s_lshl_b32 %s, %s, 15" % (sr(oWk2), sr(sWave)))
    e("s_lshl_b32 %s, %s, 8" % (sr(oT0), sr(oTn)))
    e("s_add_u32 %s, %s, %s" % (sr(oWk2), sr(oWk2), sr(oT0)))
    e("s_mul_i32 %s, %s, %d" % (sr(oT0), sr(oR), 896 * 2048))
    e("s_add_u32 %s, %s, %s" % (sr(oWk), sr(oWk2), sr(oT0)))
    e("s_lshl_b32 %s, %s, 21" % (sr(oT0), sr(oR)))
    e("s_add_u32 %s, %s, %s" % (sr(oWk2), sr(oWk2), sr(oT0)))
    e("s_mov_b32 %s, 5" % sr(oIter))
    e("s_lshl_b32 %s, %s, 1" % (sr(oC3), sr(oTm)))
    e("s_lshr_b32 %s, %s, 1" % (sr(oT0), sr(sWave)))
    e("s_add_u32 %s, %s, %s" % (sr(oC3), sr(oC3), sr(oT0)))
    e("s_lshl_b32 %s, %s, 7" % (sr(oC3), sr(oC3)))
    e("s_add_u32 %s, %s, %d" % (sr(oC3), sr(oC3), WS_F3))
    e("s_waitcnt vmcnt(0) lgkmcnt(0)")
    e("s_barrier")
    e("s_mov_b32 %s, %s" % (sr(SRD_W), sr(oWD)))
    e("s_mov_b32 %s, %s" % (sr(SRD_W + 1), sr(oWD + 1)))
    e("s_mov_b32 %s, %d" % (sr(SRD_W + 2), 3584 * 2048))
    e("s_mov_b32 %s, %s" % (sr(SRD_OUT), sr(oOUT)))
    e("s_mov_b32 %s, %s" % (sr(SRD_OUT + 1), sr(oOUT + 1)))
    poll_check(a, vPoll2, SRD_WS, sr(aPl), 64, oT0)
    for i in range(4):
        pre, d, x, post = loads3(i)
        e(pre)
        e("s_nop 0")
        for q in d + x + post:
            e(q)


def part3(a, name):
    e = a.e
    for X in range(2):
        e("s_lshl_b32 %s, %s, 7" % (sr(aThr[X]), sr(aQb[X])))
        e("s_lshl_b32 %s, %s, 2" % (sr(aT1), sr(aHead)))
        e("s_add_u32 %s, %s, %s" % (sr(aThr[X]), sr(aThr[X]), sr(aT1)))
        e("s_add_u32 %s, %s, %s" % (sr(aThr[X]), sr(aThr[X]), sr(sWave)))
        e("s_add_u32 %s, %s, %d" % (sr(aThr[X]), sr(aThr[X]), WS_F3))
    flag_store(a, "byte", 14, "1", SRD_WS, sr(aThr[1]), wave0=False)
    interval3(a, 0, 'A', first=True, vm=45)
    interval3(a, 0, 'B', zero=True)
    e("s_branch %s_o1" % name)
    align(a)
    a.label(name + "_oloop")
    stamp_ts(a)
    l1_, l2_, l3_ = a.newlabel("osw"), a.newlabel("opl"), a.newlabel("osg")
    e("s_cmp_lg_u32 %s, 3" % sr(oIter))
    e("s_cbranch_scc1 %s" % l1_)
    e("s_waitcnt vmcnt(12)")
    poll_check(a, vPoll3, SRD_WS, sr(oC3), 32, oT0)
    e("s_mov_b32 %s, %s" % (sr(SRD_W), sr(oWO)))
    e("s_mov_b32 %s, %s" % (sr(SRD_W + 1), sr(oWO + 1)))
    e("s_mov_b32 %s, %d" % (sr(SRD_W + 2), 4096 * 2048))
    e("s_mov_b32 %s, %s" % (sr(oXk), sr(oXk2)))
    e("s_mov_b32 %s, %s" % (sr(oWk), sr(oWk2)))
    e("v_add_u32 %s, 8192, %s" % (vr(vWd3[1]), vr(vWd3[1])))
    e("v_subrev_u32 %s, 8192, %s" % (vr(vWd3[2]), vr(vWd3[2])))
    a.label(l1_)
    interval3(a, 0)
    a.label(name + "_o1")
    for i in range(1, NR):
        interval3(a, i)
        if i == OPT.get('afl', 1):
            e("s_cmp_lg_u32 %s, 5" % sr(oIter))
            e("s_cbranch_scc1 %s" % l3_)
            e("s_waitcnt vmcnt(%d)" % (12 * (i + 1)))
            flag_store(a, "byte", 14, "1", SRD_WS, sr(aThr[0]), wave0=False)
            a.label(l3_)
        if i == 3:
            e("s_cmp_lg_u32 %s, 4" % sr(oIter))
            e("s_cbranch_scc1 %s" % l2_)
            e(poll_issue(vPoll3, SRD_WS, sr(oC3)))
            a.label(l2_)
    e("s_sub_u32 %s, %s, 1" % (sr(oIter), sr(oIter)))
    e("s_cmp_lg_u32 %s, 0" % sr(oIter))
    e("s_cbranch_scc1 %s_oloop" % name)
    interval3(a, 0)
    e("s_lshl_b32 %s, %s, 19" % (sr(oT1), sr(oTile)))
    e("s_lshl_b32 %s, %s, 13" % (sr(oT2), sr(sWave)))
    e("s_add_u32 %s, %s, %s" % (sr(oT1), sr(oT1), sr(oT2)))
    e("s_add_u32 %s, %s, %d" % (sr(oT1), sr(oT1), WS_PART))
    e("s_lshl_b32 %s, %s, 2" % (sr(oT2), sr(oTile)))
    e("s_add_u32 %s, %s, %s" % (sr(oT2), sr(oT2), sr(sWave)))
    e("s_lshl_b32 %s, %s, 9" % (sr(oT2), sr(oT2)))
    e("s_add_u32 %s, %s, %d" % (sr(oT2), sr(oT2), WS_FQ))
    sSa = [90, 92, 94]
    sFl = [96, 97, 98]
    for c in range(1, 4):
        A_, F_ = sSa[c - 1], sFl[c - 1]
        e("s_xor_b32 %s, %s, %d" % (sr(oT0), sr(oR), c))
        e("s_lshl_b32 %s, %s, 7" % (sr(F_), sr(oT0)))
        e("s_add_u32 %s, %s, %s" % (sr(F_), sr(F_), sr(oT2)))
        e("s_add_u32 %s, %s, %d" % (sr(F_), sr(F_), c))
        e("s_lshl_b32 %s, %s, 15" % (sr(oT0), sr(oT0)))
        e("s_lshl_b32 %s, %s, 17" % (sr(oCnt), sr(oR)))
        e("s_add_u32 %s, %s, %s" % (sr(A_), sr(oT0), sr(oCnt)))
        e("s_add_u32 %s, %s, %s" % (sr(A_), sr(A_), sr(oT1)))
        e("s_add_u32 %s, %s, 4096" % (sr(A_ + 1), sr(A_)))
    e("s_lshl_b32 %s, %s, 7" % (sr(oT0), sr(oR)))
    e("s_add_u32 %s, %s, %s" % (sr(oT2), sr(oT2), sr(oT0)))
    units = [(c, s_) for c in (1, 2, 3, 0) for s_ in range(8)]

    def ureads(u):
        c, s_ = units[u]
        slot, st = 1 + (s_ >> 1), s_ & 1
        out = []
        for n2 in range(2):
            nb = 2 * c + n2
            for t in range(2):
                off = slot * 16384 + st * 8192 + t * 1024
                base = vWr3 + nb
                if off >= 65536:
                    base, off = vWr3B + nb, off - 65536
                out.append("ds_read_b64_tr_b16 %s, %s offset:%d" % (vr(vWF + 8 * (u % 4) + 4 * n2 + 2 * t, 2), vr(base), off))
        return out

    def umf(u):
        c, s_ = units[u]
        slot, st = 1 + (s_ >> 1), s_ & 1
        out = []
        for n2 in range(2):
            nb = 2 * c + n2
            for tb in range(4):
                d = vr(vACC + 4 * (nb * 4 + tb), 4)
                out.append("v_mfma_f32_16x16x32_bf16 %s, %s, %s, %s" % (d, vr(vWF + 8 * (u % 4) + 4 * n2, 4), ar(aX + 32 * slot + 16 * st + 4 * tb, 4), d))
        return out
    e("s_waitcnt vmcnt(36) lgkmcnt(0)")
    e("s_barrier")
    fill = {g: [r] for g, r in enumerate(ureads(0) + ureads(1))}
    interleave(a, mf3(0, 1), fill)
    for u in range(32):
        c, s_ = units[u]
        if u in (0, 2, 4):
            e("s_waitcnt vmcnt(%d)" % (24 - 6 * u))
            e("s_barrier")
        e("s_waitcnt lgkmcnt(%d)" % (4 if u < 31 else 0))
        fill = {}
        if u + 2 < 32:
            for g, r in enumerate(ureads(u + 2)):
                fill[g] = [r]
        if u >= 8:
            pc = units[u - 8][0]
            q = s_
            fill.setdefault(6, []).append("buffer_store_dwordx4 %s, %s, %s, %s offen offset:%d sc1" % (
                vr(vACC + 32 * pc + 4 * q, 4), vr(vLane16), sr(SRD_WS, 4), sr(sSa[pc - 1] + (q >> 2)), (q & 3) * 1024))
        interleave(a, umf(u), fill)
        if u == 23:
            e("s_waitcnt vmcnt(8)")
            flag_store(a, "byte", 5, "1", SRD_WS, sr(sFl[0]), wave0=False)
    stamp_ts(a)
    e("s_waitcnt vmcnt(9)")
    flag_store(a, "byte", 5, "1", SRD_WS, sr(sFl[1]), wave0=False)
    e("v_and_b32 v2, 15, v0")
    e("v_lshlrev_b32 v2, 11, v2")
    e("v_bfe_u32 v3, v0, 4, 1")
    e("v_lshl_add_u32 v2, v3, 5, v2")
    e("v_lshrrev_b32 v3, 5, v0")
    e("v_lshl_add_u32 v2, v3, 4, v2")
    e("s_waitcnt vmcnt(1)")
    flag_store(a, "byte", 5, "1", SRD_WS, sr(sFl[2]), wave0=False)
    stamp_ts(a)
    e(poll_issue(6, SRD_WS, sr(oT2)))
    e("s_waitcnt vmcnt(0)")
    poll_check(a, 6, SRD_WS, sr(oT2), 1, oT0, val=0x01010100, sleep=2)
    stamp_ts(a)
    for c in range(1, 4):
        e("s_xor_b32 %s, %s, %d" % (sr(oT0), sr(oR), c))
        e("s_lshl_b32 %s, %s, 17" % (sr(oT0), sr(oT0)))
        e("s_lshl_b32 %s, %s, 15" % (sr(oCnt), sr(oR)))
        e("s_add_u32 %s, %s, %s" % (sr(oT0), sr(oT0), sr(oCnt)))
        e("s_add_u32 %s, %s, %s" % (sr(oT0), sr(oT0), sr(oT1)))
        e("s_add_u32 %s, %s, 4096" % (sr(oCnt), sr(oT0)))
        for q in range(8):
            e("buffer_load_dwordx4 %s, %s, %s, %s offen offset:%d sc1" % (
                vr(vACC + 32 * c + 4 * q, 4), vr(vLane16), sr(SRD_WS, 4), sr(oT0 if q < 4 else oCnt), (q & 3) * 1024))
    e("s_lshl_b32 %s, %s, 2" % (sr(oT0), sr(oTm)))
    e("s_add_u32 %s, %s, %s" % (sr(oT0), sr(oT0), sr(sWave)))
    e("s_lshl_b32 %s, %s, 17" % (sr(oT0), sr(oT0)))
    e("s_lshl_b32 %s, %s, 8" % (sr(oT2), sr(oTn)))
    e("s_add_u32 %s, %s, %s" % (sr(oT0), sr(oT0), sr(oT2)))
    e("s_lshl_b32 %s, %s, 6" % (sr(oT2), sr(oR)))
    e("s_add_u32 %s, %s, %s" % (sr(oT0), sr(oT0), sr(oT2)))
    for c in range(1, 4):
        e("s_waitcnt vmcnt(%d)" % (24 - 8 * c))
        for i in range(0, 32, 2):
            e("v_pk_add_f32 %s, %s, %s" % (vr(vACC + i, 2), vr(vACC + i, 2), vr(vACC + 32 * c + i, 2)))
    for tb in range(4):
        q0, q1 = vACC + 4 * tb, vACC + 16 + 4 * tb
        d = vACC + 32 + 4 * tb
        e("v_cvt_pk_bf16_f32 %s, %s, %s" % (vr(d), vr(q0), vr(q0 + 1)))
        e("v_cvt_pk_bf16_f32 %s, %s, %s" % (vr(d + 1), vr(q0 + 2), vr(q0 + 3)))
        e("v_cvt_pk_bf16_f32 %s, %s, %s" % (vr(d + 2), vr(q1), vr(q1 + 1)))
        e("v_cvt_pk_bf16_f32 %s, %s, %s" % (vr(d + 3), vr(q1 + 2), vr(q1 + 3)))
    e("s_nop 0")
    for tb in range(4):
        d = vACC + 32 + 4 * tb
        e("v_permlane16_swap_b32 %s, %s" % (vr(d), vr(d + 2)))
        e("v_permlane16_swap_b32 %s, %s" % (vr(d + 1), vr(d + 3)))
        e("buffer_store_dwordx4 %s, v2, %s, %s offen%s" % (vr(d, 4), sr(SRD_OUT, 4), sr(oT0), OPT.get('osc', '')))
        e("s_add_u32 %s, %s, 32768" % (sr(oT0), sr(oT0)))
    a.label(name + "_fin")
    stamp_ts(a)


NAME = "gated_mix__compressed_kv_cla__geglu_ffn__prompt_kernel"
HEADER = open('gated_mix__compressed_kv_cla__geglu_ffn__prompt.s.ref').read().split("; Override launch")[0]


def build(opt):
    OPT.clear()
    OPT.update(opt)
    M16HACK[0] = opt.get('m16hack', 0)
    a = Asm()
    kernel_header(a, NAME)
    n = "mk"
    handlers = []
    a.e("s_cmp_ge_u32 s2, 256")
    a.e("s_cbranch_scc1 mk_end")
    part1(a, n, att_prologue)
    part2(a, n, out_prologue, handlers)
    part3(a, n)
    a.label("mk_end")
    a.e("s_endpgm")
    for h in handlers:
        emit_handler(a, *h)
    if opt.get('list', 1):
        out = HEADER + "; @launch kernel=%s grid=(256,1,1) block=(256,1,1) lds=%d\n" % (NAME, LDS)
    else:
        out = HEADER + "; @launch grid=(256,1,1) block=(256,1,1) lds=%d\n" % LDS
    out += '.amdgcn_target "amdgcn-amd-amdhsa--gfx950"\n.text\n' + a.text()
    out += '.section .rodata,"a"\n.p2align 6\n' + kernel_desc(NAME, 512, 102, 256)
    return out


if __name__ == "__main__":
    open(sys.argv[1], "w").write(build(json.loads(sys.argv[2]) if len(sys.argv) > 2 else {}))
```
